```python
import torch

def _softmax(x, axis=-1):
    return torch.softmax(x, dim=axis)

def _gelu(x):
    return torch.nn.functional.gelu(x, approximate='tanh')

def _silu(x):
    return torch.nn.functional.silu(x)

def _sigmoid(x):
    return torch.sigmoid(x)

def _layernorm(x, axis=-1, eps=1e-05):
    m = x.mean(dim=axis, keepdim=True)
    v = x.var(dim=axis, keepdim=True, unbiased=False)
    return (x - m) / torch.sqrt(v + eps)

def _scatter_add(tgt, idx, src, axis=0):
    return tgt.clone().index_add_(axis, idx, src)

def _segment_sum(src, seg, n):
    out = torch.zeros((n,) + src.shape[1:], dtype=src.dtype)
    return out.index_add_(0, seg, src)

def _pad(x, pw):
    flat = tuple((v for pair in reversed(pw) for v in pair))
    return torch.nn.functional.pad(x, flat)
kernel_name = 'standalone__autoregressive_conv_wavenet__speech'

def setup_inputs():

    _w = lambda a: (lambda t: t.to(torch.bfloat16) if t.is_floating_point() else t)(torch.as_tensor(a))
    B, T, D, K = (2, 4000, 144, 31)
    return {'x': _w((lambda *s: torch.randn(*s, dtype=torch.bfloat16) * 0.1)(B, T, D)), 'w': _w((lambda *s: torch.randn(*s, dtype=torch.bfloat16) * 0.1)(K, D, 2 * D)), 'w_o': _w((lambda *s: torch.randn(*s, dtype=torch.bfloat16) * 0.05)(D, D))}

def reference(x, w, w_o):
    B, T, D = x.shape
    K = w.shape[0]
    dil = 2
    pad = (K - 1) * dil
    xp = _pad(x, ((0, 0), (pad, 0), (0, 0)))
    h = torch.einsum('btc,cd->btd', xp[:, pad:pad + T, :], w[0])
    for i in range(1, K):
        off = pad - i * dil
        h = h + torch.einsum('btc,cd->btd', xp[:, off:off + T, :], w[i])
    f = h[..., :D].clone()
    g = h[..., D:].clone()
    z = torch.tanh(f) * _sigmoid(g)
    return z @ w_o
```

```python
class Asm:
    def __init__(self):
        self.lines = []
    def __call__(self, s):
        for l in s.split("\n"):
            l = l.strip()
            if l:
                self.lines.append(l if l.endswith(":") or l.startswith(".") or l.startswith(";") else "    " + l)
    def c(self, s):
        self.lines.append("    ; " + s)
    def text(self):
        return "\n".join(self.lines) + "\n"

def vr(base, n=1):
    return f"v{base}" if n == 1 else f"v[{base}:{base+n-1}]"
def sr(base, n=1):
    return f"s{base}" if n == 1 else f"s[{base}:{base+n-1}]"

def kernel_header(a, name):
    a(".p2align 8")
    a(f".type {name},@function")
    a(f"{name}:")

def kernel_desc(a, name, vgpr, sgpr=102):
    a(f".amdhsa_kernel {name}")
    a(f".amdhsa_next_free_vgpr {vgpr}")
    a(f".amdhsa_next_free_sgpr {sgpr}")
    a(f".amdhsa_accum_offset {((vgpr + 3) // 4) * 4}")
    a(".amdhsa_group_segment_fixed_size 0")
    a(".amdhsa_kernarg_size 48")
    a(".amdhsa_user_sgpr_count 2")
    a(".amdhsa_user_sgpr_kernarg_segment_ptr 1")
    a(".amdhsa_system_sgpr_workgroup_id_x 1")
    a(".amdhsa_float_denorm_mode_32 3")
    a(".end_amdhsa_kernel")
```

```python
import sys
from asmlib import *

BASE = "standalone__autoregressive_conv_wavenet__speech"
K_MAIN = BASE + "_kernel"
K_PRE = "pre_kernel"
K_OUT = "outp_kernel"

XARR = 176 * 288
LDS_X0, LDS_X1 = 0, XARR
LDS_W = 2 * XARR
WSLOT = 16384
LDS_S = LDS_W + 3 * WSLOT
SSLOT = 176 * 32
LDS_MAIN = 163840
GF_PROD = 9 * 72 * 2048
GF_SIZE = 2 * GF_PROD
E_OFF = 0x400000
E_SIZE = 28 * 9 * 2 * 18 * 512
W_SIZE = 31 * 144 * 288 * 2
XB_SIZE = 4000 * 288

sNG, sMT, sMTL, sB, sM7, sWV = 42, 43, 44, 45, 46, 47

def emit_map(a):
    a(f"""
    s_and_b32 s48, s2, 7
    s_lshr_b32 s49, s2, 3
    s_and_b32 s50, s48, 3
    s_lshr_b32 s48, s48, 2
    s_lshl_b32 s48, s48, 5
    s_add_u32 s48, s48, s49
    s_mul_i32 s{sNG}, s48, 9363
    s_lshr_b32 s{sNG}, s{sNG}, 16
    s_mul_i32 s49, s{sNG}, 7
    s_sub_u32 s{sM7}, s48, s49
    s_mul_i32 s{sMT}, s50, 7
    s_add_u32 s{sMT}, s{sMT}, s{sM7}
    s_lshr_b32 s{sB}, s50, 1
    s_and_b32 s50, s50, 1
    s_mul_i32 s50, s50, 7
    s_add_u32 s{sMTL}, s50, s{sM7}
    """)

def emit_srd(a, d, lo, hi, size):
    a(f"s_mov_b32 s{d}, s{lo}")
    a(f"s_and_b32 s{d+1}, s{hi}, 0xffff")
    a(f"s_mov_b32 s{d+2}, {size}")
    a(f"s_mov_b32 s{d+3}, 0x20000")

def emit_waveid(a):
    a("v_lshrrev_b32 v1, 6, v0")
    a("s_nop 0")
    a(f"v_readfirstlane_b32 s{sWV}, v1")
    a("v_and_b32 v0, 63, v0")
    a("s_nop 2")

def emit_wdma_pattern(a, vd, vt):
    a(f"""
    v_lshrrev_b32 v{vd}, 2, v0
    v_mul_u32_u24 v{vd}, 576, v{vd}
    v_lshrrev_b32 v{vt}, 5, v0
    v_lshlrev_b32 v{vt}, 1, v{vt}
    v_xor_b32 v{vt}, v{vt}, v0
    v_and_b32 v{vt}, 3, v{vt}
    v_lshlrev_b32 v{vt}, 4, v{vt}
    v_add_u32 v{vd}, v{vd}, v{vt}
    s_lshl_b32 s48, s{sNG}, 6
    v_add_u32 v{vd}, s48, v{vd}
    """)

def emit_tr_lane(a, vd, vt, vt2, blkstride):
    a(f"""
    v_lshrrev_b32 v{vd}, 5, v0
    v_mul_u32_u24 v{vd}, {blkstride}, v{vd}
    v_bfe_u32 v{vt}, v0, 4, 1
    v_lshlrev_b32 v{vt2}, 9, v{vt}
    v_add_u32 v{vd}, v{vd}, v{vt2}
    v_lshlrev_b32 v{vt2}, 5, v{vt}
    v_add_u32 v{vd}, v{vd}, v{vt2}
    v_bfe_u32 v{vt}, v0, 2, 2
    v_lshlrev_b32 v{vt}, 6, v{vt}
    v_add_u32 v{vd}, v{vd}, v{vt}
    v_and_b32 v{vt}, 3, v0
    v_lshlrev_b32 v{vt}, 3, v{vt}
    v_add_u32 v{vd}, v{vd}, v{vt}
    """)

def emit_bf16_op(a, op, dst, xa, xb, t, mask="0xffff0000"):
    a(f"v_lshlrev_b32 v{t}, 16, v{xa}")
    a(f"v_lshlrev_b32 v{t+1}, 16, v{xb}")
    a(f"v_and_b32 v{t+2}, {mask}, v{xa}")
    a(f"v_and_b32 v{t+3}, {mask}, v{xb}")
    a(f"{op} v{t}, v{t}, v{t+1}")
    a(f"{op} v{t+2}, v{t+2}, v{t+3}")
    a(f"v_cvt_pk_bf16_f32 v{dst}, v{t}, v{t+2}")

def gen_pre(a):
    kernel_header(a, K_PRE)
    a("s_cmp_ge_u32 s2, 252\ns_cbranch_scc1 P_end")
    a("s_load_dwordx2 s[4:5], s[0:1], 8\ns_load_dwordx2 s[6:7], s[0:1], 40")
    emit_map(a)
    emit_waveid(a)
    a(f"""
    s_mul_i32 s51, s{sWV}, 28
    s_add_u32 s51, s51, s{sMT}
    s_cmp_ge_u32 s51, 72
    s_cbranch_scc1 P_end
    s_waitcnt lgkmcnt(0)
    """)
    emit_srd(a, 16, 4, 5, W_SIZE)
    emit_srd(a, 20, 6, 7, GF_SIZE)
    emit_wdma_pattern(a, 2, 3)
    a("""
    s_lshr_b32 s52, s51, 3
    s_lshr_b32 s53, s51, 1
    s_and_b32 s53, s53, 3
    s_lshl_b32 s53, s53, 1
    s_and_b32 s54, s51, 1
    s_lshl_b32 s54, s54, 3
    s_add_u32 s53, s53, s54
    s_mul_i32 s54, s53, 165888
    s_mul_i32 s55, s52, 9216
    s_add_u32 s54, s54, s55
    s_cmp_eq_u32 s53, 0
    s_cselect_b32 s56, 0x7fff0000, 0
    v_or_b32 v4, s56, v2
    s_cselect_b32 s57, 0, s54
    s_cselect_b32 s58, 0, 82944
    s_sub_u32 s57, s57, s58
    """)
    a(f"s_mul_i32 s59, s{sWV}, 5120")
    for b in range(5):
        a(f"s_add_u32 m0, s59, {b*1024}")
        if b == 0:
            a("s_nop 0\nbuffer_load_dwordx4 v4, s[16:19], s57 offen lds")
        else:
            a(f"s_add_u32 s60, s54, {(b-1)*82944}")
            a("buffer_load_dwordx4 v2, s[16:19], s60 offen lds")
    emit_tr_lane(a, 5, 6, 7, 2048)
    a("v_add_u32 v5, s59, v5\nv_xor_b32 v6, 32, v5")
    a(f"""
    s_mul_i32 s60, s{sNG}, 147456
    s_lshl_b32 s61, s51, 11
    s_add_u32 s60, s60, s61
    v_lshlrev_b32 v7, 4, v0
    v_add_u32 v7, s60, v7
    s_waitcnt vmcnt(0)
    """)
    for nh in range(2):
        va = 5 + nh
        P, Q, R = 16 + 12*nh, 20 + 12*nh, 24 + 12*nh
        for (reg, b0) in ((P, 1), (Q, 0), (R, 2)):
            for h in range(2):
                a(f"ds_read_b64_tr_b16 v[{reg+2*h}:{reg+2*h+1}], v{va} offset:{b0*1024 + h*256}")
    a("s_waitcnt lgkmcnt(0)")
    for nh in range(2):
        P, Q, R = 16 + 12*nh, 20 + 12*nh, 24 + 12*nh
        G, F = 40 + 8*nh, 44 + 8*nh
        for r in range(4):
            emit_bf16_op(a, "v_sub_f32", G + r, Q + r, P + r, 8)
            emit_bf16_op(a, "v_sub_f32", F + r, R + r, P + r, 8)
        a(f"buffer_store_dwordx4 v[{G}:{G+3}], v7, s[20:23], 0 offen offset:{nh*1024}")
        a(f"s_mov_b32 s62, {GF_PROD}")
        a(f"buffer_store_dwordx4 v[{F}:{F+3}], v7, s[20:23], s62 offen offset:{nh*1024}")
    a("s_waitcnt vmcnt(0)")
    a("P_end:\ns_endpgm")

M_, Y_, Z_ = 16, 52, 88
XA, XB = 124, 164
GR = 204
WA, WB = GR + 32, GR + 40
vS, vX, vW, vG, vXb, vSb, vWb = 2, 3, 4, 5, 6, 7, 8

class Sched:
    def __init__(self, a):
        self.a = a; self.lds = []; self.vm = []
    def lds_issue(self, tag): self.lds.append(tag)
    def vm_issue(self, tag): self.vm.append(tag)
    def need(self, ltags=(), vtags=()):
        parts = []
        li = max((i for i, t in enumerate(self.lds) if t in ltags), default=-1)
        if li >= 0:
            n = len(self.lds) - 1 - li
            parts.append(f"lgkmcnt({min(n,15)})")
            self.lds = self.lds[len(self.lds) - min(n,15):] if min(n,15) > 0 else []
        vi = max((i for i, t in enumerate(self.vm) if t in vtags), default=-1)
        if vi >= 0:
            n = len(self.vm) - 1 - vi
            parts.append(f"vmcnt({n})")
            self.vm = self.vm[len(self.vm) - n:] if n > 0 else []
        if parts:
            self.a("s_waitcnt " + " ".join(parts))

def sp_order():
    r = []
    for i in range(10):
        if i >= 1: r.append((0, i - 1, i))
        if i <= 8: r.append((1, i, i))
    return r

def mfma(a, acc, T, wreg, xreg):
    d = acc + 4 * T
    a(f"v_mfma_f32_16x16x32_bf16 v[{d}:{d+3}], v[{wreg}:{wreg+3}], v[{xreg}:{xreg+3}], v[{d}:{d+3}]")

def emit_sp(a, sc, acc, xset, wfrag, wtags, xtagpfx, fillers, lookahead=4):
    order = sp_order()
    for n, (s, T, i) in enumerate(order):
        lt = set(); vt = set()
        pend_l = set(sc.lds); pend_v = set(sc.vm)
        need_now_l = ({f"{xtagpfx}{i}"} | set(wtags[s][0])) & pend_l
        need_now_v = set(wtags[s][1]) & pend_v
        if need_now_l or need_now_v:
            for (s2, T2, i2) in order[n:n + lookahead]:
                lt |= {f"{xtagpfx}{i2}"} | set(wtags[s2][0])
            lt &= pend_l
            sc.need(lt if need_now_l else (), need_now_v)
        mfma(a, acc, T, wfrag[s], xset + 4 * i)
        for f in fillers[n]:
            f()

def rd_x(a, sc, xset, i, vaddr, imm, tag):
    def f():
        a(f"ds_read_b128 v[{xset+4*i}:{xset+4*i+3}], v{vaddr} offset:{imm}")
        sc.lds_issue(tag)
    return f
def rd_w(a, sc, reg, h, imm, tag):
    def f():
        a(f"ds_read_b64_tr_b16 v[{reg+2*h}:{reg+2*h+1}], v{vW} offset:{imm}")
        sc.lds_issue(tag)
    return f
def ins(a, text):
    return lambda: a(text)

def a_reads(a, sc, sp, xset, wreg, pfx):
    r = []
    def w(s): return [rd_w(a, sc, wreg + 4 * s, h, (2 * sp + 8 * s) * 1024 + h * 256, f"{pfx}w{s}") for h in range(2)]
    def x(i): return rd_x(a, sc, xset, i, vS, 512 * i + 128 * (1 - sp), f"{pfx}x{i}")
    r += w(1); r.append(x(0)); r += w(0)
    r += [x(i) for i in range(1, 10)]
    return r
def b_reads(a, sc, sp, xset, pfx):
    return [rd_x(a, sc, xset, i, vX, 4608 * i + 1152 * (1 - sp), f"{pfx}x{i}") for i in range(10)]

def place(items, start, ngaps=18):
    g = [[] for _ in range(ngaps)]
    for k, it in enumerate(items):
        g[start + k].append(it)
    return g
def merge(*gs):
    return [sum((g[n] for g in gs), []) for n in range(len(gs[0]))]

sC = 60
sSlotW, sSlotS = 61, 62
sIt = 63
sGc, sGp, sGo0, sGo1 = 64, 65, 66, 67
sT = 68

def gen_main(a, opt):
    kernel_header(a, K_MAIN)
    a("s_cmp_ge_u32 s2, 252\ns_cbranch_scc1 L_end")
    a("""
    s_load_dwordx4 s[4:7], s[0:1], 0
    s_load_dwordx4 s[8:11], s[0:1], 16
    s_load_dwordx4 s[12:15], s[0:1], 32
    s_getpc_b64 s[40:41]
    L_pc:
    v_lshlrev_b32 v1, 7, v0
    v_min_u32 v1, L_code_end-L_pc-4, v1
    global_load_dword v2, v1, s[40:41]
    """)
    emit_map(a)
    emit_waveid(a)
    a("s_waitcnt lgkmcnt(0)")
    a(f"""
    s_mul_i32 s48, s{sB}, {XB_SIZE}
    s_add_u32 s4, s4, s48
    s_addc_u32 s5, s5, 0
    """)
    emit_srd(a, 16, 4, 5, XB_SIZE)
    emit_srd(a, 20, 6, 7, W_SIZE)
    emit_srd(a, 24, 14, 15, GF_SIZE)
    a(f"s_add_u32 s14, s14, {E_OFF}\ns_addc_u32 s15, s15, 0")
    emit_srd(a, 28, 14, 15, E_SIZE)
    def xpat(vd, rs):
        a(f"""
        v_add_u32 v{vd}, {rs}, v0
        v_mul_u32_u24 v10, 3641, v{vd}
        v_lshrrev_b32 v10, 16, v10
        v_mul_u32_u24 v11, 18, v10
        v_sub_u32 v{vd}, v{vd}, v11
        v_lshlrev_b32 v{vd}, 4, v{vd}
        v_lshrrev_b32 v11, 1, v10
        v_mul_u32_u24 v11, 1152, v11
        v_add_u32 v{vd}, v{vd}, v11
        v_and_b32 v10, 1, v10
        v_mul_u32_u24 v10, 288, v10
        v_add_u32 v{vd}, v{vd}, v10
        """)
    a(f"s_lshl_b32 s48, s{sWV}, 6")
    xpat(12, "s48")
    xpat(13, "512")
    a(f"""
    s_cmp_eq_u32 s{sMTL}, 0
    s_cselect_b32 s48, 0x7fff0000, 0
    v_or_b32 v14, s48, v12
    v_or_b32 v15, s48, v13
    s_mul_i32 s49, s{sMTL}, {288*288}
    s_sub_i32 s49, s49, {64*288}
    s_max_i32 s50, s49, 0
    s_lshl_b32 s51, s{sWV}, 10
    """)
    for k in range(5):
        for arr in range(2):
            a(f"s_add_u32 m0, s51, {arr*XARR + k*9216}")
            if k == 0:
                a(f"s_add_u32 s52, s50, {arr*576}")
            else:
                a(f"s_add_u32 s52, s49, {k*18432 + arr*576}")
            a(f"buffer_load_dwordx4 v{14 if k == 0 else 12}, s[16:19], s52 offen lds")
    a(f"s_cmp_gt_u32 s{sWV}, 4\ns_cbranch_scc1 L_xk5_done")
    a(f"s_cmp_eq_u32 s{sWV}, 4\ns_cselect_b32 s54, 0, -1\ns_mov_b32 exec_hi, s54")
    for arr in range(2):
        a(f"s_add_u32 m0, s51, {arr*XARR + 5*9216}")
        a(f"s_add_u32 s52, s49, {5*18432 + arr*576}")
        a("buffer_load_dwordx4 v12, s[16:19], s52 offen lds")
    a("s_mov_b64 exec, -1\nL_xk5_done:")
    def r8(es):
        a(f"""
        s_cmp_ge_u32 {es}, 5
        s_cselect_b32 s53, 1, 0
        s_mul_i32 s54, s53, 5
        s_sub_u32 s54, {es}, s54
        s_mul_i32 s55, s53, {XARR}
        s_mul_i32 s56, s54, 9216
        s_add_u32 s55, s55, s56
        s_add_u32 m0, s55, 8192
        s_mul_i32 s55, s54, 18432
        s_mul_i32 s56, s53, 576
        s_add_u32 s55, s55, s56
        s_add_u32 s52, s49, s55
        s_add_u32 s57, s50, s56
        s_cmp_eq_u32 s54, 0
        s_cselect_b32 s52, s57, s52
        s_cselect_b64 vcc, -1, 0
        v_cndmask_b32 v10, v13, v15, vcc
        buffer_load_dwordx4 v10, s[16:19], s52 offen lds
        """)
    r8(f"s{sWV}")
    a(f"s_cmp_ge_u32 s{sWV}, 2\ns_cbranch_scc1 L_xr8_done")
    a(f"s_add_u32 s58, s{sWV}, 8")
    r8("s58")
    a("L_xr8_done:")
    a(f"s_mov_b32 s{sC}, s{sM7}")
    a(f"s_cmp_ge_u32 s{sWV}, 4\ns_cbranch_scc1 L_helper")
    gen_mfma_waves(a, opt)
    a("L_helper:")
    gen_helper_waves(a, opt)
    a("L_end:\ns_endpgm\nL_code_end:")

def next_chunk(a, s):
    a(f"s_add_u32 s{s}, s{s}, 1\ns_cmp_eq_u32 s{s}, 9\ns_cselect_b32 s{s}, 0, s{s}")

def gen_mfma_waves(a, opt):
    a("s_setprio 3")
    a(f"s_lshr_b32 s{sT}, s{sWV}, 1\ns_and_b32 s{sT+1}, s{sWV}, 1")
    a(f"""
    v_and_b32 v9, 15, v0
    v_lshrrev_b32 v10, 5, v0
    v_lshlrev_b32 v10, 1, v10
    v_sub_u32 v9, v9, v10
    s_lshl_b32 s{sT+2}, s{sT}, 3
    s_sub_u32 s{sT+2}, 12, s{sT+2}
    v_add_u32 v9, s{sT+2}, v9
    v_bfe_u32 v10, v0, 4, 1
    v_lshlrev_b32 v10, 4, v10
    v_lshlrev_b32 v{vSb}, 5, v9
    v_add_u32 v{vSb}, v{vSb}, v10
    v_add_u32 v{vSb}, {LDS_S}, v{vSb}
    v_mul_u32_u24 v{vXb}, 288, v9
    v_add_u32 v{vXb}, v{vXb}, v10
    """)
    emit_tr_lane(a, vWb, 9, 10, 1024)
    a(f"""
    s_lshl_b32 s{sT+2}, s{sT+1}, 5
    v_xor_b32 v{vWb}, s{sT+2}, v{vWb}
    s_lshl_b32 s{sT+2}, s{sT}, 12
    s_add_u32 s{sT+2}, s{sT+2}, {LDS_W}
    v_add_u32 v{vWb}, s{sT+2}, v{vWb}
    s_mul_i32 s{sT+2}, s{sNG}, 147456
    s_lshl_b32 s{sT+3}, s{sT}, 13
    s_add_u32 s{sT+2}, s{sT+2}, s{sT+3}
    s_lshl_b32 s{sT+3}, s{sT+1}, 10
    s_add_u32 s{sT+2}, s{sT+2}, s{sT+3}
    v_lshlrev_b32 v{vG}, 4, v0
    v_add_u32 v{vG}, s{sT+2}, v{vG}
    """)
    for r in range(M_, Z_ + 36):
        a(f"v_mov_b32 v{r}, 0")
    a(f"""
    s_mov_b32 s{sSlotW}, 0
    s_mov_b32 s{sSlotS}, 0
    s_mov_b32 s{sIt}, 0
    s_mov_b32 s{sGc}, s{sC}
    s_mov_b32 s{sGp}, 0
    v_mov_b32 v{vS}, v{vSb}
    v_mov_b32 v{vW}, v{vWb}
    s_waitcnt vmcnt(0)
    s_barrier
    s_barrier
    """)
    sc = Sched(a)
    for f in a_reads(a, sc, 0, XA, WA, "A"): f()

    def gload(setidx, sp, s):
        reg = GR + 16 * setidx + 8 * sp + 4 * s
        so = sGo0 if sp == 0 else sGo1
        def f():
            a(f"buffer_load_dwordx4 v[{reg}:{reg+3}], v{vG}, s[24:27], s{so} offen offset:{s*2048}")
            sc.vm_issue(f"g{setidx}_{sp}_{s}")
        return f
    def g_advance():
        return [ins(a, f"s_cmp_ge_u32 s{sGp}, 9\ns_cselect_b32 s{sGo0}, {GF_PROD}, 0"),
                ins(a, f"s_lshl_b32 s{sGo1}, s{sGc}, 14\ns_add_u32 s{sGo0}, s{sGo0}, s{sGo1}"),
                ins(a, f"s_add_u32 s{sGo1}, s{sGo0}, 4096\ns_add_u32 s{sGp}, s{sGp}, 1"),
                ins(a, f"s_add_u32 s{sGc}, s{sGc}, 1\ns_cmp_eq_u32 s{sGc}, 9"),
                ins(a, f"s_cselect_b32 s{sGc}, 0, s{sGc}")]

    def phase_a_iter(last, gset):
        rd = a_reads(a, sc, 1, XB, WB, "B")
        fill = place(rd, 0)
        if gset is not None:
            fill = merge(fill, place(g_advance(), 13), )
        emit_sp(a, sc, M_, XA, (WA, WA + 4), ((["Aw0"], []), (["Aw1"], [])), "Ax", fill)
        pre = [[] for _ in range(18)]
        if not last:
            upd = [ins(a, f"s_add_u32 s{sSlotW}, s{sSlotW}, {WSLOT}\ns_cmp_eq_u32 s{sSlotW}, {3*WSLOT}"),
                   ins(a, f"s_cselect_b32 s{sSlotW}, 0, s{sSlotW}\ns_xor_b32 s{sSlotS}, s{sSlotS}, {SSLOT}"),
                   ins(a, f"v_add_u32 v{vW}, s{sSlotW}, v{vWb}\nv_add_u32 v{vS}, s{sSlotS}, v{vSb}")]
            def bar():
                sc.need(set(sc.lds), ())
                a("s_barrier")
            pre = place(upd + [bar], 0)
            rd = a_reads(a, sc, 0, XA, WA, "A")
            fill = merge(pre, place(rd, 4))
        else:
            upd = [ins(a, f"s_lshl_b32 s{sT}, s{sC}, 5\ns_add_u32 s{sT}, s{sT}, {LDS_X1}"),
                   ins(a, f"v_add_u32 v{vX}, s{sT}, v{vXb}")]
            fill = merge(place(upd, 0), place(b_reads(a, sc, 0, XA, "A"), 4))
        if gset is not None:
            fill = merge(fill, place([gload(gset, 0, 0), gload(gset, 0, 1), gload(gset, 1, 0), gload(gset, 1, 1)], 0))
        emit_sp(a, sc, M_, XB, (WB, WB + 4), ((["Bw0"], []), (["Bw1"], [])), "Bx", fill)

    a("L_A:")
    state = list(sc.lds)
    phase_a_iter(False, None)
    assert sc.lds == state, (sc.lds, state)
    a(f"s_add_u32 s{sIt}, s{sIt}, 1\ns_cmp_lt_u32 s{sIt}, 7\ns_cbranch_scc1 L_A")
    phase_a_iter(False, 0)
    phase_a_iter(True, 1)

    a(f"s_mov_b32 s{sIt}, s{sC}")
    def phase_b(acc, label, first):
        a(f"s_mov_b32 s{sT+4}, 0")
        a(f"{label}:")
        st_l, st_v = list(sc.lds), list(sc.vm)
        for u in range(3):
            cur, nxt = u, (u + 2) % 3
            fill = merge(place(b_reads(a, sc, 1, XB, "B"), 0), place(g_advance(), 10))
            wr = GR + 16 * cur
            emit_sp(a, sc, acc, XA, (wr, wr + 4), (([], [f"g{cur}_0_0"]), ([], [f"g{cur}_0_1"])), "Ax", fill)
            if u < 2 or not first:
                upd = [ins(a, f"s_add_u32 s{sIt}, s{sIt}, 1\ns_cmp_eq_u32 s{sIt}, 9"),
                       ins(a, f"s_cselect_b32 s{sIt}, 0, s{sIt}\ns_lshl_b32 s{sT}, s{sIt}, 5"),
                       ins(a, f"s_add_u32 s{sT}, s{sT}, {LDS_X1 if first else LDS_X0}"),
                       ins(a, f"v_add_u32 v{vX}, s{sT}, v{vXb}")]
            else:
                upd = [ins(a, f"s_add_u32 s{sIt}, s{sIt}, 1\ns_cmp_eq_u32 s{sIt}, 9"),
                       ins(a, f"s_cselect_b32 s{sIt}, 0, s{sIt}\ns_lshl_b32 s{sT}, s{sIt}, 5"),
                       ins(a, f"s_cmp_eq_u32 s{sT+4}, 2\ns_cselect_b32 s{sT+1}, {LDS_X0}, {LDS_X1}"),
                       ins(a, f"s_add_u32 s{sT}, s{sT}, s{sT+1}\nv_add_u32 v{vX}, s{sT}, v{vXb}")]
            fill = merge(place(upd, 0), place(b_reads(a, sc, 0, XA, "A"), 4),
                         place([gload(nxt, 0, 0), gload(nxt, 0, 1)], 14), place([gload(nxt, 1, 0), gload(nxt, 1, 1)], 16))
            emit_sp(a, sc, acc, XB, (wr + 8, wr + 12), (([], [f"g{cur}_1_0"]), ([], [f"g{cur}_1_1"])), "Bx", fill)
        a(f"s_add_u32 s{sT+4}, s{sT+4}, 1\ns_cmp_lt_u32 s{sT+4}, 3\ns_cbranch_scc1 {label}")
        assert sc.lds == st_l, (sc.lds, st_l)
        assert sc.vm == st_v, (sc.vm, st_v)
    phase_b(Y_, "L_B1", True)
    phase_b(Z_, "L_B2", False)

    a("s_waitcnt vmcnt(0) lgkmcnt(0)")
    a("s_setprio 0")
    a("s_nop 7\ns_nop 1")
    for r in range(36):
        a(f"v_add_f32 v{Y_+r}, v{M_+r}, v{Y_+r}")
        a(f"v_add_f32 v{Z_+r}, v{M_+r}, v{Z_+r}")
    a(f"""
    s_lshr_b32 s{sT}, s{sWV}, 1
    s_cmp_eq_u32 s{sT}, 0
    s_cbranch_scc1 L_ep_k0
    """)
    for r in range(36):
        a(f"v_mov_b32 v{M_+r}, v{Y_+r}")
        a(f"v_mov_b32 v{Y_+r}, v{Z_+r}")
    a("s_branch L_ep_j\nL_ep_k0:")
    for r in range(36):
        a(f"v_mov_b32 v{M_+r}, v{Z_+r}")
    a("L_ep_j:")
    RB = LDS_W
    a(f"""
    s_mul_i32 s{sT+1}, s{sWV}, 9216
    s_add_u32 s{sT+1}, s{sT+1}, {RB}
    v_lshlrev_b32 v9, 4, v0
    v_add_u32 v10, s{sT+1}, v9
    s_xor_b32 s{sT+2}, s{sWV}, 2
    s_mul_i32 s{sT+2}, s{sT+2}, 9216
    s_add_u32 s{sT+2}, s{sT+2}, {RB}
    v_add_u32 v11, s{sT+2}, v9
    """)
    for T in range(9):
        a(f"ds_write_b128 v10, v[{M_+4*T}:{M_+4*T+3}] offset:{T*1024}")
    a("s_waitcnt lgkmcnt(0)\ns_barrier")
    for T in range(9):
        a(f"ds_read_b128 v[{M_+4*T}:{M_+4*T+3}], v11 offset:{T*1024}")
    a(f"""
    s_lshl_b32 s{sT+3}, s{sNG}, 1
    s_and_b32 s{sT+4}, s{sWV}, 1
    s_add_u32 s{sT+3}, s{sT+3}, s{sT+4}
    s_cmp_lt_u32 s{sT+3}, 9
    s_mov_b32 s{sT+5}, 0xbfb8aa3b
    s_cselect_b32 s{sT+5}, 0xc038aa3b, s{sT+5}
    s_cselect_b32 s{sT+6}, 2.0, 1.0
    s_cselect_b32 s{sT+7}, -1.0, 0
    v_mov_b32 v12, s{sT+7}
    s_mul_i32 s48, s{sMT}, {9*2*18*512}
    s_mul_i32 s49, s{sT}, {18*512}
    s_add_u32 s48, s48, s49
    s_lshl_b32 s49, s{sT+3}, 9
    s_add_u32 s48, s48, s49
    v_lshlrev_b32 v9, 3, v0
    v_add_u32 v9, s48, v9
    s_waitcnt lgkmcnt(0)
    """)
    for T in range(9):
        for r in range(4):
            k = 4 * T + r
            a(f"v_add_f32 v{Y_+k}, v{Y_+k}, v{M_+k}")
            a(f"v_mul_f32 v{Y_+k}, s{sT+5}, v{Y_+k}")
        for r in range(4):
            a(f"v_exp_f32 v{Y_+4*T+r}, v{Y_+4*T+r}")
        for r in range(4):
            a(f"v_add_f32 v{Y_+4*T+r}, 1.0, v{Y_+4*T+r}")
        for r in range(4):
            a(f"v_rcp_f32 v{Y_+4*T+r}, v{Y_+4*T+r}")
        a("s_nop 0")
        for r in range(4):
            a(f"v_fma_f32 v{Y_+4*T+r}, v{Y_+4*T+r}, s{sT+6}, v12")
        a(f"v_cvt_pk_bf16_f32 v{Z_+2*T}, v{Y_+4*T}, v{Y_+4*T+1}")
        a(f"v_cvt_pk_bf16_f32 v{Z_+2*T+1}, v{Y_+4*T+2}, v{Y_+4*T+3}")
        a(f"s_mov_b32 s49, {T*2*18*512}")
        a(f"buffer_store_dwordx2 v[{Z_+2*T}:{Z_+2*T+1}], v9, s[28:31], s49 offen")
    a("s_waitcnt vmcnt(0)\ns_endpgm")

def gen_helper_waves(a, opt):
    a(f"s_sub_u32 s{sT}, s{sWV}, 4")
    emit_wdma_pattern(a, 16, 17)
    sJ, sCw, sSl = 76, 77, 78
    def wdma(chunk_s, slot_s):
        a(f"""
        s_mul_i32 s{sT+1}, s{sT}, {4*165888}
        s_mul_i32 s{sT+2}, {chunk_s}, 9216
        s_add_u32 s{sT+1}, s{sT+1}, s{sT+2}
        s_lshl_b32 s{sT+2}, s{sT}, 12
        s_add_u32 s{sT+2}, s{sT+2}, {slot_s}
        s_add_u32 s{sT+2}, s{sT+2}, {LDS_W}
        """)
        for i in range(4):
            a(f"s_add_u32 m0, s{sT+2}, {i*1024}")
            a(f"s_add_u32 s{sT+3}, s{sT+1}, {i*165888}")
            a(f"buffer_load_dwordx4 v16, s[20:23], s{sT+3} offen lds")
    a(f"s_mov_b32 s{sCw}, s{sC}\ns_mov_b32 s{sSl}, 0")
    wdma(f"s{sCw}", f"s{sSl}")
    next_chunk(a, sCw); a(f"s_mov_b32 s{sSl}, {WSLOT}")
    wdma(f"s{sCw}", f"s{sSl}")
    next_chunk(a, sCw); a(f"s_mov_b32 s{sSl}, {2*WSLOT}")
    a(f"""
    s_mul_i32 s{sT+1}, s{sT}, 44
    v_lshrrev_b32 v18, 1, v0
    v_add_u32 v18, s{sT+1}, v18
    v_mul_u32_u24 v18, 288, v18
    v_and_b32 v19, 1, v0
    v_lshlrev_b32 v19, 4, v19
    v_add_u32 v18, v18, v19
    s_mul_i32 s{sT+1}, s{sT}, {44*32}
    s_add_u32 s{sT+1}, s{sT+1}, {LDS_S}
    v_lshlrev_b32 v19, 4, v0
    v_add_u32 v19, s{sT+1}, v19
    """)
    sCs, sSs = 79, 80
    def sprod():
        a(f"""
        s_lshl_b32 s{sT+1}, s{sCs}, 5
        v_add_u32 v20, s{sT+1}, v18
        v_add_u32 v21, s{sSs}, v19
        ds_read_b128 v[24:27], v20
        ds_read_b128 v[28:31], v20 offset:{XARR}
        s_mov_b64 exec, 0xffffff
        ds_read_b128 v[32:35], v20 offset:9216
        ds_read_b128 v[36:39], v20 offset:{XARR+9216}
        s_mov_b64 exec, -1
        s_waitcnt lgkmcnt(2)
        """)
        for r in range(4):
            emit_bf16_op(a, "v_add_f32", 40 + r, 24 + r, 28 + r, 48)
        a("ds_write_b128 v21, v[40:43]")
        a("s_mov_b64 exec, 0xffffff\ns_waitcnt lgkmcnt(1)")
        for r in range(4):
            emit_bf16_op(a, "v_add_f32", 44 + r, 32 + r, 36 + r, 48)
        a("ds_write_b128 v21, v[44:47] offset:1024")
        a("s_mov_b64 exec, -1")
    a(f"s_mov_b32 s{sCs}, s{sC}\ns_mov_b32 s{sSs}, 0")
    a("s_waitcnt vmcnt(8)\ns_barrier")
    sprod()
    a("s_waitcnt vmcnt(4) lgkmcnt(0)\ns_barrier")
    a(f"s_mov_b32 s{sIt}, 0")
    a("L_H:")
    a(f"s_cmp_ge_u32 s{sIt}, 7\ns_cbranch_scc1 L_H_nodma")
    wdma(f"s{sCw}", f"s{sSl}")
    next_chunk(a, sCw)
    a(f"s_add_u32 s{sSl}, s{sSl}, {WSLOT}\ns_cmp_eq_u32 s{sSl}, {3*WSLOT}\ns_cselect_b32 s{sSl}, 0, s{sSl}")
    next_chunk(a, sCs)
    a(f"s_xor_b32 s{sSs}, s{sSs}, {SSLOT}")
    sprod()
    a("s_waitcnt vmcnt(4) lgkmcnt(0)\ns_barrier\ns_branch L_H_next")
    a("L_H_nodma:")
    next_chunk(a, sCs)
    a(f"s_xor_b32 s{sSs}, s{sSs}, {SSLOT}")
    sprod()
    a("s_waitcnt vmcnt(0) lgkmcnt(0)\ns_barrier")
    a("L_H_next:")
    a(f"s_add_u32 s{sIt}, s{sIt}, 1\ns_cmp_lt_u32 s{sIt}, 8\ns_cbranch_scc1 L_H")
    a("s_barrier")
    a("s_endpgm")

def gen_out(a):
    kernel_header(a, K_OUT)
    LZ = 41984
    a("s_cmp_ge_u32 s2, 252\ns_cbranch_scc1 O_end")
    a("s_load_dwordx4 s[8:11], s[0:1], 16\ns_load_dwordx2 s[14:15], s[0:1], 40")
    emit_map(a)
    emit_waveid(a)
    a("s_waitcnt lgkmcnt(0)")
    emit_srd(a, 16, 8, 9, 144*288)
    a(f"s_mul_i32 s48, s{sB}, {XB_SIZE}\ns_add_u32 s10, s10, s48\ns_addc_u32 s11, s11, 0")
    emit_srd(a, 20, 10, 11, XB_SIZE)
    a(f"s_add_u32 s14, s14, {E_OFF}\ns_addc_u32 s15, s15, 0")
    emit_srd(a, 28, 14, 15, E_SIZE)
    a("v_lshlrev_b32 v1, 4, v0")
    a(f"s_mov_b32 s50, s{sWV}")
    a("O_wl:")
    a("s_lshl_b32 s51, s50, 10\ns_mov_b32 m0, s51\ns_nop 0")
    a("buffer_load_dwordx4 v1, s[16:19], s51 offen lds")
    a("s_add_u32 s50, s50, 4\ns_cmp_lt_u32 s50, 41\ns_cbranch_scc1 O_wl")
    a(f"""
    s_mul_i32 s52, s{sMT}, {9*2*18*512}
    s_mul_i32 s53, s{sNG}, {2*18*512}
    s_add_u32 s52, s52, s53
    v_lshlrev_b32 v2, 3, v0
    v_add_u32 v2, s52, v2
    """)
    for i in range(5):
        a(f"s_add_u32 s54, s{sWV}, {4*i}")
        if i == 4: a("s_cmp_ge_u32 s54, 18\ns_cbranch_scc1 O_ld_done")
        a("""
        s_cmp_ge_u32 s54, 9
        s_cselect_b32 s55, 9, 0
        s_add_u32 s55, s55, s54
        s_lshl_b32 s55, s55, 9
        """)
        a(f"buffer_load_dwordx2 v[{16+4*i}:{17+4*i}], v2, s[28:31], s55 offen")
        a("s_add_u32 s55, s55, 4608")
        a(f"buffer_load_dwordx2 v[{18+4*i}:{19+4*i}], v2, s[28:31], s55 offen")
    a("O_ld_done:")
    a("s_waitcnt vmcnt(0)")
    a("v_lshlrev_b32 v3, 4, v0")
    for i in range(5):
        a(f"s_add_u32 s54, s{sWV}, {4*i}")
        if i == 4: a("s_cmp_ge_u32 s54, 18\ns_cbranch_scc1 O_z_done")
        for r in range(2):
            f, g, t = 16 + 4*i + r, 18 + 4*i + r, 40
            a(f"v_lshlrev_b32 v{t}, 16, v{f}\nv_lshlrev_b32 v{t+1}, 16, v{g}")
            a(f"v_and_b32 v{t+2}, 0xffff0000, v{f}\nv_and_b32 v{t+3}, 0xffff0000, v{g}")
            a(f"v_mul_f32 v{t}, v{t}, v{t+1}\nv_mul_f32 v{t+2}, v{t+2}, v{t+3}")
            a(f"v_cvt_pk_bf16_f32 v{44+r}, v{t}, v{t+2}")
        a(f"""
        s_cmp_ge_u32 s54, 9
        s_cselect_b32 s55, 9, 0
        s_cselect_b32 s56, 5, 0
        s_sub_u32 s55, s54, s55
        s_lshr_b32 s57, s55, 1
        s_add_u32 s56, s56, s57
        s_lshl_b32 s56, s56, 10
        s_and_b32 s55, s55, 1
        s_lshl_b32 s55, s55, 3
        s_add_u32 s56, s56, s55
        s_add_u32 s56, s56, {LZ}
        v_add_u32 v4, s56, v3
        ds_write_b64 v4, v[44:45]
        """)
    a("O_z_done:")
    a("s_waitcnt lgkmcnt(0)\ns_barrier")
    a("""
    v_lshrrev_b32 v5, 2, v0
    v_mul_u32_u24 v5, 288, v5
    v_and_b32 v6, 3, v0
    v_lshlrev_b32 v6, 3, v6
    v_add_u32 v5, v5, v6
    """)
    a(f"""
    v_and_b32 v7, 15, v0
    v_lshrrev_b32 v8, 1, v7
    v_lshlrev_b32 v8, 2, v8
    v_and_b32 v7, 1, v7
    v_add_u32 v7, v7, v8
    s_mul_i32 s58, s{sMTL}, 288
    s_lshl_b32 s59, s{sNG}, 5
    s_add_u32 s58, s58, s59
    v_add_u32 v7, s58, v7
    v_mul_u32_u24 v7, 288, v7
    v_lshrrev_b32 v8, 4, v0
    v_lshlrev_b32 v8, 3, v8
    v_add_u32 v7, v7, v8
    """)
    for i in range(5):
        a(f"s_add_u32 s54, s{sWV}, {4*i}")
        if i == 4: a("s_cmp_ge_u32 s54, 18\ns_cbranch_scc1 O_end")
        a(f"""
        s_cmp_ge_u32 s54, 9
        s_cselect_b32 s55, 9, 0
        s_cselect_b32 s56, {5*1024}, 0
        s_cselect_b32 s60, 576, 0
        s_sub_u32 s55, s54, s55
        s_lshl_b32 s57, s55, 5
        v_add_u32 v9, s57, v5
        s_add_u32 s56, s56, {LZ}
        v_add_u32 v10, s56, v3
        s_add_u32 s60, s60, s57
        """)
        for P in range(4):
            a(f"ds_read_b64_tr_b16 v[{16+4*P}:{17+4*P}], v9 offset:{32*P*288}")
            a(f"ds_read_b64_tr_b16 v[{18+4*P}:{19+4*P}], v9 offset:{(32*P+16)*288}")
            a(f"ds_read_b128 v[{40+4*P}:{43+4*P}], v10 offset:{P*1024}")
        a(f"ds_read_b64_tr_b16 v[32:33], v9 offset:{128*288}")
        a("ds_read_b64 v[56:57], v10 offset:4096")
        a("s_waitcnt lgkmcnt(0)")
        a("v_mfma_f32_16x16x32_bf16 v[60:63], v[16:19], v[40:43], 0")
        for P in range(1, 4):
            a(f"v_mfma_f32_16x16x32_bf16 v[60:63], v[{16+4*P}:{19+4*P}], v[{40+4*P}:{43+4*P}], v[60:63]")
        a("s_nop 7\ns_nop 1")
        a("v_mfma_f32_16x16x16_bf16 v[60:63], v[32:33], v[56:57], v[60:63]")
        a("s_nop 7\ns_nop 3")
        a("v_cvt_pk_bf16_f32 v64, v60, v61\nv_cvt_pk_bf16_f32 v65, v62, v63")
        a("buffer_store_dwordx2 v[64:65], v7, s[20:23], s60 offen")
        a("s_nop 1")
    a("O_end:\ns_waitcnt vmcnt(0)\ns_endpgm")

def main():
    opt = {}
    a = Asm()
    a(f"; @launch kernel={K_PRE} grid=(252,1,1) block=(256,1,1) lds=15360")
    a(f"; @launch kernel={K_MAIN} grid=(252,1,1) block=(512,1,1) lds={LDS_MAIN}")
    a(f"; @launch kernel={K_OUT} grid=(252,1,1) block=(256,1,1) lds=53248")
    a('.amdgcn_target "amdgcn-amd-amdhsa--gfx950"')
    a(".text")
    for k in (K_PRE, K_MAIN, K_OUT): a(f".globl {k}")
    gen_pre(a); gen_main(a, opt); gen_out(a)
    a('.section .rodata,"a"')
    for k, v in ((K_PRE, 64), (K_MAIN, 256), (K_OUT, 72)):
        a(".p2align 6")
        kernel_desc(a, k, v)
    sys.stdout.write(a.text())
main()
```

```python
import sys
from asmlib import *

OPT = set(sys.argv[1].split(",")) if len(sys.argv) > 1 else set()
STAMP = "stamp" in OPT
NAME = "standalone__autoregressive_conv_wavenet__speech_kernel"

XARR = 176 * 288
LDS_X0, LDS_X1 = 0, XARR
LDS_W = 2 * XARR
WSLOT = 16384
LDS_S = LDS_W + 3 * WSLOT
SSLOT = 176 * 32
LDS_TOTAL = 163840
LDS_Y0 = LDS_W
LDS_Y1 = LDS_W + 36864
LDS_Z = LDS_W + 57344
GF_PROD = 9 * 72 * 2048
GF_SIZE = 2 * GF_PROD
E_OFF = 0x400000
E_SIZE = 28 * 9 * 2 * 18 * 512
FL_OFF = 0x900000
FL_SIZE = 256 * 128
W_SIZE = 31 * 144 * 288 * 2
XB_SIZE = 4000 * 288
STAMP_OFF = 0x1000000
SPIN_MAX = 200000

sX, sW, sG, sE, sO, sWo, sD, sF = 16, 20, 24, 28, 32, 36, 84, 88
sNG, sMT, sMTL, sB, sC0, sWV = 42, 43, 44, 45, 46, 47
sIt = 63
sT = 68
sNonce = 80
sSpin = 81
ST0 = 92

def srd(a, d, lo, hi, size):
    a(f"s_mov_b32 s{d}, s{lo}\ns_and_b32 s{d+1}, s{hi}, 0xffff\ns_mov_b32 s{d+2}, {size}\ns_mov_b32 s{d+3}, 0x20000")

def stamp(a, idx):
    if not STAMP: return
    a(f"s_memtime s[{ST0}:{ST0+1}]\ns_memrealtime s[{ST0+2}:{ST0+3}]\ns_waitcnt lgkmcnt(0)")
    a(f"v_writelane_b32 v253, s{ST0}, {2*idx}\nv_writelane_b32 v253, s{ST0+2}, {2*idx+1}")
def stamp_flush(a):
    if not STAMP: return
    a(f"""
    s_mov_b32 s{ST0}, s14
    s_and_b32 s{ST0+1}, s15, 0xffff
    s_mov_b32 s{ST0+2}, 0x2000000
    s_mov_b32 s{ST0+3}, 0x20000
    s_lshl_b32 s48, s2, 3
    s_add_u32 s48, s48, s{sWV}
    s_lshl_b32 s48, s48, 7
    s_add_u32 s48, s48, {STAMP_OFF}
    v_lshlrev_b32 v252, 2, v0
    v_add_u32 v252, s48, v252
    s_mov_b64 exec, 0xffffffff
    buffer_store_dword v253, v252, s[{ST0}:{ST0+3}], 0 offen
    s_waitcnt vmcnt(0)
    s_mov_b64 exec, -1
    """)

def bf16_op(a, op, dst, xa, xb, t):
    a(f"v_lshlrev_b32 v{t}, 16, v{xa}")
    a(f"v_lshlrev_b32 v{t+1}, 16, v{xb}")
    a(f"v_and_b32 v{t+2}, 0xffff0000, v{xa}")
    a(f"v_and_b32 v{t+3}, 0xffff0000, v{xb}")
    a(f"{op} v{t}, v{t}, v{t+1}")
    a(f"{op} v{t+2}, v{t+2}, v{t+3}")
    a(f"v_cvt_pk_bf16_f32 v{dst}, v{t}, v{t+2}")

def next_mod(a, s, n):
    a(f"s_add_u32 s{s}, s{s}, 1\ns_cmp_eq_u32 s{s}, {n}\ns_cselect_b32 s{s}, 0, s{s}")

def tr_lane(a, vd, vt, vt2):
    a(f"""
    v_lshrrev_b32 v{vd}, 5, v0
    v_lshlrev_b32 v{vd}, 10, v{vd}
    v_bfe_u32 v{vt}, v0, 4, 1
    v_mul_u32_u24 v{vt}, 544, v{vt}
    v_add_u32 v{vd}, v{vd}, v{vt}
    v_bfe_u32 v{vt}, v0, 2, 2
    v_lshlrev_b32 v{vt}, 6, v{vt}
    v_add_u32 v{vd}, v{vd}, v{vt}
    v_and_b32 v{vt}, 3, v0
    v_lshlrev_b32 v{vt}, 3, v{vt}
    v_add_u32 v{vd}, v{vd}, v{vt}
    """)

def activation(a, regs, sA, sS1, vS0, dst):
    for r in regs: a(f"v_mul_f32 v{r}, s{sA}, v{r}")
    for r in regs: a(f"v_exp_f32 v{r}, v{r}")
    for r in regs: a(f"v_add_f32 v{r}, 1.0, v{r}")
    for r in regs: a(f"v_rcp_f32 v{r}, v{r}")
    a("s_nop 0")
    for r in regs: a(f"v_fma_f32 v{r}, v{r}, s{sS1}, v{vS0}")
    for k in range(len(regs) // 2):
        a(f"v_cvt_pk_bf16_f32 v{dst+k}, v{regs[2*k]}, v{regs[2*k+1]}")
    for k in range(len(regs) // 2):
        a(f"v_min_u32 v{dst+k}, 0xfffffffe, v{dst+k}")

def act_consts(a, nh_s, sA, sS1, vS0):
    a(f"""
    s_lshl_b32 s48, s{sNG}, 1
    s_add_u32 s48, s48, {nh_s}
    s_cmp_lt_u32 s48, 9
    s_mov_b32 s{sA}, 0xbfb8aa3b
    s_cselect_b32 s{sA}, 0xc038aa3b, s{sA}
    s_cselect_b32 s{sS1}, 2.0, 1.0
    s_cselect_b32 s49, -1.0, 0
    v_mov_b32 v{vS0}, s49
    """)

def z_mul(a, dst, f, g, t):
    bf16_op(a, "v_mul_f32", dst, f, g, t)

def gen():
    a = Asm()
    a(f"; @launch grid=(252,1,1) block=(512,1,1) lds={LDS_TOTAL}")
    a('.amdgcn_target "amdgcn-amd-amdhsa--gfx950"')
    a(".text")
    a(f".globl {NAME}")
    kernel_header(a, NAME)
    a("s_cmp_ge_u32 s2, 252\ns_cbranch_scc1 L_end")
    a("""
    s_load_dwordx4 s[4:7], s[0:1], 0
    s_load_dwordx4 s[8:11], s[0:1], 16
    s_load_dwordx4 s[12:15], s[0:1], 32
    s_getpc_b64 s[40:41]
    L_pc:
    v_lshlrev_b32 v1, 7, v0
    v_min_u32 v1, L_code_end-L_pc-4, v1
    global_load_dword v2, v1, s[40:41]
    """)
    if STAMP: a("v_mov_b32 v253, 0")
    stamp(a, 0)
    a(f"""
    v_lshrrev_b32 v1, 6, v0
    v_and_b32 v0, 63, v0
    v_readfirstlane_b32 s{sWV}, v1
    s_and_b32 s48, s2, 7
    s_lshr_b32 s49, s2, 3
    s_and_b32 s50, s48, 3
    s_lshr_b32 s48, s48, 2
    s_lshl_b32 s48, s48, 5
    s_add_u32 s48, s48, s49
    s_mul_i32 s{sNG}, s48, 9363
    s_lshr_b32 s{sNG}, s{sNG}, 16
    s_mul_i32 s49, s{sNG}, 7
    s_sub_u32 s51, s48, s49
    s_mul_i32 s{sMT}, s50, 7
    s_add_u32 s{sMT}, s{sMT}, s51
    s_lshr_b32 s{sB}, s50, 1
    s_and_b32 s50, s50, 1
    s_mul_i32 s50, s50, 7
    s_add_u32 s{sMTL}, s50, s51
    s_mul_i32 s52, s{sMT}, 7282
    s_lshr_b32 s52, s52, 16
    s_mul_i32 s49, s52, 9
    s_sub_u32 s{sC0}, s{sMT}, s49
    """)
    a(f"""
    s_cmp_eq_u32 s{sC0}, 0
    s_cselect_b32 s55, 2, 3
    s_mul_i32 s53, s52, s55
    s_sub_u32 s54, 8, s53
    s_min_u32 s54, s54, s55
    """)
    a(f"""
    v_lshrrev_b32 v3, 2, v0
    v_mul_u32_u24 v3, 576, v3
    v_lshrrev_b32 v4, 5, v0
    v_lshlrev_b32 v4, 1, v4
    v_xor_b32 v4, v4, v0
    v_and_b32 v4, 3, v4
    v_lshlrev_b32 v4, 4, v4
    s_lshl_b32 s48, s{sNG}, 6
    v_add3_u32 v3, v3, v4, s48
    """)
    def xpat(vd, rs):
        a(f"""
        v_add_u32 v{vd}, {rs}, v0
        v_mul_u32_u24 v10, 3641, v{vd}
        v_lshrrev_b32 v10, 16, v10
        v_mul_u32_u24 v11, 18, v10
        v_sub_u32 v{vd}, v{vd}, v11
        v_lshlrev_b32 v{vd}, 4, v{vd}
        v_lshrrev_b32 v11, 1, v10
        v_mul_u32_u24 v11, 1152, v11
        v_and_b32 v10, 1, v10
        v_mul_u32_u24 v10, 288, v10
        v_add3_u32 v{vd}, v{vd}, v11, v10
        """)
    a(f"s_lshl_b32 s48, s{sWV}, 6")
    xpat(12, "s48")
    xpat(13, "512")
    a("s_waitcnt lgkmcnt(0)")
    a(f"s_mul_i32 s48, s{sB}, {XB_SIZE}\ns_add_u32 s4, s4, s48\ns_addc_u32 s5, s5, 0")
    srd(a, sX, 4, 5, XB_SIZE)
    srd(a, sW, 6, 7, W_SIZE)
    srd(a, sD, 12, 13, 256)
    a(f"""
    s_lshl_b32 s48, s2, 3
    s_add_u32 s48, s48, s{sWV}
    s_cmp_lg_u32 s48, 4
    s_cbranch_scc1 L_nononce
    s_memrealtime s[56:57]
    s_waitcnt lgkmcnt(0)
    s_or_b32 s56, s56, 1
    v_mov_b32 v4, s56
    v_mov_b32 v5, 0
    s_mov_b64 exec, 1
    buffer_store_dword v4, v5, s[{sD}:{sD+3}], 0 offen sc1
    s_mov_b64 exec, -1
    L_nononce:
    """)
    a(f"s_mul_i32 s57, s{sC0}, 9216")
    for i in range(2):
        a(f"""
        s_add_u32 s58, s{sWV}, {8*i}
        s_lshl_b32 s59, s58, 10
        s_add_u32 m0, s59, {LDS_W}
        s_mul_i32 s59, s58, 165888
        s_add_u32 s59, s59, s57
        buffer_load_dwordx4 v3, s[{sW}:{sW+3}], s59 offen lds
        """)
    a(f"""
    s_lshl_b32 s58, s54, 1
    s_cmp_gt_u32 s{sWV}, s58
    s_cbranch_scc1 L_noodd
    s_lshl_b32 s59, s{sWV}, 10
    s_add_u32 m0, s59, {LDS_W + 2*WSLOT}
    s_lshl_b32 s58, s53, 1
    s_add_u32 s58, s58, s{sWV}
    s_mul_i32 s59, s58, 165888
    s_add_u32 s59, s59, s57
    s_sub_u32 s59, s59, 82944
    s_cmp_eq_u32 s58, 0
    s_cselect_b32 s59, 0, s59
    s_cselect_b32 s58, 0x7fff0000, 0
    v_or_b32 v4, s58, v3
    buffer_load_dwordx4 v4, s[{sW}:{sW+3}], s59 offen lds
    L_noodd:
    """)
    a(f"""
    s_cmp_eq_u32 s{sMTL}, 0
    s_cselect_b32 s48, 0x7fff0000, 0
    v_or_b32 v14, s48, v12
    v_or_b32 v15, s48, v13
    s_mul_i32 s49, s{sMTL}, {288*288}
    s_sub_i32 s49, s49, {64*288}
    s_cmp_ge_u32 s{sNG}, 5
    s_cselect_b32 s50, 5, 0
    s_sub_u32 s50, s{sNG}, s50
    s_mov_b32 s51, 0
    L_xl:
    s_mul_i32 s58, s50, 9216
    s_mul_i32 s59, s50, 18432
    s_add_i32 s59, s59, s49
    s_max_i32 s59, s59, 0
    s_cmp_eq_u32 s50, 0
    s_cselect_b64 vcc, -1, 0
    v_cndmask_b32 v10, v12, v14, vcc
    v_cndmask_b32 v11, v13, v15, vcc
    s_cmp_lt_u32 s50, 5
    s_cbranch_scc1 L_xfull
    s_cmp_gt_u32 s{sWV}, 4
    s_cbranch_scc1 L_xnext
    s_cmp_eq_u32 s{sWV}, 4
    s_cselect_b32 s60, 0, -1
    s_mov_b32 exec_hi, s60
    L_xfull:
    s_lshl_b32 s60, s{sWV}, 10
    s_add_u32 s60, s60, s58
    s_mov_b32 m0, s60
    s_add_u32 s61, s59, 576
    buffer_load_dwordx4 v10, s[{sX}:{sX+3}], s59 offen lds
    s_add_u32 m0, s60, {XARR}
    s_nop 0
    buffer_load_dwordx4 v10, s[{sX}:{sX+3}], s61 offen lds
    s_mov_b64 exec, -1
    s_add_u32 s60, s50, 3
    s_cmp_lg_u32 s60, s{sWV}
    s_cbranch_scc1 L_xnext
    s_cmp_eq_u32 s50, 5
    s_cbranch_scc1 L_xnext
    s_add_u32 m0, s58, 8192
    s_nop 0
    buffer_load_dwordx4 v11, s[{sX}:{sX+3}], s59 offen lds
    s_add_u32 m0, s58, {XARR + 8192}
    s_nop 0
    buffer_load_dwordx4 v11, s[{sX}:{sX+3}], s61 offen lds
    L_xnext:
    s_add_u32 s50, s50, 1
    s_cmp_eq_u32 s50, 6
    s_cselect_b32 s50, 0, s50
    s_add_u32 s51, s51, 1
    s_cmp_lt_u32 s51, 6
    s_cbranch_scc1 L_xl
    """)
    srd(a, sG, 14, 15, GF_SIZE)
    a(f"s_add_u32 s48, s14, {E_OFF}\ns_addc_u32 s49, s15, 0")
    srd(a, sE, 48, 49, E_SIZE)
    a(f"s_cmp_ge_u32 s{sWV}, 4\ns_cbranch_scc1 L_helper")
    gen_mfma(a)
    a("L_helper:")
    gen_helper(a)
    a("L_end:\ns_endpgm\nL_code_end:")
    a('.section .rodata,"a"')
    a(".p2align 6")
    kernel_desc(a, NAME, 256)
    return a.text()

M_, Y_ = 16, 52
XA, XB = 88, 128
GR = 168
WA, WB = GR + 32, GR + 40
vS, vX, vW, vG, vXb, vSb, vWb = 2, 3, 4, 5, 6, 7, 8
sSlotW, sSlotS = 61, 62
sGc, sGp, sGo0, sGo1 = 64, 65, 66, 67

class Sched:
    def __init__(self, a):
        self.a = a; self.lds = []; self.vm = []
    def lds_issue(self, tag): self.lds.append(tag)
    def vm_issue(self, tag): self.vm.append(tag)
    def need(self, ltags=(), vtags=()):
        parts = []
        li = max((i for i, t in enumerate(self.lds) if t in ltags), default=-1)
        if li >= 0:
            n = min(len(self.lds) - 1 - li, 15)
            parts.append(f"lgkmcnt({n})")
            self.lds = self.lds[len(self.lds) - n:] if n > 0 else []
        vi = max((i for i, t in enumerate(self.vm) if t in vtags), default=-1)
        if vi >= 0:
            n = len(self.vm) - 1 - vi
            parts.append(f"vmcnt({n})")
            self.vm = self.vm[len(self.vm) - n:] if n > 0 else []
        if parts:
            self.a("s_waitcnt " + " ".join(parts))

def sp_order():
    r = []
    for i in range(10):
        if i >= 1: r.append((0, i - 1, i))
        if i <= 8: r.append((1, i, i))
    return r

def emit_sp(a, sc, acc, xset, wfrag, wtags, xp, fillers, pre=None, lookahead=4):
    order = sp_order()
    for n, (s, T, i) in enumerate(order):
        if pre is not None:
            for f in pre[n]: f()
        pend_l = set(sc.lds); pend_v = set(sc.vm)
        now_l = ({f"{xp}{i}"} | set(wtags[s][0])) & pend_l
        now_v = set(wtags[s][1]) & pend_v
        if now_l or now_v:
            lt = set()
            for (s2, T2, i2) in order[n:n + lookahead]:
                lt |= {f"{xp}{i2}"} | set(wtags[s2][0])
            lt &= pend_l
            sc.need(lt if now_l else (), now_v)
        d = acc + 4 * T
        a(f"v_mfma_f32_16x16x32_bf16 v[{d}:{d+3}], v[{wfrag[s]}:{wfrag[s]+3}], v[{xset+4*i}:{xset+4*i+3}], v[{d}:{d+3}]")
        for f in fillers[n]: f()

def place(items, start, step=1, ngaps=18):
    g = [[] for _ in range(ngaps)]
    for k, it in enumerate(items):
        g[start + k * step].append(it)
    return g
def merge(*gs):
    return [sum((g[n] for g in gs), []) for n in range(len(gs[0]))]

def gen_mfma(a):
    ins = lambda t: (lambda: a(t))
    a("s_setprio 3")
    a(f"s_lshr_b32 s{sT}, s{sWV}, 1\ns_and_b32 s{sT+1}, s{sWV}, 1")
    a(f"""
    v_and_b32 v9, 15, v0
    v_lshrrev_b32 v10, 5, v0
    v_lshlrev_b32 v10, 1, v10
    v_sub_u32 v9, v9, v10
    s_lshl_b32 s{sT+2}, s{sT}, 3
    s_sub_u32 s{sT+2}, 12, s{sT+2}
    v_add_u32 v9, s{sT+2}, v9
    v_bfe_u32 v10, v0, 4, 1
    v_lshlrev_b32 v10, 4, v10
    v_lshlrev_b32 v{vSb}, 5, v9
    v_add_u32 v{vSb}, v{vSb}, v10
    v_add_u32 v{vSb}, {LDS_S}, v{vSb}
    v_mul_u32_u24 v{vXb}, 288, v9
    v_add_u32 v{vXb}, v{vXb}, v10
    """)
    tr_lane(a, vWb, 9, 10)
    a(f"""
    s_lshl_b32 s{sT+2}, s{sT+1}, 5
    v_xor_b32 v{vWb}, s{sT+2}, v{vWb}
    s_lshl_b32 s{sT+2}, s{sT}, 12
    s_add_u32 s{sT+2}, s{sT+2}, {LDS_W}
    v_add_u32 v{vWb}, s{sT+2}, v{vWb}
    s_mul_i32 s{sT+2}, s{sNG}, 147456
    s_lshl_b32 s{sT+3}, s{sT}, 13
    s_add_u32 s{sT+2}, s{sT+2}, s{sT+3}
    s_lshl_b32 s{sT+3}, s{sT+1}, 10
    s_add_u32 s{sT+2}, s{sT+2}, s{sT+3}
    v_lshlrev_b32 v{vG}, 4, v0
    v_add_u32 v{vG}, s{sT+2}, v{vG}
    """)
    for r in range(M_, Y_ + 36):
        a(f"v_mov_b32 v{r}, 0")
    a(f"""
    s_mov_b32 s{sSlotW}, 0
    s_mov_b32 s{sSlotS}, 0
    s_mov_b32 s{sIt}, 0
    s_mov_b32 s{sGc}, s{sC0}
    s_mov_b32 s{sGp}, 0
    v_mov_b32 v{vS}, v{vSb}
    v_mov_b32 v{vW}, v{vWb}
    """)
    stamp(a, 1)
    a("s_waitcnt vmcnt(12)\ns_barrier")
    a("s_waitcnt vmcnt(0)\ns_barrier")
    stamp(a, 2)
    a("s_barrier")
    stamp(a, 3)
    sc = Sched(a)
    def rd_x(xset, i, vaddr, imm, tag):
        def f():
            a(f"ds_read_b128 v[{xset+4*i}:{xset+4*i+3}], v{vaddr} offset:{imm}")
            sc.lds_issue(tag)
        return f
    def rd_w(reg, h, imm, tag):
        def f():
            a(f"ds_read_b64_tr_b16 v[{reg+2*h}:{reg+2*h+1}], v{vW} offset:{imm}")
            sc.lds_issue(tag)
        return f
    def a_reads(sp, xset, wreg, p):
        w = lambda s: [rd_w(wreg + 4 * s, h, (2 * sp + 8 * s) * 1024 + h * 256, f"{p}w{s}") for h in range(2)]
        x = lambda i: rd_x(xset, i, vS, 512 * i + 128 * (1 - sp), f"{p}x{i}")
        return w(1) + [x(0)] + w(0) + [x(i) for i in range(1, 10)]
    def b_reads(sp, xset, p):
        return [rd_x(xset, i, vX, 4608 * i + 1152 * (1 - sp), f"{p}x{i}") for i in range(10)]
    def gload(setidx, sp, s):
        reg = GR + 16 * setidx + 8 * sp + 4 * s
        so = sGo0 if sp == 0 else sGo1
        def f():
            a(f"buffer_load_dwordx4 v[{reg}:{reg+3}], v{vG}, s[{sG}:{sG+3}], s{so} offen offset:{s*2048} sc1")
            sc.vm_issue(f"g{setidx}_{sp}_{s}")
        return f
    def g_advance():
        return [ins(f"s_cmp_ge_u32 s{sGp}, 9\ns_cselect_b32 s{sGo0}, {GF_PROD}, 0"),
                ins(f"s_lshl_b32 s{sGo1}, s{sGc}, 14\ns_add_u32 s{sGo0}, s{sGo0}, s{sGo1}"),
                ins(f"s_add_u32 s{sGo1}, s{sGo0}, 4096\ns_add_u32 s{sGp}, s{sGp}, 1"),
                ins(f"s_add_u32 s{sGc}, s{sGc}, 1\ns_cmp_eq_u32 s{sGc}, 9"),
                ins(f"s_cselect_b32 s{sGc}, 0, s{sGc}")]
    def barrier_drain():
        sc.need(set(sc.lds), ())
        a("s_barrier")

    for f in a_reads(0, XA, WA, "A"): f()

    def phase_a_iter(last, gset):
        fill = place(a_reads(1, XB, WB, "B"), 0)
        if gset is not None:
            fill = merge(fill, place(g_advance(), 13))
        emit_sp(a, sc, M_, XA, (WA, WA + 4), ((["Aw0"], []), (["Aw1"], [])), "Ax", fill)
        if not last:
            upd = [ins(f"s_add_u32 s{sSlotW}, s{sSlotW}, {WSLOT}\ns_cmp_eq_u32 s{sSlotW}, {3*WSLOT}"),
                   ins(f"s_cselect_b32 s{sSlotW}, 0, s{sSlotW}\ns_xor_b32 s{sSlotS}, s{sSlotS}, {SSLOT}"),
                   ins(f"v_add_u32 v{vW}, s{sSlotW}, v{vWb}\nv_add_u32 v{vS}, s{sSlotS}, v{vSb}")]
            fill = merge(place(upd + [barrier_drain], 0), place(a_reads(0, XA, WA, "A"), 4))
        else:
            upd = [ins(f"s_lshl_b32 s{sT}, s{sC0}, 5\ns_add_u32 s{sT}, s{sT}, {LDS_X1}"),
                   ins(f"v_add_u32 v{vX}, s{sT}, v{vXb}"), ins("s_nop 0"), barrier_drain]
            fill = merge(place(upd, 0), place(b_reads(0, XA, "A"), 4))
        if gset is not None:
            fill = merge(fill, place([gload(gset, 0, 0), gload(gset, 0, 1), gload(gset, 1, 0), gload(gset, 1, 1)], 14))
        emit_sp(a, sc, M_, XB, (WB, WB + 4), ((["Bw0"], []), (["Bw1"], [])), "Bx", fill)

    a("L_A:")
    st = list(sc.lds)
    phase_a_iter(False, None)
    assert sc.lds == st
    a(f"s_add_u32 s{sIt}, s{sIt}, 1\ns_cmp_lt_u32 s{sIt}, 7\ns_cbranch_scc1 L_A")
    phase_a_iter(False, 0)
    phase_a_iter(True, 1)
    stamp(a, 4)

    a(f"s_mov_b32 s{sIt}, s{sC0}")
    sTrip = sT + 4
    def b_chunk(acc, u, arr_upd, extra0=None, extra1=None, pre0=None, pre1=None):
        cur, nxt = u, (u + 2) % 3
        wr = GR + 16 * cur
        fill = merge(place(b_reads(1, XB, "B"), 0), place(g_advance(), 10))
        if extra0: fill = merge(fill, extra0)
        emit_sp(a, sc, acc, XA, (wr, wr + 4), (([], [f"g{cur}_0_0"]), ([], [f"g{cur}_0_1"])), "Ax", fill, pre0)
        upd = [ins(f"s_add_u32 s{sIt}, s{sIt}, 1\ns_cmp_eq_u32 s{sIt}, 9"),
               ins(f"s_cselect_b32 s{sIt}, 0, s{sIt}\ns_lshl_b32 s{sT}, s{sIt}, 5")] + arr_upd
        fill = merge(place(upd, 0), place(b_reads(0, XA, "A"), 4),
                     place([gload(nxt, 0, 0), gload(nxt, 0, 1), gload(nxt, 1, 0), gload(nxt, 1, 1)], 14))
        if extra1: fill = merge(fill, extra1)
        emit_sp(a, sc, acc, XB, (wr + 8, wr + 12), (([], [f"g{cur}_1_0"]), ([], [f"g{cur}_1_1"])), "Bx", fill, pre1)
    def arr_fixed(base):
        return [ins(f"s_add_u32 s{sT}, s{sT}, {base}"), ins(f"v_add_u32 v{vX}, s{sT}, v{vXb}")]
    a(f"s_mov_b32 s{sTrip}, 0")
    a("L_B1:")
    st_l, st_v = list(sc.lds), list(sc.vm)
    for u in range(3):
        if u < 2: upd = arr_fixed(LDS_X1)
        else:
            upd = [ins(f"s_cmp_eq_u32 s{sTrip}, 2\ns_cselect_b32 s{sT+1}, {LDS_X0}, {LDS_X1}"),
                   ins(f"s_add_u32 s{sT}, s{sT}, s{sT+1}\nv_add_u32 v{vX}, s{sT}, v{vXb}")]
        b_chunk(Y_, u, upd)
    a("s_barrier")
    a(f"s_add_u32 s{sTrip}, s{sTrip}, 1\ns_cmp_lt_u32 s{sTrip}, 3\ns_cbranch_scc1 L_B1")
    assert sc.lds == st_l and sc.vm == st_v
    stamp(a, 5)
    a(f"""
    s_mul_i32 s{sT+1}, s{sWV}, 9216
    s_add_u32 s{sT+1}, s{sT+1}, {LDS_Y0}
    v_lshlrev_b32 v9, 4, v0
    v_add_u32 v9, s{sT+1}, v9
    """)
    order = sp_order()
    pre = [[] for _ in range(18)]
    seen = set()
    for n, (s, T, i) in enumerate(order):
        if T not in seen:
            seen.add(T)
            m = max(n - 1, 0)
            for r in range(4):
                pre[m if n > 0 else 0].append(ins(f"v_add_f32 v{Y_+4*T+r}, v{M_+4*T+r}, v{Y_+4*T+r}"))
    def ywrite(T):
        def f():
            a(f"ds_write_b128 v9, v[{Y_+4*T}:{Y_+4*T+3}] offset:{T*1024}")
            sc.lds_issue(f"yw{T}")
        return f
    b_chunk(M_, 0, arr_fixed(LDS_X0), pre0=pre, extra1=place([ywrite(T) for T in range(9)], 0, 2))
    def bar_y0():
        sc.need({f"yw{T}" for T in range(9)}, ())
        a("s_barrier")
    b_chunk(M_, 1, arr_fixed(LDS_X0), extra0=place([bar_y0], 12))
    b_chunk(M_, 2, arr_fixed(LDS_X0))
    a(f"s_mov_b32 s{sTrip}, 1")
    a("L_B2:")
    assert sc.lds == st_l and sc.vm == st_v, (sc.lds, st_l, sc.vm, st_v)
    for u in range(3):
        b_chunk(M_, u, arr_fixed(LDS_X0))
    a(f"s_add_u32 s{sTrip}, s{sTrip}, 1\ns_cmp_lt_u32 s{sTrip}, 3\ns_cbranch_scc1 L_B2")
    stamp(a, 6)

    a("s_setprio 0")
    a(f"""
    s_lshr_b32 s{sT}, s{sWV}, 1
    s_and_b32 s{sT+1}, s{sWV}, 1
    s_mul_i32 s{sT+2}, s{sWV}, 5120
    s_add_u32 s{sT+2}, s{sT+2}, {LDS_Y1}
    v_lshlrev_b32 v9, 4, v0
    v_add_u32 v10, s{sT+2}, v9
    s_xor_b32 s{sT+2}, s{sWV}, 2
    s_mul_i32 s{sT+2}, s{sT+2}, 5120
    s_add_u32 s{sT+2}, s{sT+2}, {LDS_Y1}
    v_add_u32 v11, s{sT+2}, v9
    """)
    act_consts(a, f"s{sT+1}", sT + 5, sT + 6, 12)
    a(f"""
    s_mul_i32 s49, s{sMT}, {9*2*18*512}
    s_lshl_b32 s48, s48, 9
    s_add_u32 s48, s48, s49
    s_add_u32 s48, s48, {18*512}
    s_mul_i32 s49, s{sT}, {2*18*512}
    s_add_u32 s48, s48, s49
    v_lshlrev_b32 v13, 3, v0
    v_add_u32 v13, s48, v13
    s_waitcnt vmcnt(0) lgkmcnt(0)
    s_cmp_eq_u32 s{sT}, 0
    s_cbranch_scc0 L_t_k1
    """)
    K = XA
    def tail(keep, send, lbl):
        for i, T in enumerate(send):
            a(f"ds_write_b128 v10, v[{M_+4*T}:{M_+4*T+3}] offset:{i*1024}")
        a("s_waitcnt lgkmcnt(0)\ns_barrier")
        for i, T in enumerate(keep):
            a(f"ds_read_b128 v[{K+4*i}:{K+4*i+3}], v11 offset:{i*1024}")
        for i, T in enumerate(keep):
            a(f"s_waitcnt lgkmcnt({len(keep)-1-i})")
            regs = [M_ + 4*T + r for r in range(4)]
            for r in range(4): a(f"v_add_f32 v{regs[r]}, v{regs[r]}, v{K+4*i+r}")
            activation(a, regs, sT + 5, sT + 6, 12, Y_ + 2*i)
            a(f"s_mov_b32 s49, {i*2*2*18*512}")
            a(f"buffer_store_dwordx2 v[{Y_+2*i}:{Y_+2*i+1}], v13, s[{sE}:{sE+3}], s49 offen sc1")
    a("s_nop 7")
    tail([0, 2, 4, 6, 8], [1, 3, 5, 7], "k0")
    a("s_branch L_t_j\nL_t_k1:\ns_nop 7")
    tail([1, 3, 5, 7], [0, 2, 4, 6, 8], "k1")
    a("L_t_j:")
    stamp(a, 7)
    z_unit_setup(a)
    z_unit(a, f"s{sWV}", "m")
    a("s_waitcnt lgkmcnt(0)\ns_barrier")
    stamp(a, 8)
    stamp_flush(a)
    a("s_endpgm")

def z_unit_setup(a):
    a(f"""
    s_mul_i32 s48, s{sMT}, {9*2*18*512}
    s_mul_i32 s49, s{sNG}, {2*18*512}
    s_add_u32 s48, s48, s49
    s_add_u32 s48, s48, {18*512}
    v_lshlrev_b32 v14, 3, v0
    v_add_u32 v14, s48, v14
    v_lshlrev_b32 v15, 4, v0
    v_add_u32 v15, {LDS_Z}, v15
    """)
def z_unit(a, ct_s, lbl):
    a(f"""
    s_lshl_b32 s50, {ct_s}, 9
    s_add_u32 s51, s50, 4608
    s_mov_b32 s{sSpin}, 0
    L_zp_{lbl}:
    buffer_load_dwordx2 v[20:21], v14, s[{sE}:{sE+3}], s50 offen sc1
    buffer_load_dwordx2 v[22:23], v14, s[{sE}:{sE+3}], s51 offen sc1
    s_add_u32 s{sSpin}, s{sSpin}, 1
    s_waitcnt vmcnt(0)
    v_max_u32 v24, v20, v21
    v_max3_u32 v24, v24, v22, v23
    v_cmp_eq_u32 vcc, -1, v24
    s_cmp_ge_u32 s{sSpin}, {SPIN_MAX}
    s_cbranch_scc1 L_zd_{lbl}
    s_cbranch_vccnz L_zp_{lbl}
    L_zd_{lbl}:
    """)
    z_mul(a, 26, 20, 22, 28)
    z_mul(a, 27, 21, 23, 28)
    a(f"""
    s_lshr_b32 s50, {ct_s}, 1
    s_lshl_b32 s50, s50, 10
    s_and_b32 s51, {ct_s}, 1
    s_lshl_b32 s51, s51, 3
    s_add_u32 s50, s50, s51
    v_add_u32 v24, s50, v15
    ds_write_b64 v24, v[26:27]
    """)

WO = 64
def gen_helper(a):
    sH = sT
    sCw, sSl, sCs, sSs = 72, 73, 74, 75
    a(f"s_sub_u32 s{sH}, s{sWV}, 4")
    for i in range(4):
        a(f"v_add_u32 v{16+i}, {i*(165888-1024)}, v3")
    def wdma():
        a(f"""
        s_mul_i32 s48, s{sH}, {4*165888}
        s_mul_i32 s49, s{sCw}, 9216
        s_add_u32 s48, s48, s49
        s_lshl_b32 s49, s{sH}, 12
        s_add_u32 s49, s49, s{sSl}
        s_add_u32 m0, s49, {LDS_W}
        """)
        next_mod(a, sCw, 9)
        for i in range(4):
            a(f"buffer_load_dwordx4 v{16+i}, s[{sW}:{sW+3}], s48 offen offset:{i*1024} lds")
        a(f"s_add_u32 s{sSl}, s{sSl}, {WSLOT}\ns_cmp_eq_u32 s{sSl}, {3*WSLOT}\ns_cselect_b32 s{sSl}, 0, s{sSl}")
    a(f"s_mov_b32 s{sCw}, s{sC0}")
    next_mod(a, sCw, 9)
    a(f"s_mov_b32 s{sSl}, {WSLOT}")
    wdma()
    a(f"""
    s_mul_i32 s48, s{sH}, 44
    v_lshrrev_b32 v20, 1, v0
    v_add_u32 v20, s48, v20
    v_mul_u32_u24 v20, 288, v20
    v_and_b32 v21, 1, v0
    v_lshlrev_b32 v21, 4, v21
    v_add_u32 v20, v20, v21
    s_add_u32 s49, s48, 32
    v_lshrrev_b32 v21, 2, v0
    v_add_u32 v21, s49, v21
    v_mul_u32_u24 v21, 288, v21
    v_and_b32 v22, 3, v0
    v_lshlrev_b32 v22, 3, v22
    v_add_u32 v21, v21, v22
    s_lshl_b32 s48, s48, 5
    s_add_u32 s48, s48, {LDS_S}
    v_lshlrev_b32 v22, 4, v0
    v_add_u32 v22, s48, v22
    s_add_u32 s48, s48, 1024
    v_lshlrev_b32 v23, 3, v0
    v_add_u32 v23, s48, v23
    """)
    srd(a, sF, 14, 15, FL_OFF + FL_SIZE)
    tr_lane(a, 24, 25, 26)
    a("s_waitcnt vmcnt(16)\ns_barrier")
    for k in range(2):
        a(f"""
        s_add_u32 s56, s{sH}, {4*k}
        s_lshr_b32 s57, s56, 1
        s_cmp_ge_u32 s57, s54
        s_cbranch_scc1 L_prod_skip{k}
        s_and_b32 s58, s56, 1
        s_lshl_b32 s58, s58, 5
        v_xor_b32 v25, s58, v24
        s_add_u32 s59, s53, s57
        s_lshl_b32 s59, s59, 11
        s_add_u32 s59, s59, {LDS_W}
        v_add_u32 v26, s59, v25
        s_lshl_b32 s59, s57, 11
        s_add_u32 s59, s59, {LDS_W + 2*WSLOT}
        v_add_u32 v27, s59, v25
        """)
        for h in range(2):
            a(f"ds_read_b64_tr_b16 v[{28+2*h}:{29+2*h}], v26 offset:{h*256}")
            a(f"ds_read_b64_tr_b16 v[{32+2*h}:{33+2*h}], v27 offset:{h*256}")
            a(f"ds_read_b64_tr_b16 v[{36+2*h}:{37+2*h}], v27 offset:{1024+h*256}")
        a("s_waitcnt lgkmcnt(0)")
        for r in range(4):
            t = 56
            a(f"""
            v_lshlrev_b32 v{t}, 16, v{28+r}
            v_and_b32 v{t+1}, 0xffff0000, v{28+r}
            v_lshlrev_b32 v{t+2}, 16, v{32+r}
            v_and_b32 v{t+3}, 0xffff0000, v{32+r}
            v_lshlrev_b32 v{t+4}, 16, v{36+r}
            v_and_b32 v{t+5}, 0xffff0000, v{36+r}
            v_sub_f32 v{t+2}, v{t+2}, v{t}
            v_sub_f32 v{t+3}, v{t+3}, v{t+1}
            v_sub_f32 v{t+4}, v{t+4}, v{t}
            v_sub_f32 v{t+5}, v{t+5}, v{t+1}
            v_cvt_pk_bf16_f32 v{40+8*k+r}, v{t+2}, v{t+3}
            v_cvt_pk_bf16_f32 v{44+8*k+r}, v{t+4}, v{t+5}
            """)
        a(f"L_prod_skip{k}:")
    a("s_waitcnt vmcnt(4)\ns_barrier")
    a(f"v_mov_b32 v26, 0\nbuffer_load_dword v60, v26, s[{sD}:{sD+3}], 0 offen sc1")
    a("v_lshlrev_b32 v25, 4, v0")
    for k in range(2):
        a(f"""
        s_add_u32 s56, s{sH}, {4*k}
        s_lshr_b32 s57, s56, 1
        s_cmp_ge_u32 s57, s54
        s_cselect_b32 s59, 0x7f000000, 0
        s_add_u32 s57, s57, s53
        s_and_b32 s58, s57, 3
        s_lshl_b32 s58, s58, 1
        s_lshr_b32 s57, s57, 2
        s_add_u32 s57, s57, s58
        s_lshl_b32 s58, s{sC0}, 3
        s_add_u32 s57, s57, s58
        s_lshl_b32 s57, s57, 11
        s_and_b32 s58, s56, 1
        s_lshl_b32 s58, s58, 10
        s_add_u32 s57, s57, s58
        s_mul_i32 s58, s{sNG}, 147456
        s_add_u32 s57, s57, s58
        s_add_u32 s57, s57, s59
        buffer_store_dwordx4 v[{40+8*k}:{43+8*k}], v25, s[{sG}:{sG+3}], s57 offen sc1
        s_add_u32 s57, s57, {GF_PROD}
        buffer_store_dwordx4 v[{44+8*k}:{47+8*k}], v25, s[{sG}:{sG+3}], s57 offen sc1
        """)
    def sprod():
        a(f"""
        s_lshl_b32 s48, s{sCs}, 5
        v_add_u32 v24, s48, v20
        v_add_u32 v25, s48, v21
        ds_read_b128 v[28:31], v24
        ds_read_b128 v[32:35], v24 offset:{XARR}
        s_mov_b32 exec_hi, 0xffff
        ds_read_b64 v[36:37], v25
        ds_read_b64 v[38:39], v25 offset:{XARR}
        s_mov_b32 exec_hi, -1
        v_add_u32 v26, s{sSs}, v22
        v_add_u32 v27, s{sSs}, v23
        s_waitcnt lgkmcnt(2)
        """)
        for r in range(4): bf16_op(a, "v_add_f32", 28 + r, 28 + r, 32 + r, 56)
        a("ds_write_b128 v26, v[28:31]\ns_waitcnt lgkmcnt(1)")
        for r in range(2): bf16_op(a, "v_add_f32", 36 + r, 36 + r, 38 + r, 56)
        a("s_mov_b32 exec_hi, 0xffff\nds_write_b64 v27, v[36:37]\ns_mov_b32 exec_hi, -1")
    a(f"s_mov_b32 s{sCs}, s{sC0}\ns_mov_b32 s{sSs}, 0")
    sprod()
    a("s_waitcnt lgkmcnt(0)\ns_barrier")
    for r in range(4): a(f"v_mov_b32 v{48+r}, -1")
    def flag_store(word):
        a(f"""
        s_mul_i32 s49, s{sNG}, 28
        s_add_u32 s49, s49, s{sMT}
        s_lshl_b32 s49, s49, 7
        s_add_u32 s49, s49, {FL_OFF + 4*word}
        s_cmp_eq_u32 s{sH}, 1
        s_cselect_b32 s49, s49, 0x7f000000
        v_mov_b32 v24, s49
        v_mov_b32 v25, s{sNonce}
        s_mov_b64 exec, 1
        buffer_store_dword v25, v24, s[{sF}:{sF+3}], 0 offen sc1
        s_mov_b64 exec, -1
        """)
    for it in range(9):
        if it == 7:
            gf_flag_addr(a)
            a(f"s_cmp_lg_u32 s{sH}, 0\ns_cbranch_scc1 L_H_np")
            a(f"buffer_load_dword v61, v62, s[{sF}:{sF+3}], 0 offen sc1")
            a("L_H_np:")
        if it <= 6: wdma()
        if it == 1:
            a(f"""
            s_mul_i32 s56, s{sMT}, {9*2*18*512}
            s_lshl_b32 s57, s{sNG}, 10
            s_add_u32 s56, s56, s57
            v_lshlrev_b32 v24, 4, v0
            v_add_u32 v24, s56, v24
            """)
            for i in range(5):
                a(f"s_add_u32 s57, s{sH}, {4*i}\ns_min_u32 s57, s57, 17\ns_mul_i32 s57, s57, {18*512}")
                a(f"buffer_store_dwordx4 v[48:51], v24, s[{sE}:{sE+3}], s57 offen sc1")
        if it == 2: flag_store(0)
        if it == 4: flag_store(1)
        if it <= 7:
            next_mod(a, sCs, 9)
            a(f"s_xor_b32 s{sSs}, s{sSs}, {SSLOT}")
            sprod()
        n = {0: 8, 1: 9, 2: 10, 3: 5, 4: 5, 5: 5, 6: 4, 7: 0, 8: 0}[it]
        a(f"s_waitcnt vmcnt({n}) lgkmcnt(0)")
        if it == 0:
            a(f"""
            s_mov_b32 s{sSpin}, 0
            L_H_nspin:
            v_readfirstlane_b32 s{sNonce}, v60
            s_add_u32 s{sSpin}, s{sSpin}, 1
            s_cmp_lg_u32 s{sNonce}, 0
            s_cbranch_scc1 L_H_n0
            s_cmp_ge_u32 s{sSpin}, {SPIN_MAX}
            s_cbranch_scc1 L_H_n0
            v_mov_b32 v26, 0
            buffer_load_dword v60, v26, s[{sD}:{sD+3}], 0 offen sc1
            s_waitcnt vmcnt(0)
            s_branch L_H_nspin
            L_H_n0:
            """)
        if it == 7:
            a(f"""
            s_cmp_lg_u32 s{sH}, 0
            s_cbranch_scc1 L_H_f4
            s_mov_b32 s{sSpin}, 0
            L_H_fspin:
            v_cmp_ne_u32 vcc, s{sNonce}, v61
            s_add_u32 s{sSpin}, s{sSpin}, 1
            s_cmp_ge_u32 s{sSpin}, {SPIN_MAX}
            s_cbranch_scc1 L_H_f4
            s_cbranch_vccz L_H_f4
            buffer_load_dword v61, v62, s[{sF}:{sF+3}], 0 offen sc1
            s_waitcnt vmcnt(0)
            s_branch L_H_fspin
            L_H_f4:
            """)
        a("s_barrier")
    stamp(a, 1)
    srd(a, sWo, 8, 9, 144 * 288)
    a(f"v_lshlrev_b32 v24, 4, v0\ns_mov_b32 s50, s{sH}")
    a(f"""
    L_wo:
    s_lshl_b32 s51, s50, 10
    s_add_u32 m0, s51, {LDS_W}
    s_add_u32 s50, s50, 4
    buffer_load_dwordx4 v24, s[{sWo}:{sWo+3}], s51 offen lds
    s_cmp_lt_u32 s50, 41
    s_cbranch_scc1 L_wo
    """)
    a(f"s_mul_i32 s48, s{sB}, {XB_SIZE}\ns_add_u32 s10, s10, s48\ns_addc_u32 s11, s11, 0")
    srd(a, sO, 10, 11, XB_SIZE)
    a("s_waitcnt vmcnt(0)\ns_barrier")
    a(f"""
    v_lshrrev_b32 v24, 2, v0
    v_mul_u32_u24 v24, 288, v24
    v_and_b32 v25, 3, v0
    v_lshlrev_b32 v25, 3, v25
    v_add_u32 v24, v24, v25
    s_lshl_b32 s48, s{sH}, 5
    s_add_u32 s48, s48, {LDS_W}
    v_add_u32 v24, s48, v24
    v_add_u32 v25, {8*32}, v24
    """)
    for d, (va, off) in enumerate(((24, 0), (24, 128), (25, 0))):
        base = WO + 18 * d
        for P in range(4):
            a(f"ds_read_b64_tr_b16 v[{base+4*P}:{base+4*P+1}], v{va} offset:{off + 32*P*288}")
            a(f"ds_read_b64_tr_b16 v[{base+4*P+2}:{base+4*P+3}], v{va} offset:{off + (32*P+16)*288}")
        a(f"ds_read_b64_tr_b16 v[{base+16}:{base+17}], v{va} offset:{off + 128*288}")
        a("s_waitcnt lgkmcnt(0)")
    a("s_barrier")
    a(f"""
    v_mul_u32_u24 v62, 28, v0
    v_add_u32 v62, s{sMT}, v62
    v_lshlrev_b32 v62, 7, v62
    v_add_u32 v62, {FL_OFF + 4}, v62
    s_mov_b32 s{sSpin}, 0
    s_mov_b64 exec, 0x1ff
    L_fb:
    buffer_load_dword v61, v62, s[{sF}:{sF+3}], 0 offen sc1
    s_add_u32 s{sSpin}, s{sSpin}, 1
    s_waitcnt vmcnt(0)
    v_cmp_ne_u32 vcc, s{sNonce}, v61
    s_cmp_ge_u32 s{sSpin}, {SPIN_MAX}
    s_cbranch_scc1 L_fbd
    s_cbranch_vccnz L_fb
    L_fbd:
    s_mov_b64 exec, -1
    """)
    a(f"""
    v_and_b32 v41, 15, v0
    v_lshrrev_b32 v42, 1, v41
    v_lshlrev_b32 v42, 2, v42
    v_and_b32 v41, 1, v41
    v_add_u32 v41, v41, v42
    s_mul_i32 s48, s{sMTL}, 288
    s_lshl_b32 s49, s{sNG}, 5
    s_add_u32 s48, s48, s49
    v_add_u32 v41, s48, v41
    v_mul_u32_u24 v41, 288, v41
    v_lshrrev_b32 v42, 4, v0
    v_lshlrev_b32 v42, 3, v42
    v_add_u32 v41, v41, v42
    s_lshl_b32 s48, s{sH}, 5
    v_add_u32 v41, s48, v41
    """)
    a("s_barrier")
    stamp(a, 2)
    a(f"s_and_b32 s76, s{sH}, 1\ns_lshr_b32 s77, s{sH}, 1")
    act_consts(a, "s76", 78, 79, 43)
    a(f"""
    s_mul_i32 s49, s{sMT}, {9*2*18*512}
    s_lshl_b32 s48, s48, 9
    s_add_u32 s48, s48, s49
    s_mul_i32 s49, s77, {2*18*512}
    s_add_u32 s48, s48, s49
    v_lshlrev_b32 v44, 3, v0
    v_add_u32 v44, s48, v44
    s_mul_i32 s48, s76, 9216
    s_lshl_b32 s49, s77, 10
    s_add_u32 s48, s48, s49
    s_add_u32 s48, s48, {LDS_Y0}
    v_lshlrev_b32 v45, 4, v0
    v_add_u32 v45, s48, v45
    """)
    a("s_barrier")
    for i in range(5):
        if i == 4: a("s_cmp_eq_u32 s77, 1\ns_cbranch_scc1 L_y0_done")
        a(f"ds_read_b128 v[20:23], v45 offset:{i*2048}")
        a(f"ds_read_b128 v[24:27], v45 offset:{i*2048 + 2*9216}")
        a("s_waitcnt lgkmcnt(0)")
        for r in range(4): a(f"v_add_f32 v{20+r}, v{20+r}, v{24+r}")
        activation(a, [20, 21, 22, 23], 78, 79, 43, 28)
        a(f"s_mov_b32 s49, {i*2*2*18*512}")
        a(f"buffer_store_dwordx2 v[28:29], v44, s[{sE}:{sE+3}], s49 offen sc1")
        a("s_nop 1")
    a("L_y0_done:")
    stamp(a, 3)
    a(f"""
    s_mul_i32 s48, s{sMT}, {9*2*18*512}
    s_mul_i32 s49, s{sNG}, {2*18*512}
    s_add_u32 s48, s48, s49
    v_lshlrev_b32 v46, 3, v0
    v_add_u32 v46, s48, v46
    s_mov_b32 s{sSpin}, 0
    L_q0p:
    """)
    ACT = 120
    for ct in range(18):
        if ct * 512 < 4096:
            a(f"buffer_load_dwordx2 v[{ACT+2*ct}:{ACT+2*ct+1}], v46, s[{sE}:{sE+3}], 0 offen offset:{ct*512} sc1")
        else:
            a(f"s_mov_b32 s49, {(ct//8)*4096}")
            a(f"buffer_load_dwordx2 v[{ACT+2*ct}:{ACT+2*ct+1}], v46, s[{sE}:{sE+3}], s49 offen offset:{(ct%8)*512} sc1")
    a(f"s_add_u32 s{sSpin}, s{sSpin}, 1\ns_waitcnt vmcnt(0)")
    a(f"v_max_u32 v20, v{ACT}, v{ACT+1}")
    for k in range(1, 18):
        a(f"v_max3_u32 v20, v20, v{ACT+2*k}, v{ACT+2*k+1}")
    a(f"""
    v_cmp_eq_u32 vcc, -1, v20
    s_cmp_ge_u32 s{sSpin}, {SPIN_MAX}
    s_cbranch_scc1 L_q0d
    s_cbranch_vccnz L_q0p
    L_q0d:
    """)
    ZR = 160
    for ct in range(9):
        for r in range(2):
            z_mul(a, ZR + 2*ct + r, ACT + 2*ct + r, ACT + 18 + 2*ct + r, 56)
    def proj(zr, qoff, lbl):
        for d in range(3):
            base = WO + 18 * d
            if d == 2: a(f"s_cmp_lg_u32 s{sH}, 0\ns_cbranch_scc1 L_pj_{lbl}")
            acc = 20 + 4 * d
            a(f"v_mfma_f32_16x16x32_bf16 v[{acc}:{acc+3}], v[{base}:{base+3}], v[{zr}:{zr+3}], 0")
            for P in range(1, 4):
                a(f"v_mfma_f32_16x16x32_bf16 v[{acc}:{acc+3}], v[{base+4*P}:{base+4*P+3}], v[{zr+4*P}:{zr+4*P+3}], v[{acc}:{acc+3}]")
            a("s_nop 7\ns_nop 1")
            a(f"v_mfma_f32_16x16x16_bf16 v[{acc}:{acc+3}], v[{base+16}:{base+17}], v[{zr+16}:{zr+17}], v[{acc}:{acc+3}]")
            a("s_nop 7\ns_nop 1")
            a(f"v_cvt_pk_bf16_f32 v{32+2*d}, v{acc}, v{acc+1}\nv_cvt_pk_bf16_f32 v{33+2*d}, v{acc+2}, v{acc+3}")
            off = qoff + (128 if d == 1 else 0)
            if d == 2:
                a(f"buffer_store_dwordx2 v[{32+2*d}:{33+2*d}], v41, s[{sO}:{sO+3}], 0 offen offset:{qoff + 256}")
            else:
                a(f"buffer_store_dwordx2 v[{32+2*d}:{33+2*d}], v41, s[{sO}:{sO+3}], 0 offen offset:{off}")
        a(f"L_pj_{lbl}:")
    a("s_nop 1")
    proj(ZR, 0, "q0")
    stamp(a, 4)
    a("s_barrier")
    z_unit_setup(a)
    a(f"s_add_u32 s52, s{sH}, 4")
    z_unit(a, "s52", "h")
    a(f"s_cmp_lg_u32 s{sH}, 0\ns_cbranch_scc1 L_z8_skip\ns_mov_b32 s52, 8")
    z_unit(a, "s52", "h8")
    a("L_z8_skip:")
    a("s_waitcnt lgkmcnt(0)\ns_barrier")
    stamp(a, 5)
    a(f"v_lshlrev_b32 v15, 4, v0\nv_add_u32 v15, {LDS_Z}, v15")
    for P in range(4):
        a(f"ds_read_b128 v[{ZR+4*P}:{ZR+4*P+3}], v15 offset:{P*1024}")
    a(f"ds_read_b64 v[{ZR+16}:{ZR+17}], v15 offset:4096")
    a("s_waitcnt lgkmcnt(0)")
    proj(ZR, 576, "q1")
    stamp(a, 6)
    a("s_waitcnt vmcnt(0)")
    stamp(a, 7)
    stamp(a, 8)
    stamp_flush(a)
    a("s_endpgm")

def gf_flag_addr(a):
    a(f"""
    v_min_u32 v62, 27, v0
    s_mul_i32 s48, s{sNG}, 28
    v_add_u32 v62, s48, v62
    v_lshlrev_b32 v62, 7, v62
    v_add_u32 v62, {FL_OFF}, v62
    """)

sys.stdout.write(gen())
```

```python
import sys
from asmlib import *
OPT = set(sys.argv[1].split(",")) if len(sys.argv) > 1 else set()
STAMP = "stamp" in OPT
NAME = "standalone__autoregressive_conv_wavenet__speech_kernel"
XROWS = 352
LDS_W = XROWS * 288
WSLOT = 16384
LDS_S = LDS_W + 3 * WSLOT
SSLOT = 176 * 32
LDS_TOTAL = 163840
LDS_Y0 = LDS_W
LDS_Y1 = LDS_W + 36864
LDS_Z = LDS_W + 57344
LDS_CNT = LDS_Y1 + 4096
GF_PROD = 9 * 72 * 2048
GF_SIZE = 2 * GF_PROD
E_OFF = 0x400000
E_SIZE = 28 * 9 * 2 * 18 * 512
FL_OFF = 0x900000
FL_SIZE = 256 * 128
W_SIZE = 31 * 144 * 288 * 2
XB_SIZE = 4000 * 288
STAMP_OFF = 0x1000000
SPIN_MAX = 200000
sX, sW, sG, sE, sO, sWo, sD, sF = 16, 20, 24, 28, 32, 36, 84, 88
sNG, sMT, sMTL, sB, sC0, sWV = 42, 43, 44, 45, 46, 47
sIt = 63
sT = 68
sNonce = 80
sSpin = 81
sCP = 82
ST0 = 92
def srd(a, d, lo, hi, size):
    a(f"s_mov_b32 s{d}, s{lo}\ns_and_b32 s{d+1}, s{hi}, 0xffff\ns_mov_b32 s{d+2}, {size}\ns_mov_b32 s{d+3}, 0x20000")
HF_OFF = [False]
def stamp(a, idx):
    if not STAMP or HF_OFF[0]: return
    import inspect
    if "xfine" in OPT and idx != 0 and 'xfine' not in inspect.stack()[1].code_context[0]: return
    a(f"s_memtime s[{ST0}:{ST0+1}]\ns_memrealtime s[{ST0+2}:{ST0+3}]\ns_waitcnt lgkmcnt(0)")
    a(f"v_writelane_b32 v253, s{ST0}, {2*idx}\nv_writelane_b32 v253, s{ST0+2}, {2*idx+1}")
def stamp_dyn(a, base, sreg):
    if not STAMP or HF_OFF[0]: return
    a(f"s_memtime s[{ST0}:{ST0+1}]\ns_memrealtime s[{ST0+2}:{ST0+3}]\ns_waitcnt lgkmcnt(0)")
    a(f"s_lshl_b32 s96, s{sreg}, 1\ns_add_u32 m0, s96, {2*base}\ns_nop 3")
    a(f"v_writelane_b32 v253, s{ST0}, m0\ns_add_u32 m0, m0, 1\ns_nop 3\nv_writelane_b32 v253, s{ST0+2}, m0")
def stamp_flush(a):
    if not STAMP: return
    a(f"""
    s_mov_b32 s{ST0}, s14
    s_and_b32 s{ST0+1}, s15, 0xffff
    s_mov_b32 s{ST0+2}, 0x2000000
    s_mov_b32 s{ST0+3}, 0x20000
    s_lshl_b32 s48, s2, 3
    s_add_u32 s48, s48, s{sWV}
    s_lshl_b32 s48, s48, 7
    s_add_u32 s48, s48, {STAMP_OFF}
    v_lshlrev_b32 v252, 2, v0
    v_add_u32 v252, s48, v252
    s_mov_b64 exec, 0xffffffff
    buffer_store_dword v253, v252, s[{ST0}:{ST0+3}], 0 offen
    s_waitcnt vmcnt(0)
    s_mov_b64 exec, -1
    """)
def bf16_op(a, op, dst, xa, xb, t):
    a(f"v_lshlrev_b32 v{t}, 16, v{xa}")
    a(f"v_lshlrev_b32 v{t+1}, 16, v{xb}")
    a(f"v_and_b32 v{t+2}, 0xffff0000, v{xa}")
    a(f"v_and_b32 v{t+3}, 0xffff0000, v{xb}")
    a(f"{op} v{t}, v{t}, v{t+1}")
    a(f"{op} v{t+2}, v{t+2}, v{t+3}")
    a(f"v_cvt_pk_bf16_f32 v{dst}, v{t}, v{t+2}")
def next_mod(a, s, n):
    a(f"s_add_u32 s{s}, s{s}, 1\ns_cmp_eq_u32 s{s}, {n}\ns_cselect_b32 s{s}, 0, s{s}")
def tr_lane(a, vd, vt, vt2):
    a(f"""
    v_lshrrev_b32 v{vd}, 5, v0
    v_lshlrev_b32 v{vd}, 10, v{vd}
    v_bfe_u32 v{vt}, v0, 4, 1
    v_mul_u32_u24 v{vt}, 544, v{vt}
    v_add_u32 v{vd}, v{vd}, v{vt}
    v_bfe_u32 v{vt}, v0, 2, 2
    v_lshlrev_b32 v{vt}, 6, v{vt}
    v_add_u32 v{vd}, v{vd}, v{vt}
    v_and_b32 v{vt}, 3, v0
    v_lshlrev_b32 v{vt}, 3, v{vt}
    v_add_u32 v{vd}, v{vd}, v{vt}
    """)
def activation(a, regs, sA, sS1, vS0, dst):
    for r in regs: a(f"v_mul_f32 v{r}, s{sA}, v{r}")
    for r in regs: a(f"v_exp_f32 v{r}, v{r}")
    for r in regs: a(f"v_add_f32 v{r}, 1.0, v{r}")
    for r in regs: a(f"v_rcp_f32 v{r}, v{r}")
    a("s_nop 0")
    for r in regs: a(f"v_fma_f32 v{r}, v{r}, s{sS1}, v{vS0}")
    for k in range(len(regs) // 2):
        a(f"v_cvt_pk_bf16_f32 v{dst+k}, v{regs[2*k]}, v{regs[2*k+1]}")
    for k in range(len(regs) // 2):
        a(f"v_min_u32 v{dst+k}, 0xfffffffe, v{dst+k}")
def activation_pk(a, pairs, sA, sS1, sOne, vS0, dst):
    for r in pairs: a(f"v_pk_mul_f32 v[{r}:{r+1}], v[{r}:{r+1}], s[{sA}:{sA+1}]")
    for r in pairs: a(f"v_exp_f32 v{r}, v{r}\nv_exp_f32 v{r+1}, v{r+1}")
    for r in pairs: a(f"v_pk_add_f32 v[{r}:{r+1}], v[{r}:{r+1}], s[{sOne}:{sOne+1}]")
    for r in pairs: a(f"v_rcp_f32 v{r}, v{r}\nv_rcp_f32 v{r+1}, v{r+1}")
    for r in pairs: a(f"v_pk_fma_f32 v[{r}:{r+1}], v[{r}:{r+1}], s[{sS1}:{sS1+1}], v[{vS0}:{vS0+1}]")
    for k, r in enumerate(pairs): a(f"v_cvt_pk_bf16_f32 v{dst+k}, v{r}, v{r+1}")
    for k in range(len(pairs)): a(f"v_min_u32 v{dst+k}, 0xfffffffe, v{dst+k}")

def act_consts(a, nh_s, sA, sS1, vS0):
    a(f"""
    s_lshl_b32 s48, s{sNG}, 1
    s_add_u32 s48, s48, {nh_s}
    s_cmp_lt_u32 s48, 9
    s_mov_b32 s{sA}, 0xbfb8aa3b
    s_cselect_b32 s{sA}, 0xc038aa3b, s{sA}
    s_cselect_b32 s{sS1}, 2.0, 1.0
    s_cselect_b32 s49, -1.0, 0
    v_mov_b32 v{vS0}, s49
    """)
def z_mul(a, dst, f, g, t):
    bf16_op(a, "v_mul_f32", dst, f, g, t)
def gen():
    a = Asm()
    a(f"; @launch grid=(252,1,1) block=(512,1,1) lds={LDS_TOTAL}")
    a('.amdgcn_target "amdgcn-amd-amdhsa--gfx950"')
    a(".text")
    a(f".globl {NAME}")
    kernel_header(a, NAME)
    a("s_cmp_ge_u32 s2, 252\ns_cbranch_scc1 L_end")
    a("""
    s_load_dwordx4 s[4:7], s[0:1], 0
    s_load_dwordx4 s[8:11], s[0:1], 16
    s_load_dwordx4 s[12:15], s[0:1], 32
    s_getpc_b64 s[40:41]
    L_pc:
    v_lshlrev_b32 v1, 7, v0
    v_min_u32 v1, L_code_end-L_pc-4, v1
    global_load_dword v254, v1, s[40:41]
    """)
    if STAMP: a("v_mov_b32 v253, 0")
    stamp(a, 0)
    a(f"""
    v_lshrrev_b32 v1, 6, v0
    v_and_b32 v0, 63, v0
    v_readfirstlane_b32 s{sWV}, v1
    s_and_b32 s48, s2, 7
    s_lshr_b32 s49, s2, 3
    s_and_b32 s50, s48, 3
    s_lshr_b32 s48, s48, 2
    s_lshl_b32 s48, s48, 5
    s_add_u32 s48, s48, s49
    s_mul_i32 s51, s48, 7282
    s_lshr_b32 s51, s51, 16
    s_mul_i32 s49, s51, 9
    s_sub_u32 s{sNG}, s48, s49
    s_mul_i32 s{sMT}, s50, 7
    s_add_u32 s{sMT}, s{sMT}, s51
    s_lshr_b32 s{sB}, s50, 1
    s_and_b32 s50, s50, 1
    s_mul_i32 s50, s50, 7
    s_add_u32 s{sMTL}, s50, s51
    s_mul_i32 s52, s{sMT}, 7282
    s_lshr_b32 s52, s52, 16
    s_mul_i32 s49, s52, 9
    s_sub_u32 s{sCP}, s{sMT}, s49
    s_mov_b32 s{sC0}, 0
    """)
    a(f"""
    s_cmp_eq_u32 s{sCP}, 0
    s_cselect_b32 s55, 2, 3
    s_mul_i32 s53, s52, s55
    s_sub_u32 s54, 8, s53
    s_min_u32 s54, s54, s55
    """)
    a(f"""
    v_lshrrev_b32 v3, 2, v0
    v_mul_u32_u24 v3, 576, v3
    v_lshrrev_b32 v4, 5, v0
    v_lshlrev_b32 v4, 1, v4
    v_xor_b32 v4, v4, v0
    v_and_b32 v4, 3, v4
    v_lshlrev_b32 v4, 4, v4
    s_lshl_b32 s48, s{sNG}, 6
    v_add3_u32 v3, v3, v4, s48
    """)
    a("""
    v_lshrrev_b32 v12, 2, v0
    v_and_b32 v12, 4, v12
    v_xor_b32 v12, v12, v0
    v_lshlrev_b32 v12, 4, v12
    """)
    a("s_waitcnt lgkmcnt(0)")
    if "pfine" in OPT or "xfine" in OPT: stamp(a, 1)
    a(f"s_mul_i32 s48, s{sB}, {XB_SIZE}\ns_add_u32 s4, s4, s48\ns_addc_u32 s5, s5, 0")
    srd(a, sX, 4, 5, XB_SIZE)
    srd(a, sW, 6, 7, W_SIZE)
    srd(a, sD, 12, 13, 256)
    a(f"""
    s_lshl_b32 s48, s2, 3
    s_add_u32 s48, s48, s{sWV}
    s_cmp_lg_u32 s48, 4
    s_cbranch_scc1 L_nononce
    s_memrealtime s[56:57]
    s_waitcnt lgkmcnt(0)
    s_or_b32 s56, s56, 1
    v_mov_b32 v4, s56
    v_mov_b32 v5, 0
    s_mov_b64 exec, 1
    buffer_store_dword v4, v5, s[{sD}:{sD+3}], 0 offen sc1
    s_mov_b64 exec, -1
    L_nononce:
    """)
    PL = 176
    def w_share(dst):
        a(f"""
        s_lshr_b32 s48, s2, 3
        s_and_b32 s50, s48, 1
        s_mul_i32 s50, s50, 36
        v_add_u32 v10, s50, v0
        v_lshlrev_b32 v10, 7, v10
        s_lshr_b32 s48, s48, 1
        s_mul_i32 s48, s48, 165888
        s_mul_i32 s50, s{sWV}, 9216
        s_add_u32 s48, s48, s50
        s_mov_b32 exec_hi, 0xf
        buffer_load_dword v{dst}, v10, s[{sW}:{sW+3}], s48 offen
        s_mov_b32 exec_hi, -1
        """)
    def x_loop(lbl, end_s):
        a(f"""
        {lbl}:
        s_cmp_ge_u32 s50, 99
        s_cselect_b32 s51, 99, 0
        s_sub_u32 s50, s50, s51
        s_lshl_b32 s51, s50, 10
        s_mov_b32 m0, s51
        s_add_i32 s51, s51, s49
        s_cmp_lt_i32 s51, 0
        s_cselect_b32 s58, 0x7fff0000, 0
        v_or_b32 v11, s58, v12
        s_max_i32 s51, s51, 0
        s_add_u32 s50, s50, 4
        s_add_u32 s59, s59, 4
        buffer_load_dwordx4 v11, s[{sX}:{sX+3}], s51 offen lds
        s_cmp_lt_u32 s59, {end_s}
        s_cbranch_scc1 {lbl}
        """)
    a(f"""
    s_mul_i32 s49, s{sMTL}, {288*288}
    s_sub_i32 s49, s49, {64*288}
    s_cmp_ge_u32 s{sWV}, 4
    s_cbranch_scc1 L_hfirst
    s_cmp_ge_u32 s{sWV}, 2
    s_cbranch_scc1 L_nopf0
    """)
    w_share(251)
    a(f"""
    L_nopf0:
    s_mov_b32 s59, s{sWV}
    s_mul_i32 s60, s{sNG}, 11
    s_add_u32 s60, s60, s59
    s_mov_b32 s50, s60
    """)
    x_loop("L_xl0", 12)
    if "xfine" in OPT: stamp(a, 2)
    a(f"s_cmp_lt_u32 s{sWV}, 2\ns_cbranch_scc1 L_nopf1\ns_mov_b32 s62, s50")
    w_share(251)
    a("s_mov_b32 s50, s62\nL_nopf1:")
    x_loop("L_xl1", 99)
    if "xfine" in OPT: stamp(a, 3)
    a("s_branch L_xdone\nL_hfirst:")
    a(f"""
    s_sub_u32 s61, s{sWV}, 4
    s_lshl_b32 s56, s54, 2
    s_add_u32 s56, s56, 1
    s_lshl_b32 s57, s56, 1
    s_mul_i32 s58, s{sNG}, s56
    s_lshl_b32 s58, s58, 3
    s_mul_i32 s59, s61, s57
    s_add_u32 s58, s58, s59
    v_add_u32 v10, s58, v0
    v_mul_u32_u24 v11, 911, v10
    v_lshrrev_b32 v11, 16, v11
    v_mul_u32_u24 v13, 72, v11
    v_sub_u32 v10, v10, v13
    v_lshlrev_b32 v10, 7, v10
    s_lshl_b32 s58, s53, 2
    s_sub_u32 s58, s58, 1
    v_add_u32 v11, s58, v11
    s_mov_b32 s58, 82944
    v_mul_lo_u32 v11, v11, s58
    v_add_u32 v10, v10, v11
    s_mul_i32 s58, s{sCP}, 9216
    v_add_u32 v10, s58, v10
    v_cmp_gt_u32 vcc, s57, v0
    s_nop 1
    s_mov_b64 exec, vcc
    buffer_load_dword v251, v10, s[{sW}:{sW+3}], 0 offen
    s_mov_b64 exec, -1
    """)
    if "xfine" in OPT: stamp(a, 2)
    a(f"""
    s_add_u32 s56, s53, s61
    s_lshl_b32 s56, s56, 1
    s_mul_i32 s57, s56, 165888
    s_mul_i32 s58, s{sCP}, 9216
    s_add_u32 s57, s57, s58
    s_sub_u32 s58, s57, 82944
    s_cmp_eq_u32 s56, 0
    s_cselect_b32 s58, 0, s58
    s_cselect_b32 s59, 0x7fff0000, 0
    s_cmp_ge_u32 s61, s54
    s_cselect_b32 s60, 0x7fff0000, 0
    s_or_b32 s59, s59, s60
    v_or_b32 v24, s59, v3
    v_or_b32 v25, s60, v3
    s_waitcnt vmcnt(0)
    """)
    if "xfine" in OPT: stamp(a, 3)
    a(f"""
    buffer_load_dwordx4 v[{PL}:{PL+3}], v25, s[{sW}:{sW+3}], s57 offen
    buffer_load_dwordx4 v[{PL+4}:{PL+7}], v24, s[{sW}:{sW+3}], s58 offen
    s_add_u32 s58, s57, 82944
    buffer_load_dwordx4 v[{PL+8}:{PL+11}], v25, s[{sW}:{sW+3}], s58 offen
    s_add_u32 s58, s57, 165888
    buffer_load_dwordx4 v[{PL+12}:{PL+15}], v25, s[{sW}:{sW+3}], s58 offen
    s_add_u32 s58, s57, 248832
    buffer_load_dwordx4 v[{PL+16}:{PL+19}], v25, s[{sW}:{sW+3}], s58 offen
    """)
    a("L_xdone:")
    if "pfine" in OPT: stamp(a, 2)
    srd(a, sWo, 8, 9, 144 * 288)
    srd(a, sG, 14, 15, GF_SIZE)
    a(f"s_add_u32 s48, s14, {E_OFF}\ns_addc_u32 s49, s15, 0")
    srd(a, sE, 48, 49, E_SIZE)
    a(f"s_cmp_ge_u32 s{sWV}, 4\ns_cbranch_scc1 L_helper")
    gen_mfma(a)
    a("L_helper:")
    gen_helper(a)
    a("L_end:\ns_endpgm\nL_code_end:")
    a('.section .rodata,"a"')
    a(".p2align 6")
    kernel_desc(a, NAME, 256)
    return a.text()
M_, Y_ = 16, 52
XA, XB = 88, 128
GR = 168
WA, WB = GR + 32, GR + 40
vS, vW, vG, vXb, vSb, vWb = 2, 4, 5, 6, 7, 8
vS1, vSb1 = 15, 216
vP = ((3, 10), (11, 12))
vPt = 13
vW0 = 14
sD0, sD1 = 76, 77
sSlotW, sSlotS = 61, 62
sGc, sGp, sGo0, sGo1 = 64, 65, 66, 67
class Sched:
    def __init__(self, a):
        self.a = a; self.lds = []; self.vm = []
    def lds_issue(self, tag): self.lds.append(tag)
    def vm_issue(self, tag): self.vm.append(tag)
    def need(self, ltags=(), vtags=()):
        parts = []
        li = max((i for i, t in enumerate(self.lds) if t in ltags), default=-1)
        if li >= 0:
            n = min(len(self.lds) - 1 - li, 15)
            parts.append(f"lgkmcnt({n})")
            self.lds = self.lds[len(self.lds) - n:] if n > 0 else []
        vi = max((i for i, t in enumerate(self.vm) if t in vtags), default=-1)
        if vi >= 0:
            n = len(self.vm) - 1 - vi
            parts.append(f"vmcnt({n})")
            self.vm = self.vm[len(self.vm) - n:] if n > 0 else []
        if parts:
            self.a("s_waitcnt " + " ".join(parts))
def sp_order():
    r = []
    for i in range(10):
        if i >= 1: r.append((0, i - 1, i))
        if i <= 8: r.append((1, i, i))
    return r
def emit_sp(a, sc, acc, xset, wfrag, wtags, xp, fillers, pre=None, lookahead=4):
    order = sp_order()
    for n, (s, T, i) in enumerate(order):
        if pre is not None:
            for f in pre[n]: f()
        pend_l = set(sc.lds); pend_v = set(sc.vm)
        now_l = ({f"{xp}{i}"} | set(wtags[s][0])) & pend_l
        now_v = set(wtags[s][1]) & pend_v
        if now_l or now_v:
            lt = set()
            for (s2, T2, i2) in order[n:n + lookahead]:
                lt |= {f"{xp}{i2}"} | set(wtags[s2][0])
            lt &= pend_l
            sc.need(lt if now_l else (), now_v)
        d = acc + 4 * T
        a(f"v_mfma_f32_16x16x32_bf16 v[{d}:{d+3}], v[{wfrag[s]}:{wfrag[s]+3}], v[{xset+4*i}:{xset+4*i+3}], v[{d}:{d+3}]")
        for f in fillers[n]: f()
def place(items, start, step=1, ngaps=18):
    g = [[] for _ in range(ngaps)]
    for k, it in enumerate(items):
        g[start + k * step].append(it)
    return g
def merge(*gs):
    return [sum((g[n] for g in gs), []) for n in range(len(gs[0]))]
def gen_mfma(a):
    ins = lambda t: (lambda: a(t))
    a(f"v_mov_b32 v{vW0}, v3")
    for i in range(1, 4):
        a(f"v_add_u32 v{16+i}, {i*(165888-1024)}, v3")
    a(f"""
    s_mul_i32 s48, s{sWV}, {4*165888}
    s_lshl_b32 s49, s{sWV}, 12
    s_add_u32 m0, s49, {LDS_W}
    s_nop 0
    buffer_load_dwordx4 v3, s[{sW}:{sW+3}], s48 offen lds
    """)
    for i in range(1, 4):
        a(f"buffer_load_dwordx4 v{16+i}, s[{sW}:{sW+3}], s48 offen offset:{i*1024} lds")
    if "pfine" in OPT: stamp(a, 3)
    a("s_setprio 1")
    a(f"s_lshr_b32 s{sT}, s{sWV}, 1\ns_and_b32 s{sT+1}, s{sWV}, 1")
    a(f"""
    v_and_b32 v9, 15, v0
    v_lshrrev_b32 v10, 5, v0
    v_lshlrev_b32 v10, 1, v10
    v_sub_u32 v9, v9, v10
    s_lshl_b32 s{sT+2}, s{sT}, 3
    s_sub_u32 s{sT+2}, 12, s{sT+2}
    v_add_u32 v9, s{sT+2}, v9
    v_bfe_u32 v10, v0, 4, 1
    v_lshlrev_b32 v10, 4, v10
    v_bfe_u32 v11, v9, 2, 1
    v_lshlrev_b32 v11, 4, v11
    v_xor_b32 v11, v11, v10
    v_lshlrev_b32 v{vSb1}, 5, v9
    v_add_u32 v{vSb1}, v{vSb1}, v11
    v_add_u32 v{vSb1}, {LDS_S}, v{vSb1}
    v_xor_b32 v{vSb}, 16, v{vSb1}
    v_add_u32 v{vSb}, 128, v{vSb}
    v_bfe_u32 v9, v0, 1, 3
    v_lshrrev_b32 v11, 5, v0
    v_sub_u32 v9, v9, v11
    v_lshlrev_b32 v9, 2, v9
    v_and_b32 v11, 1, v0
    v_add_u32 v9, v9, v11
    s_lshl_b32 s{sT+2}, s{sT}, 4
    s_sub_u32 s{sT+2}, 24, s{sT+2}
    v_add_u32 v9, s{sT+2}, v9
    v_mul_u32_u24 v{vXb}, 288, v9
    v_add_u32 v{vXb}, v{vXb}, v10
    """)
    tr_lane(a, vWb, 9, 10)
    a(f"""
    s_lshl_b32 s{sT+2}, s{sT+1}, 5
    v_xor_b32 v{vWb}, s{sT+2}, v{vWb}
    s_lshl_b32 s{sT+2}, s{sT}, 12
    s_add_u32 s{sT+2}, s{sT+2}, {LDS_W}
    v_add_u32 v{vWb}, s{sT+2}, v{vWb}
    s_mul_i32 s{sT+2}, s{sNG}, 147456
    s_lshl_b32 s{sT+3}, s{sT}, 13
    s_add_u32 s{sT+2}, s{sT+2}, s{sT+3}
    s_lshl_b32 s{sT+3}, s{sT+1}, 10
    s_add_u32 s{sT+2}, s{sT+2}, s{sT+3}
    v_lshlrev_b32 v{vG}, 4, v0
    v_add_u32 v{vG}, s{sT+2}, v{vG}
    """)
    for r in range(M_, Y_ + 36):
        a(f"v_mov_b32 v{r}, 0")
    a(f"""
    s_mov_b32 s{sSlotW}, 0
    s_mov_b32 s{sSlotS}, 0
    s_mov_b32 s{sIt}, 0
    s_mov_b32 s{sGc}, s{sC0}
    s_mov_b32 s{sGp}, 0
    v_mov_b32 v{vS}, v{vSb}
    v_mov_b32 v{vS1}, v{vSb1}
    v_mov_b32 v{vW}, v{vWb}
    """)
    PF = "pfine" in OPT
    stamp(a, 4 if PF else 1)
    a("s_waitcnt vmcnt(4)\ns_barrier")
    stamp(a, 5 if PF else 2)
    for i in range(1, 4):
        a(f"v_add_u32 v{123+i}, {i*(165888-1024)}, v{vW0}")
    a(f"""
    s_mul_i32 s48, s{sWV}, {4*165888}
    s_add_u32 s48, s48, 9216
    s_lshl_b32 s49, s{sWV}, 12
    s_add_u32 m0, s49, {LDS_W + WSLOT}
    s_nop 0
    buffer_load_dwordx4 v{vW0}, s[{sW}:{sW+3}], s48 offen lds
    """)
    for i in range(1, 4):
        a(f"buffer_load_dwordx4 v{123+i}, s[{sW}:{sW+3}], s48 offen offset:{i*1024} lds")
    a(f"""
    s_mul_i32 s48, s{sWV}, 45
    v_add_u32 v124, s48, v0
    v_mul_u32_u24 v125, 1821, v124
    v_lshrrev_b32 v125, 16, v125
    v_mul_u32_u24 v126, 36, v125
    v_sub_u32 v124, v124, v126
    s_lshr_b32 s48, s2, 3
    s_and_b32 s49, s48, 1
    s_mul_i32 s49, s49, 36
    v_add_u32 v124, s49, v124
    v_lshlrev_b32 v124, 7, v124
    v_mul_u32_u24 v125, 9216, v125
    v_add_u32 v124, v124, v125
    s_lshr_b32 s48, s48, 1
    s_mul_i32 s48, s48, 165888
    s_add_u32 s48, s48, {4*9216}
    s_mov_b32 exec_hi, 0x1fff
    buffer_load_dword v251, v124, s[{sW}:{sW+3}], s48 offen
    s_mov_b32 exec_hi, -1
    s_lshr_b32 s48, s2, 3
    s_mul_i32 s48, s48, 12
    s_mul_i32 s49, s{sWV}, 3
    s_add_u32 s48, s48, s49
    v_add_u32 v124, s48, v0
    v_lshlrev_b32 v124, 7, v124
    s_mov_b64 exec, 7
    buffer_load_dword v250, v124, s[{sWo}:{sWo+3}], 0 offen
    s_mov_b64 exec, -1
    """)
    a("s_waitcnt vmcnt(6)\ns_barrier")
    stamp(a, 6 if PF else 3)
    sc = Sched(a)
    def rd_x(xset, i, vaddr, imm, tag):
        def f():
            a(f"ds_read_b128 v[{xset+4*i}:{xset+4*i+3}], v{vaddr} offset:{imm}")
            sc.lds_issue(tag)
        return f
    def rd_w(reg, h, imm, tag):
        def f():
            a(f"ds_read_b64_tr_b16 v[{reg+2*h}:{reg+2*h+1}], v{vW} offset:{imm}")
            sc.lds_issue(tag)
        return f
    def a_reads(sp, xset, wreg, p):
        w = lambda s: [rd_w(wreg + 4 * s, h, (2 * sp + 8 * s) * 1024 + h * 256, f"{p}w{s}") for h in range(2)]
        x = lambda i: rd_x(xset, i, vS if sp == 0 else vS1, 512 * i, f"{p}x{i}")
        return w(1) + [x(0)] + w(0) + [x(i) for i in range(1, 10)]
    def b_reads(sp, xset, p):
        return [rd_x(xset, i, vP[sp][i >> 3], 9216 * (i & 7), f"{p}x{i}") for i in range(10)]
    def x_addr(sp):
        r, rb = vP[sp]; sd = (sD0, sD1)[sp]
        return [ins(f"v_add_u32 v{r}, s{sd}, v{vXb}"), ins(f"v_lshrrev_b32 v{vPt}, 2, v{r}"), ins(f"v_and_b32 v{vPt}, 64, v{vPt}"),
                ins(f"v_xor_b32 v{r}, v{r}, v{vPt}"), ins(f"v_add_u32 v{rb}, {8*9216}, v{r}")]
    def spread4(items):
        g = [[] for _ in range(18)]
        g[0] += items[:2]; g[1].append(items[2]); g[2].append(items[3]); g[3].append(items[4])
        return g
    def gload(setidx, sp, s):
        reg = GR + 16 * setidx + 8 * sp + 4 * s
        so = sGo0 if sp == 0 else sGo1
        def f():
            a(f"buffer_load_dwordx4 v[{reg}:{reg+3}], v{vG}, s[{sG}:{sG+3}], s{so} offen offset:{s*2048} sc1")
            sc.vm_issue(f"g{setidx}_{sp}_{s}")
        return f
    def g_advance():
        return [ins(f"s_cmp_ge_u32 s{sGp}, 9\ns_cselect_b32 s{sGo0}, {GF_PROD}, 0"),
                ins(f"s_lshl_b32 s{sGo1}, s{sGc}, 14\ns_add_u32 s{sGo0}, s{sGo0}, s{sGo1}"),
                ins(f"s_add_u32 s{sGo1}, s{sGo0}, 4096\ns_add_u32 s{sGp}, s{sGp}, 1"),
                ins(f"s_add_u32 s{sGc}, s{sGc}, 1\ns_cmp_eq_u32 s{sGc}, 9"),
                ins(f"s_cselect_b32 s{sGc}, 0, s{sGc}")]
    def barrier_drain():
        sc.need(set(sc.lds), ())
        a("s_barrier")
    def barrier_drain_vm():
        sc.need(set(sc.lds), ())
        a("s_waitcnt vmcnt(2)\ns_barrier")
    for f in a_reads(0, XA, WA, "A"): f()
    def phase_a_iter(last, gset):
        fill = place(a_reads(1, XB, WB, "B"), 0)
        if gset is not None:
            fill = merge(fill, place(g_advance(), 13))
        if last:
            fill = merge(fill, place([ins(f"s_lshl_b32 s{sD1}, s{sC0}, 5\ns_add_u32 s{sD1}, s{sD1}, 576"), ins(f"s_add_u32 s{sD0}, s{sD1}, 2304")], 10),
                         place(x_addr(0), 13))
        emit_sp(a, sc, M_, XA, (WA, WA + 4), ((["Aw0"], []), (["Aw1"], [])), "Ax", fill)
        if not last:
            upd = [ins(f"s_add_u32 s{sSlotW}, s{sSlotW}, {WSLOT}\ns_cmp_eq_u32 s{sSlotW}, {3*WSLOT}"),
                   ins(f"s_cselect_b32 s{sSlotW}, 0, s{sSlotW}\ns_xor_b32 s{sSlotS}, s{sSlotS}, {SSLOT}\nv_add_u32 v{vW}, s{sSlotW}, v{vWb}"),
                   ins(f"v_add_u32 v{vS}, s{sSlotS}, v{vSb}\nv_add_u32 v{vS1}, s{sSlotS}, v{vSb1}")]
            fill = merge(place(upd + [barrier_drain if gset is not None else barrier_drain_vm], 0), place(a_reads(0, XA, WA, "A"), 4))
        else:
            fill = merge(place([ins("s_nop 0"), ins("s_nop 0"), ins("s_nop 0"), barrier_drain], 0), spread4(x_addr(1)), place(b_reads(0, XA, "A"), 4))
        if gset is not None:
            fill = merge(fill, place([gload(gset, 0, 0), gload(gset, 0, 1), gload(gset, 1, 0), gload(gset, 1, 1)], 14))
        emit_sp(a, sc, M_, XB, (WB, WB + 4), ((["Bw0"], []), (["Bw1"], [])), "Bx", fill)
    a("L_A:")
    st = list(sc.lds)
    phase_a_iter(False, None)
    assert sc.lds == st
    if PF: stamp_dyn(a, 7, sIt)
    a(f"s_add_u32 s{sIt}, s{sIt}, 1\ns_cmp_lt_u32 s{sIt}, 7\ns_cbranch_scc1 L_A")
    phase_a_iter(False, 0)
    if PF: stamp(a, 14)
    phase_a_iter(True, 1)
    stamp(a, 15 if PF else 4)
    if PF: HF_OFF[0] = True
    a(f"s_mov_b32 s{sIt}, s{sC0}")
    sTrip = sT + 4
    def b_chunk(acc, u, arr, extra0=None, extra1=None, pre0=None, pre1=None):
        cur, nxt = u, (u + 2) % 3
        wr = GR + 16 * cur
        upd = [ins(f"s_add_u32 s{sIt}, s{sIt}, 1\ns_cmp_eq_u32 s{sIt}, 9"),
               ins(f"s_cselect_b32 s{sIt}, 0, s{sIt}\ns_lshl_b32 s{sD1}, s{sIt}, 5")]
        if arr is None:
            upd.append(ins(f"s_cmp_eq_u32 s{sTrip}, 2\ns_cselect_b32 s{sT+1}, 0, 576\ns_add_u32 s{sD1}, s{sD1}, s{sT+1}\ns_add_u32 s{sD0}, s{sD1}, 2304"))
        elif arr == 1:
            upd.append(ins(f"s_add_u32 s{sD1}, s{sD1}, 576\ns_add_u32 s{sD0}, s{sD1}, 2304"))
        else:
            upd.append(ins(f"s_add_u32 s{sD0}, s{sD1}, 2304"))
        fill = merge(place(b_reads(1, XB, "B"), 0), place(upd, 10), place(x_addr(1), 13))
        if extra0: fill = merge(fill, extra0)
        emit_sp(a, sc, acc, XA, (wr, wr + 4), (([], [f"g{cur}_0_0"]), ([], [f"g{cur}_0_1"])), "Ax", fill, pre0)
        fill = merge(place(g_advance(), 0), spread4(x_addr(0)), place(b_reads(0, XA, "A"), 4),
                     place([gload(nxt, 0, 0), gload(nxt, 0, 1), gload(nxt, 1, 0), gload(nxt, 1, 1)], 14))
        if extra1: fill = merge(fill, extra1)
        emit_sp(a, sc, acc, XB, (wr + 8, wr + 12), (([], [f"g{cur}_1_0"]), ([], [f"g{cur}_1_1"])), "Bx", fill, pre1)
    a(f"s_mov_b32 s{sTrip}, 0")
    a("L_B1:")
    st_l, st_v = list(sc.lds), list(sc.vm)
    for u in range(3):
        b_chunk(Y_, u, 1 if u < 2 else None)
    stamp_dyn(a, 5, sTrip) if "pre" in OPT else None
    a("s_barrier")
    stamp_dyn(a, 5, sTrip) if "pre" not in OPT else None
    a(f"s_add_u32 s{sTrip}, s{sTrip}, 1\ns_cmp_lt_u32 s{sTrip}, 3\ns_cbranch_scc1 L_B1")
    assert sc.lds == st_l and sc.vm == st_v
    a(f"""
    s_mul_i32 s{sT+1}, s{sWV}, 9216
    s_add_u32 s{sT+1}, s{sT+1}, {LDS_Y0}
    v_lshlrev_b32 v9, 4, v0
    v_add_u32 v9, s{sT+1}, v9
    """)
    order = sp_order()
    pre = [[] for _ in range(18)]
    seen = set()
    for n, (s, T, i) in enumerate(order):
        if T not in seen:
            seen.add(T)
            m = max(n - 1, 0)
            for r in range(4):
                pre[m if n > 0 else 0].append(ins(f"v_add_f32 v{Y_+4*T+r}, v{M_+4*T+r}, v{Y_+4*T+r}"))
    def ywrite(T):
        def f():
            a(f"ds_write_b128 v9, v[{Y_+4*T}:{Y_+4*T+3}] offset:{T*1024}")
            sc.lds_issue(f"yw{T}")
        return f
    b_chunk(M_, 0, 0, pre0=pre, extra1=place([ywrite(T) for T in range(9)], 0, 2))
    def bar_y0():
        sc.need({f"yw{T}" for T in range(9)}, ())
        a("s_barrier")
    b_chunk(M_, 1, 0, extra0=place([bar_y0], 12))
    b_chunk(M_, 2, 0)
    stamp(a, 8)
    a(f"s_mov_b32 s{sTrip}, 1")
    a("L_B2:")
    assert sc.lds == st_l and sc.vm == st_v, (sc.lds, st_l, sc.vm, st_v)
    for u in range(3):
        b_chunk(M_, u, 0)
    stamp_dyn(a, 8, sTrip)
    a(f"s_add_u32 s{sTrip}, s{sTrip}, 1\ns_cmp_lt_u32 s{sTrip}, 3\ns_cbranch_scc1 L_B2")
    a("s_setprio 0")
    a(f"""
    s_lshr_b32 s{sT}, s{sWV}, 1
    s_and_b32 s{sT+1}, s{sWV}, 1
    s_mul_i32 s{sT+2}, s{sWV}, 5120
    s_add_u32 s{sT+2}, s{sT+2}, {LDS_Y1}
    v_lshlrev_b32 v9, 4, v0
    v_add_u32 v10, s{sT+2}, v9
    s_xor_b32 s{sT+2}, s{sWV}, 2
    s_mul_i32 s{sT+2}, s{sT+2}, 5120
    s_add_u32 s{sT+2}, s{sT+2}, {LDS_Y1}
    v_add_u32 v11, s{sT+2}, v9
    """)
    act_consts(a, f"s{sT+1}", sT + 5, sT + 6, 12)
    a(f"""
    s_mov_b32 s56, s{sT+5}
    s_mov_b32 s57, s{sT+5}
    s_mov_b32 s58, s{sT+6}
    s_mov_b32 s59, s{sT+6}
    s_mov_b32 s60, 1.0
    s_mov_b32 s61, 1.0
    v_mov_b32 v14, v12
    v_mov_b32 v15, v12
    """)
    a(f"""
    s_mul_i32 s49, s{sMT}, {9*2*18*512}
    s_lshl_b32 s48, s48, 9
    s_add_u32 s48, s48, s49
    s_add_u32 s48, s48, {18*512}
    s_mul_i32 s49, s{sT}, {2*18*512}
    s_add_u32 s48, s48, s49
    v_lshlrev_b32 v13, 3, v0
    v_add_u32 v13, s48, v13
    s_waitcnt lgkmcnt(0)
    s_cmp_eq_u32 s{sT}, 0
    s_cbranch_scc0 L_t_k1
    """)
    K = XA
    def tail(keep, send, lbl):
        for i, T in enumerate(send):
            a(f"ds_write_b128 v10, v[{M_+4*T}:{M_+4*T+3}] offset:{i*1024}")
        a("s_waitcnt lgkmcnt(0)\ns_barrier")
        for i, T in enumerate(keep):
            a(f"ds_read_b128 v[{K+4*i}:{K+4*i+3}], v11 offset:{i*1024}")
        for i, T in enumerate(keep):
            a(f"s_waitcnt lgkmcnt({len(keep)-1-i})")
            for r in (0, 2):
                a(f"v_pk_add_f32 v[{M_+4*T+r}:{M_+4*T+r+1}], v[{M_+4*T+r}:{M_+4*T+r+1}], v[{K+4*i+r}:{K+4*i+r+1}]")
        activation_pk(a, [M_ + 4*T + r for T in keep for r in (0, 2)], 56, 58, 60, 14, Y_)
        for i, T in enumerate(keep):
            a(f"s_mov_b32 s49, {i*2*2*18*512}")
            a(f"buffer_store_dwordx2 v[{Y_+2*i}:{Y_+2*i+1}], v13, s[{sE}:{sE+3}], s49 offen sc1")
    a("s_nop 7")
    tail([0, 2, 4, 6, 8], [1, 3, 5, 7], "k0")
    a("s_branch L_t_j\nL_t_k1:\ns_nop 7")
    tail([1, 3, 5, 7], [0, 2, 4, 6, 8], "k1")
    a("L_t_j:")
    stamp(a, 11)
    z_unit_setup(a, 1)
    z_units(a, [sWV], "m", 0)
    a("s_waitcnt lgkmcnt(0)\ns_barrier")
    stamp(a, 12)
    HF_OFF[0] = False
    stamp_flush(a)
    a("s_endpgm")
def z_unit_setup(a, q):
    a(f"""
    s_mul_i32 s48, s{sMT}, {9*2*18*512}
    s_mul_i32 s49, s{sNG}, {2*18*512}
    s_add_u32 s48, s48, s49
    s_add_u32 s48, s48, {q*18*512}
    v_lshlrev_b32 v14, 3, v0
    v_add_u32 v14, s48, v14
    v_lshlrev_b32 v15, 4, v0
    v_add_u32 v15, {LDS_Z}, v15
    """)
def z_units(a, cts, lbl, nap):
    ZL, ZZ, ZT, ZM = 128, 140, 146, 150
    for u, c in enumerate(cts):
        a(f"s_lshl_b32 s{50+2*u}, s{c}, 9\ns_add_u32 s{51+2*u}, s{50+2*u}, 4608")
    a(f"s_mov_b32 s{sSpin}, 0\nL_zp_{lbl}:")
    for u in range(len(cts)):
        a(f"buffer_load_dwordx2 v[{ZL+4*u}:{ZL+4*u+1}], v14, s[{sE}:{sE+3}], s{50+2*u} offen sc1")
        a(f"buffer_load_dwordx2 v[{ZL+4*u+2}:{ZL+4*u+3}], v14, s[{sE}:{sE+3}], s{51+2*u} offen sc1")
    a(f"s_add_u32 s{sSpin}, s{sSpin}, 1\ns_waitcnt vmcnt(0)")
    a(f"v_max_u32 v{ZM}, v{ZL}, v{ZL+1}\nv_max3_u32 v{ZM}, v{ZM}, v{ZL+2}, v{ZL+3}")
    for u in range(1, len(cts)):
        a(f"v_max3_u32 v{ZM}, v{ZM}, v{ZL+4*u}, v{ZL+4*u+1}\nv_max3_u32 v{ZM}, v{ZM}, v{ZL+4*u+2}, v{ZL+4*u+3}")
    a(f"""
    v_cmp_eq_u32 vcc, -1, v{ZM}
    s_cmp_ge_u32 s{sSpin}, {SPIN_MAX}
    s_cbranch_scc1 L_zd_{lbl}
    s_cbranch_vccz L_zd_{lbl}
    """)
    if nap: a(f"s_sleep {nap}")
    a(f"s_branch L_zp_{lbl}\nL_zd_{lbl}:")
    for u, c in enumerate(cts):
        z_mul(a, ZZ + 2*u, ZL + 4*u, ZL + 4*u + 2, ZT)
        z_mul(a, ZZ + 2*u + 1, ZL + 4*u + 1, ZL + 4*u + 3, ZT)
        a(f"""
        s_lshr_b32 s48, s{c}, 1
        s_lshl_b32 s48, s48, 10
        s_and_b32 s49, s{c}, 1
        s_lshl_b32 s49, s49, 3
        s_add_u32 s48, s48, s49
        v_add_u32 v{ZM}, s48, v15
        ds_write_b64 v{ZM}, v[{ZZ+2*u}:{ZZ+2*u+1}]
        """)
WO = 64
def gen_helper(a):
    sH = sT
    sCw, sSl, sCs, sSs = 72, 73, 74, 75
    vSx, vSw, vPat, vLo = 20, 21, 22, 23
    SB, SD, ID, IJ = 28, 40, 52, 56
    a(f"s_sub_u32 s{sH}, s{sWV}, 4")
    if "pfine" in OPT: HF_OFF[0] = True
    for i in range(4):
        a(f"v_add_u32 v{16+i}, {i*(165888-1024)}, v3")
    def wdma():
        a(f"""
        s_mul_i32 s50, s{sH}, {4*165888}
        s_mul_i32 s49, s{sCw}, 9216
        s_add_u32 s50, s50, s49
        s_lshl_b32 s49, s{sH}, 12
        s_add_u32 s49, s49, s{sSl}
        s_add_u32 m0, s49, {LDS_W}
        s_add_u32 s{sSl}, s{sSl}, {WSLOT}
        s_cmp_eq_u32 s{sSl}, {3*WSLOT}
        s_cselect_b32 s{sSl}, 0, s{sSl}
        """)
        next_mod(a, sCw, 9)
        for i in range(4):
            if "nodma" in OPT and wdma.n > 0:
                a(f"buffer_load_dword v112, v0, s[{sD}:{sD+3}], 0 offen")
            else:
                a(f"buffer_load_dwordx4 v{16+i}, s[{sW}:{sW+3}], s50 offen offset:{i*1024} lds")
        wdma.n += 1
    wdma.n = 0
    PL = 176
    a(f"s_mov_b32 s{sCw}, 2\ns_mov_b32 s{sSl}, {2*WSLOT}")
    a(f"""
    v_bfe_u32 v24, v0, 1, 3
    v_lshlrev_b32 v24, 2, v24
    v_and_b32 v25, 1, v0
    v_add_u32 v24, v24, v25
    v_lshrrev_b32 v25, 5, v0
    v_lshl_add_u32 v24, v25, 1, v24
    v_mul_u32_u24 v{vSx}, 288, v24
    v_bfe_u32 v24, v0, 4, 1
    v_lshl_add_u32 v{vSx}, v24, 4, v{vSx}
    s_mul_i32 s48, s{sH}, 9216
    v_add_u32 v{vSx}, s48, v{vSx}
    v_and_b32 v24, 15, v0
    v_lshlrev_b32 v24, 5, v24
    v_bfe_u32 v26, v0, 2, 1
    v_xor_b32 v26, v26, v25
    v_lshl_add_u32 v24, v26, 4, v24
    v_bfe_u32 v26, v0, 4, 1
    v_lshl_add_u32 v24, v26, 3, v24
    s_lshl_b32 s48, s{sH}, 9
    s_add_u32 s48, s48, {LDS_S}
    v_add_u32 v{vSw}, s48, v24
    v_sub_u32 v{vLo}, 1, v25
    v_bfe_u32 v24, v0, 4, 1
    v_mul_u32_u24 v{vPat}, 544, v24
    v_bfe_u32 v24, v0, 2, 2
    v_lshl_add_u32 v{vPat}, v24, 6, v{vPat}
    v_and_b32 v24, 3, v0
    v_lshl_add_u32 v{vPat}, v24, 3, v{vPat}
    """)
    a(f"""
    v_lshrrev_b32 v24, 3, v0
    v_lshrrev_b32 v26, 4, v0
    v_xor_b32 v24, v24, v26
    v_and_b32 v24, 1, v24
    v_and_b32 v26, 1, v0
    v_lshlrev_b32 v26, 4, v26
    v_mov_b32 v27, 0x3f80
    v_lshlrev_b32 v27, v26, v27
    v_lshlrev_b32 v28, 15, v25
    v_lshlrev_b32 v28, v26, v28
    v_or_b32 v28, v28, v27
    v_bfe_u32 v26, v0, 1, 2
    v_lshl_or_b32 v26, v24, 2, v26
    """)
    for r in range(4):
        a(f"v_cmp_eq_u32 vcc, {r}, v26\ns_nop 1\nv_cndmask_b32 v{ID+r}, 0, v27, vcc\nv_cndmask_b32 v{IJ+r}, 0, v28, vcc")
    srd(a, sF, 14, 15, FL_OFF + FL_SIZE)
    def s_reads():
        if "nos" in OPT and s_compute.n > 0:
            a("v_lshlrev_b32 v113, 2, v0\nds_read_b32 v114, v113\nds_read_b32 v114, v113\nds_read_b32 v114, v113"); return
        a(f"""
        s_lshl_b32 s48, s{sCs}, 5
        v_add_u32 v24, s48, v{vSx}
        v_lshrrev_b32 v25, 2, v24
        v_and_b32 v25, 64, v25
        v_xor_b32 v24, v24, v25
        v_add_u32 v25, {8*9216}, v24
        ds_read_b128 v[{SB}:{SB+3}], v24
        ds_read_b128 v[{SB+4}:{SB+7}], v24 offset:{4*9216}
        ds_read_b128 v[{SB+8}:{SB+11}], v25
        """)
    def s_compute(between=None):
        if "nos" in OPT and s_compute.n > 0: return
        a(f"v_add_u32 v26, s{sSs}, v{vSw}")
        a("s_setprio 3")
        for k in range(3):
            a(f"v_mfma_f32_16x16x32_bf16 v[{SD+4*k}:{SD+4*k+3}], v[{ID}:{ID+3}], v[{SB+4*k}:{SB+4*k+3}], 0")
        a("s_setprio 0")
        if between: between()
        else: a("s_nop 7")
        for k in range(3):
            if k == 2: a("s_nop 3")
            a(f"v_cvt_pk_bf16_f32 v{SD+4*k}, v{SD+4*k}, v{SD+4*k+1}\nv_cvt_pk_bf16_f32 v{SD+4*k+1}, v{SD+4*k+2}, v{SD+4*k+3}")
            if k == 2:
                lab = s_compute.n; s_compute.n += 1
                a(f"s_cmp_eq_u32 s{sH}, 3\ns_cbranch_scc1 L_s3_{lab}")
            a(f"ds_write_b64 v26, v[{SD+4*k}:{SD+4*k+1}] offset:{2048*k}")
        a(f"L_s3_{lab}:")
    s_compute.n = 0
    PB, PD, PK = 64, 128, 160
    def prod_stage():
        a(f"""
        s_mul_i32 s57, s{sH}, 5120
        s_add_u32 s57, s57, {LDS_W + 3*WSLOT - 4*5120}
        v_lshlrev_b32 v24, 4, v0
        v_add_u32 v24, s57, v24
        """)
        for k in range(5):
            a(f"ds_write_b128 v24, v[{PL+4*k}:{PL+4*k+3}] offset:{1024*k}")
        a("s_waitcnt lgkmcnt(0)")
        for c, e, o in ((0, 0, 1024), (2, 0, 2048), (1, 3072, 2048), (3, 3072, 4096)):
            a(f"v_mul_u32_u24 v26, {o}, v{vLo}\nv_sub_u32 v27, 1, v{vLo}\nv_mul_u32_u24 v27, {e}, v27\nv_add3_u32 v26, v26, v27, v{vPat}")
            a(f"v_add_u32 v26, s57, v26\nv_xor_b32 v27, 32, v26")
            for nh in range(2):
                b = PB + 8 * c + 4 * nh
                for h in range(2):
                    a(f"ds_read_b64_tr_b16 v[{b+2*h}:{b+2*h+1}], v{26+nh} offset:{h*256}")
        a("s_waitcnt lgkmcnt(0)")
    def production():
        a("s_setprio 3")
        for f in range(8):
            a(f"v_mfma_f32_16x16x32_bf16 v[{PD+4*f}:{PD+4*f+3}], v[{IJ}:{IJ+3}], v[{PB+4*f}:{PB+4*f+3}], 0")
        a("s_setprio 0")
        a(f"""
        s_add_u32 s57, s53, s{sH}
        s_and_b32 s58, s57, 3
        s_lshl_b32 s58, s58, 1
        s_lshr_b32 s57, s57, 2
        s_add_u32 s57, s57, s58
        s_lshl_b32 s58, s{sCP}, 3
        s_add_u32 s57, s57, s58
        s_lshl_b32 s57, s57, 11
        s_mul_i32 s58, s{sNG}, 147456
        s_add_u32 s57, s57, s58
        s_cmp_ge_u32 s{sH}, s54
        s_cselect_b32 s57, 0x7f000000, s57
        s_add_u32 s58, s57, {GF_PROD}
        v_and_b32 v26, 15, v0
        v_lshlrev_b32 v26, 4, v26
        v_lshrrev_b32 v27, 5, v0
        v_lshl_add_u32 v26, v27, 8, v26
        v_bfe_u32 v27, v0, 4, 1
        v_lshl_add_u32 v26, v27, 3, v26
        """)
        for f in range(8):
            c, nh = f >> 1, f & 1
            a(f"v_cvt_pk_bf16_f32 v{PK+2*f}, v{PD+4*f}, v{PD+4*f+1}\nv_cvt_pk_bf16_f32 v{PK+2*f+1}, v{PD+4*f+2}, v{PD+4*f+3}")
            so = "s57" if c < 2 else "s58"
            a(f"buffer_store_dwordx2 v[{PK+2*f}:{PK+2*f+1}], v26, s[{sG}:{sG+3}], {so} offen offset:{nh*1024 + (c & 1)*512} sc1")
    if "xfine" in OPT: stamp(a, 6)
    a("s_waitcnt vmcnt(0)")
    if "xfine" in OPT: stamp(a, 7)
    prod_stage()
    if "xfine" in OPT: stamp(a, 8)
    production()
    if "xfine" in OPT: stamp(a, 9)
    a(f"s_mov_b32 s{sCs}, 0\ns_mov_b32 s{sSs}, 0")
    if "xfine" in OPT: stamp(a, 10)
    a("s_barrier")
    if "xfine" in OPT: stamp(a, 11)
    s_reads()
    a("s_waitcnt lgkmcnt(0)")
    s_compute()
    a(f"v_mov_b32 v26, 0\nbuffer_load_dword v60, v26, s[{sD}:{sD+3}], 0 offen sc1")
    next_mod(a, sCs, 9)
    s_reads()
    if "xfine" in OPT: stamp(a, 12)
    a("s_waitcnt lgkmcnt(3)")
    if "xfine" in OPT: stamp(a, 13)
    a("s_barrier")
    if "xfine" in OPT: stamp(a, 14); HF_OFF[0] = True
    for r in range(4): a(f"v_mov_b32 v{120+r}, -1")
    def flag_store(kind):
        a(f"""
        s_mul_i32 s49, s{sNG}, 28
        s_add_u32 s49, s49, s{sMT}
        s_lshl_b32 s49, s49, 7
        """)
        if kind == "A":
            a(f"s_lshl_b32 s48, s{sH}, 2\ns_add_u32 s49, s49, s48\ns_add_u32 s49, s49, {FL_OFF}\ns_cmp_lt_u32 s{sH}, 3")
        else:
            a(f"s_add_u32 s49, s49, {FL_OFF + 12}\ns_cmp_eq_u32 s{sH}, 1")
        a(f"""
        s_cselect_b32 s49, s49, 0x7f000000
        v_mov_b32 v26, s49
        v_mov_b32 v27, s{sNonce}
        s_mov_b64 exec, 1
        buffer_store_dword v27, v26, s[{sF}:{sF+3}], 0 offen sc1
        s_mov_b64 exec, -1
        """)
    def poison():
        a(f"""
        s_mul_i32 s56, s{sMT}, {9*2*18*512}
        s_lshl_b32 s57, s{sNG}, 10
        s_add_u32 s56, s56, s57
        v_lshlrev_b32 v26, 4, v0
        v_add_u32 v26, s56, v26
        """)
        for i in range(5):
            a(f"s_add_u32 s57, s{sH}, {4*i}\ns_min_u32 s57, s57, 17\ns_mul_i32 s57, s57, {18*512}")
            a(f"buffer_store_dwordx4 v[120:123], v26, s[{sE}:{sE+3}], s57 offen sc1")
    waits = {0: 4, 1: 5, 2: 4, 3: 4, 4: 9, 5: 9, 6: 4, 7: 0, 8: 0}
    for it in range(9):
        if it == 5 and "hfine" in OPT: stamp(a, 1)
        if it == 7:
            gf_flag_addr(a)
            a(f"s_cmp_lg_u32 s{sH}, 0\ns_cbranch_scc1 L_H_np")
            a(f"buffer_load_dwordx3 v[124:126], v63, s[{sF}:{sF+3}], 0 offen sc1")
            a("L_H_np:")
        if it <= 6:
            a(f"s_cmp_ge_u32 s{sH}, 2\ns_cbranch_scc1 L_H_d1_{it}")
            wdma()
            a(f"L_H_d1_{it}:")
        if it <= 7:
            a("s_waitcnt lgkmcnt(0)")
            a(f"s_xor_b32 s{sSs}, s{sSs}, {SSLOT}")
            s_compute()
        if it <= 6:
            a(f"s_cmp_lt_u32 s{sH}, 2\ns_cbranch_scc1 L_H_d2_{it}")
            wdma()
            a(f"L_H_d2_{it}:")
        if it == 4: poison()
        if it <= 6:
            next_mod(a, sCs, 9)
            s_reads()
        if it == 5 and "hfine" in OPT: stamp(a, 3)
        a(f"s_waitcnt vmcnt({waits[it]}) lgkmcnt({3 if it <= 6 else 0})")
        if it == 5 and "hfine" in OPT: stamp(a, 4)
        if it == 0:
            a(f"""
            s_mov_b32 s{sSpin}, 0
            L_H_nspin:
            v_readfirstlane_b32 s{sNonce}, v60
            s_add_u32 s{sSpin}, s{sSpin}, 1
            s_cmp_lg_u32 s{sNonce}, 0
            s_cbranch_scc1 L_H_n0
            s_cmp_ge_u32 s{sSpin}, {SPIN_MAX}
            s_cbranch_scc1 L_H_n0
            v_mov_b32 v26, 0
            buffer_load_dword v60, v26, s[{sD}:{sD+3}], 0 offen sc1
            s_waitcnt vmcnt(0)
            s_branch L_H_nspin
            L_H_n0:
            """)
            flag_store("A")
        if it == 7:
            a(f"""
            s_cmp_lg_u32 s{sH}, 0
            s_cbranch_scc1 L_H_f4
            s_mov_b32 s{sSpin}, 0
            L_H_fspin:
            v_cmp_ne_u32 vcc, s{sNonce}, v124
            v_cmp_ne_u32 s[56:57], s{sNonce}, v125
            v_cmp_ne_u32 s[58:59], s{sNonce}, v126
            s_add_u32 s{sSpin}, s{sSpin}, 1
            s_or_b64 vcc, vcc, s[56:57]
            s_or_b64 vcc, vcc, s[58:59]
            s_cmp_ge_u32 s{sSpin}, {SPIN_MAX}
            s_cbranch_scc1 L_H_f4
            s_cbranch_vccz L_H_f4
            buffer_load_dwordx3 v[124:126], v63, s[{sF}:{sF+3}], 0 offen sc1
            s_waitcnt vmcnt(0)
            s_branch L_H_fspin
            L_H_f4:
            """)
        a("s_barrier")
        if it == 5 and "hfine" in OPT: stamp(a, 5)
        if it == 6 and "hfine" in OPT: stamp(a, 6)
    if "hfine" not in OPT: stamp(a, 1)
    if "hfine" in OPT: HF_OFF[0] = True
    flag_store("B")
    a(f"v_lshlrev_b32 v24, 4, v0\ns_mov_b32 s50, s{sH}")
    a(f"""
    L_wo:
    s_lshl_b32 s51, s50, 10
    s_add_u32 m0, s51, {LDS_W}
    s_add_u32 s50, s50, 4
    buffer_load_dwordx4 v24, s[{sWo}:{sWo+3}], s51 offen lds
    s_sleep 2
    s_cmp_lt_u32 s50, 41
    s_cbranch_scc1 L_wo
    s_barrier
    """)
    a(f"s_mul_i32 s48, s{sB}, {XB_SIZE}\ns_add_u32 s10, s10, s48\ns_addc_u32 s11, s11, 0")
    srd(a, sO, 10, 11, XB_SIZE)
    a(f"""
    v_mul_u32_u24 v62, 28, v0
    v_add_u32 v62, s{sMT}, v62
    v_lshlrev_b32 v62, 7, v62
    v_add_u32 v62, {FL_OFF + 12}, v62
    s_mov_b32 s{sSpin}, 0
    s_mov_b64 exec, 0x1ff
    L_fb:
    buffer_load_dword v61, v62, s[{sF}:{sF+3}], 0 offen sc1
    s_add_u32 s{sSpin}, s{sSpin}, 1
    s_waitcnt vmcnt(0)
    v_cmp_ne_u32 vcc, s{sNonce}, v61
    s_cmp_ge_u32 s{sSpin}, {SPIN_MAX}
    s_cbranch_scc1 L_fbd
    s_cbranch_vccz L_fbd
    s_sleep 4
    s_branch L_fb
    L_fbd:
    s_mov_b64 exec, -1
    s_barrier
    """)
    a(f"""
    v_lshrrev_b32 v24, 2, v0
    v_mul_u32_u24 v24, 288, v24
    v_and_b32 v25, 3, v0
    v_lshlrev_b32 v25, 3, v25
    v_add_u32 v24, v24, v25
    s_lshl_b32 s48, s{sH}, 5
    s_add_u32 s48, s48, {LDS_W}
    v_add_u32 v24, s48, v24
    v_add_u32 v25, {8*32}, v24
    """)
    for d, (va, off) in enumerate(((24, 0), (24, 128), (25, 0))):
        base = WO + 18 * d
        for P in range(4):
            a(f"ds_read_b64_tr_b16 v[{base+4*P}:{base+4*P+1}], v{va} offset:{off + 32*P*288}")
            a(f"ds_read_b64_tr_b16 v[{base+4*P+2}:{base+4*P+3}], v{va} offset:{off + (32*P+16)*288}")
        a(f"ds_read_b64_tr_b16 v[{base+16}:{base+17}], v{va} offset:{off + 128*288}")
        a("s_waitcnt lgkmcnt(0)")
    a(f"""
    v_and_b32 v41, 15, v0
    v_lshrrev_b32 v42, 1, v41
    v_lshlrev_b32 v42, 2, v42
    v_and_b32 v41, 1, v41
    v_add_u32 v41, v41, v42
    s_mul_i32 s48, s{sMTL}, 288
    s_lshl_b32 s49, s{sNG}, 5
    s_add_u32 s48, s48, s49
    v_add_u32 v41, s48, v41
    v_mul_u32_u24 v41, 288, v41
    v_lshrrev_b32 v42, 4, v0
    v_lshlrev_b32 v42, 3, v42
    v_add_u32 v41, v41, v42
    s_lshl_b32 s48, s{sH}, 5
    v_add_u32 v41, s48, v41
    """)
    a(f"s_and_b32 s76, s{sH}, 1\ns_lshr_b32 s77, s{sH}, 1")
    act_consts(a, "s76", 78, 79, 43)
    a(f"""
    s_mul_i32 s49, s{sMT}, {9*2*18*512}
    s_lshl_b32 s48, s48, 9
    s_add_u32 s48, s48, s49
    s_mul_i32 s49, s77, {2*18*512}
    s_add_u32 s48, s48, s49
    v_lshlrev_b32 v44, 3, v0
    v_add_u32 v44, s48, v44
    s_mul_i32 s48, s76, 9216
    s_lshl_b32 s49, s77, 10
    s_add_u32 s48, s48, s49
    s_add_u32 s48, s48, {LDS_Y0}
    v_lshlrev_b32 v45, 4, v0
    v_add_u32 v45, s48, v45
    """)
    a(f"v_mov_b32 v24, {LDS_CNT}\nv_mov_b32 v25, 0\nds_write_b32 v24, v25\ns_waitcnt lgkmcnt(0)")
    a("s_barrier")
    stamp(a, 2)
    a("s_barrier")
    for i in range(5):
        a(f"ds_read_b128 v[{128+4*i}:{131+4*i}], v45 offset:{i*2048}")
        a(f"ds_read_b128 v[{148+4*i}:{151+4*i}], v45 offset:{i*2048 + 2*9216}")
    for i in range(5):
        a(f"s_waitcnt lgkmcnt({8-2*i})")
        for r in range(4): a(f"v_add_f32 v{128+4*i+r}, v{128+4*i+r}, v{148+4*i+r}")
    activation(a, list(range(128, 148)), 78, 79, 43, 20)
    for i in range(5):
        if i == 4: a("s_cmp_eq_u32 s77, 1\ns_cbranch_scc1 L_y0_done")
        a(f"s_mov_b32 s49, {i*2*2*18*512}")
        a(f"buffer_store_dwordx2 v[{20+2*i}:{21+2*i}], v44, s[{sE}:{sE+3}], s49 offen sc1")
    a("L_y0_done:")
    stamp(a, 3)
    z_unit_setup(a, 0)
    a(f"s_add_u32 s60, s{sH}, 4\ns_cmp_eq_u32 s{sH}, 0\ns_cselect_b32 s61, 8, s{sH}\ns_sleep 12")
    z_units(a, [sH, 60, 61], "q0", 4)
    if "qfine" in OPT: stamp(a, 9)
    a(f"""
    s_waitcnt lgkmcnt(0)
    v_mov_b32 v24, {LDS_CNT}
    v_mov_b32 v25, 1
    s_mov_b64 exec, 1
    ds_add_u32 v24, v25
    s_mov_b64 exec, -1
    s_mov_b32 s{sSpin}, 0
    L_q0c:
    ds_read_b32 v25, v24
    s_add_u32 s{sSpin}, s{sSpin}, 1
    s_waitcnt lgkmcnt(0)
    v_readfirstlane_b32 s48, v25
    s_cmp_ge_u32 s{sSpin}, {SPIN_MAX}
    s_cbranch_scc1 L_q0cd
    s_cmp_lt_u32 s48, 4
    s_cbranch_scc0 L_q0cd
    s_sleep 1
    s_branch L_q0c
    L_q0cd:
    """)
    if "qfine" in OPT: stamp(a, 10)
    ZR = 160
    for P in range(4):
        a(f"ds_read_b128 v[{ZR+4*P}:{ZR+4*P+3}], v15 offset:{P*1024}")
    a(f"ds_read_b64 v[{ZR+16}:{ZR+17}], v15 offset:4096")
    a("s_waitcnt lgkmcnt(0)")
    def proj(zr, qoff, lbl):
        a("s_setprio 3")
        for P in range(4):
            for d in range(3):
                base = WO + 18 * d; acc = 20 + 4 * d
                c = "0" if P == 0 else f"v[{acc}:{acc+3}]"
                a(f"v_mfma_f32_16x16x32_bf16 v[{acc}:{acc+3}], v[{base+4*P}:{base+4*P+3}], v[{zr+4*P}:{zr+4*P+3}], {c}")
        a("s_nop 7")
        for d in range(3):
            base = WO + 18 * d; acc = 20 + 4 * d
            a(f"v_mfma_f32_16x16x16_bf16 v[{acc}:{acc+3}], v[{base+16}:{base+17}], v[{zr+16}:{zr+17}], v[{acc}:{acc+3}]")
        a("s_setprio 0\ns_nop 7")
        for d in range(3):
            acc = 20 + 4 * d
            if d == 2: a(f"s_cmp_lg_u32 s{sH}, 0\ns_cbranch_scc1 L_pj_{lbl}")
            a(f"v_cvt_pk_bf16_f32 v{32+2*d}, v{acc}, v{acc+1}\nv_cvt_pk_bf16_f32 v{33+2*d}, v{acc+2}, v{acc+3}")
            a(f"buffer_store_dwordx2 v[{32+2*d}:{33+2*d}], v41, s[{sO}:{sO+3}], 0 offen offset:{qoff + 128*d}")
        a(f"L_pj_{lbl}:")
    if "qfine" in OPT: stamp(a, 11)
    proj(ZR, 0, "q0")
    stamp(a, 4)
    a("s_barrier")
    z_unit_setup(a, 1)
    a(f"s_add_u32 s60, s{sH}, 4\ns_cmp_eq_u32 s{sH}, 0\ns_cselect_b32 s61, 8, s60")
    z_units(a, [60, 61], "h", 0)
    a("s_waitcnt lgkmcnt(0)\ns_barrier")
    stamp(a, 5)
    a(f"v_lshlrev_b32 v15, 4, v0\nv_add_u32 v15, {LDS_Z}, v15")
    for P in range(4):
        a(f"ds_read_b128 v[{ZR+4*P}:{ZR+4*P+3}], v15 offset:{P*1024}")
    a(f"ds_read_b64 v[{ZR+16}:{ZR+17}], v15 offset:4096")
    a("s_waitcnt lgkmcnt(0)")
    proj(ZR, 576, "q1")
    stamp(a, 6)
    a("s_waitcnt vmcnt(0)")
    stamp(a, 7)
    stamp(a, 8)
    HF_OFF[0] = False
    stamp_flush(a)
    a("s_endpgm")
def gf_flag_addr(a):
    a(f"""
    v_min_u32 v63, 27, v0
    s_mul_i32 s48, s{sNG}, 28
    v_add_u32 v63, s48, v63
    v_lshlrev_b32 v63, 7, v63
    v_add_u32 v63, {FL_OFF}, v63
    """)
sys.stdout.write(gen())
```

```python
import sys
from asmlib import *
OPT = set(sys.argv[1].split(",")) if len(sys.argv) > 1 else set()
STAMP = "stamp" in OPT
NAME = "standalone__autoregressive_conv_wavenet__speech_kernel"
XROWS = 352
LDS_W = XROWS * 288
WSLOT = 16384
LDS_S = LDS_W + 3 * WSLOT
SSLOT = 176 * 32
LDS_TOTAL = 163840
LDS_Y0 = LDS_W
LDS_Y1 = LDS_W + 36864
LDS_Z = LDS_W + 57344
LDS_CNT = LDS_Y1 + 4096
GF_PROD = 9 * 72 * 2048
GF_SIZE = 2 * GF_PROD
E_OFF = 0x400000
E_SIZE = 28 * 9 * 2 * 18 * 512
FL_OFF = 0x900000
FL_SIZE = 256 * 128
W_SIZE = 31 * 144 * 288 * 2
XB_SIZE = 4000 * 288
STAMP_OFF = 0x1000000
SPIN_MAX = 200000
sX, sW, sG, sE, sO, sWo, sD, sF = 16, 20, 24, 28, 32, 36, 84, 88
sNG, sMT, sMTL, sB, sC0, sWV = 42, 43, 44, 45, 46, 47
sIt = 63
sT = 68
sNonce = 80
sSpin = 81
sCP = 82
ST0 = 92
def srd(a, d, lo, hi, size):
    a(f"s_mov_b32 s{d}, s{lo}\ns_and_b32 s{d+1}, s{hi}, 0xffff\ns_mov_b32 s{d+2}, {size}\ns_mov_b32 s{d+3}, 0x20000")
HF_OFF = [False]
def stamp(a, idx):
    if not STAMP or HF_OFF[0]: return
    import inspect
    if "xfine" in OPT and idx != 0 and 'xfine' not in inspect.stack()[1].code_context[0]: return
    a(f"s_memtime s[{ST0}:{ST0+1}]\ns_memrealtime s[{ST0+2}:{ST0+3}]\ns_waitcnt lgkmcnt(0)")
    a(f"v_writelane_b32 v253, s{ST0}, {2*idx}\nv_writelane_b32 v253, s{ST0+2}, {2*idx+1}")
def stamp_dyn(a, base, sreg):
    if not STAMP or HF_OFF[0]: return
    a(f"s_memtime s[{ST0}:{ST0+1}]\ns_memrealtime s[{ST0+2}:{ST0+3}]\ns_waitcnt lgkmcnt(0)")
    a(f"s_lshl_b32 s96, s{sreg}, 1\ns_add_u32 m0, s96, {2*base}\ns_nop 3")
    a(f"v_writelane_b32 v253, s{ST0}, m0\ns_add_u32 m0, m0, 1\ns_nop 3\nv_writelane_b32 v253, s{ST0+2}, m0")
def stamp_flush(a):
    if not STAMP: return
    a(f"""
    s_mov_b32 s{ST0}, s14
    s_and_b32 s{ST0+1}, s15, 0xffff
    s_mov_b32 s{ST0+2}, 0x2000000
    s_mov_b32 s{ST0+3}, 0x20000
    s_lshl_b32 s48, s2, 3
    s_add_u32 s48, s48, s{sWV}
    s_lshl_b32 s48, s48, 7
    s_add_u32 s48, s48, {STAMP_OFF}
    v_lshlrev_b32 v252, 2, v0
    v_add_u32 v252, s48, v252
    s_mov_b64 exec, 0xffffffff
    buffer_store_dword v253, v252, s[{ST0}:{ST0+3}], 0 offen
    s_waitcnt vmcnt(0)
    s_mov_b64 exec, -1
    """)
def bf16_op(a, op, dst, xa, xb, t):
    a(f"v_lshlrev_b32 v{t}, 16, v{xa}")
    a(f"v_lshlrev_b32 v{t+1}, 16, v{xb}")
    a(f"v_and_b32 v{t+2}, 0xffff0000, v{xa}")
    a(f"v_and_b32 v{t+3}, 0xffff0000, v{xb}")
    a(f"{op} v{t}, v{t}, v{t+1}")
    a(f"{op} v{t+2}, v{t+2}, v{t+3}")
    a(f"v_cvt_pk_bf16_f32 v{dst}, v{t}, v{t+2}")
def next_mod(a, s, n):
    a(f"s_add_u32 s{s}, s{s}, 1\ns_cmp_eq_u32 s{s}, {n}\ns_cselect_b32 s{s}, 0, s{s}")
def tr_lane(a, vd, vt, vt2):
    a(f"""
    v_lshrrev_b32 v{vd}, 5, v0
    v_lshlrev_b32 v{vd}, 10, v{vd}
    v_bfe_u32 v{vt}, v0, 4, 1
    v_mul_u32_u24 v{vt}, 544, v{vt}
    v_add_u32 v{vd}, v{vd}, v{vt}
    v_bfe_u32 v{vt}, v0, 2, 2
    v_lshlrev_b32 v{vt}, 6, v{vt}
    v_add_u32 v{vd}, v{vd}, v{vt}
    v_and_b32 v{vt}, 3, v0
    v_lshlrev_b32 v{vt}, 3, v{vt}
    v_add_u32 v{vd}, v{vd}, v{vt}
    """)
def activation(a, regs, sA, sS1, vS0, dst):
    for r in regs: a(f"v_mul_f32 v{r}, s{sA}, v{r}")
    for r in regs: a(f"v_exp_f32 v{r}, v{r}")
    for r in regs: a(f"v_add_f32 v{r}, 1.0, v{r}")
    for r in regs: a(f"v_rcp_f32 v{r}, v{r}")
    a("s_nop 0")
    for r in regs: a(f"v_fma_f32 v{r}, v{r}, s{sS1}, v{vS0}")
    for k in range(len(regs) // 2):
        a(f"v_cvt_pk_bf16_f32 v{dst+k}, v{regs[2*k]}, v{regs[2*k+1]}")
    for k in range(len(regs) // 2):
        a(f"v_min_u32 v{dst+k}, 0xfffffffe, v{dst+k}")
def activation_pk(a, pairs, sA, sS1, sOne, vS0, dst):
    for r in pairs: a(f"v_pk_mul_f32 v[{r}:{r+1}], v[{r}:{r+1}], s[{sA}:{sA+1}]")
    for r in pairs: a(f"v_exp_f32 v{r}, v{r}\nv_exp_f32 v{r+1}, v{r+1}")
    for r in pairs: a(f"v_pk_add_f32 v[{r}:{r+1}], v[{r}:{r+1}], s[{sOne}:{sOne+1}]")
    for r in pairs: a(f"v_rcp_f32 v{r}, v{r}\nv_rcp_f32 v{r+1}, v{r+1}")
    for r in pairs: a(f"v_pk_fma_f32 v[{r}:{r+1}], v[{r}:{r+1}], s[{sS1}:{sS1+1}], v[{vS0}:{vS0+1}]")
    for k, r in enumerate(pairs): a(f"v_cvt_pk_bf16_f32 v{dst+k}, v{r}, v{r+1}")
    for k in range(len(pairs)): a(f"v_min_u32 v{dst+k}, 0xfffffffe, v{dst+k}")

def act_consts(a, nh_s, sA, sS1, vS0):
    a(f"""
    s_lshl_b32 s48, s{sNG}, 1
    s_add_u32 s48, s48, {nh_s}
    s_cmp_lt_u32 s48, 9
    s_mov_b32 s{sA}, 0xbfb8aa3b
    s_cselect_b32 s{sA}, 0xc038aa3b, s{sA}
    s_cselect_b32 s{sS1}, 2.0, 1.0
    s_cselect_b32 s49, -1.0, 0
    v_mov_b32 v{vS0}, s49
    """)
def z_mul(a, dst, f, g, t):
    bf16_op(a, "v_mul_f32", dst, f, g, t)
def gen():
    a = Asm()
    a(f"; @launch grid=(252,1,1) block=(512,1,1) lds={LDS_TOTAL}")
    a('.amdgcn_target "amdgcn-amd-amdhsa--gfx950"')
    a(".text")
    a(f".globl {NAME}")
    kernel_header(a, NAME)
    a("s_cmp_ge_u32 s2, 252\ns_cbranch_scc1 L_end")
    a("""
    s_load_dwordx4 s[4:7], s[0:1], 0
    s_load_dwordx4 s[8:11], s[0:1], 16
    s_load_dwordx4 s[12:15], s[0:1], 32
    s_getpc_b64 s[40:41]
    L_pc:
    v_lshlrev_b32 v1, 7, v0
    v_min_u32 v1, L_code_end-L_pc-4, v1
    global_load_dword v254, v1, s[40:41]
    """)
    if STAMP: a("v_mov_b32 v253, 0")
    if "dur" in OPT: a("s_memrealtime s[98:99]")
    stamp(a, 0)
    a(f"""
    v_lshrrev_b32 v1, 6, v0
    v_and_b32 v0, 63, v0
    v_readfirstlane_b32 s{sWV}, v1
    s_and_b32 s48, s2, 7
    s_lshr_b32 s49, s2, 3
    s_and_b32 s50, s48, 3
    s_lshr_b32 s48, s48, 2
    s_lshl_b32 s48, s48, 5
    s_add_u32 s48, s48, s49
    s_mul_i32 s51, s48, 7282
    s_lshr_b32 s51, s51, 16
    s_mul_i32 s49, s51, 9
    s_sub_u32 s{sNG}, s48, s49
    s_mul_i32 s{sMT}, s50, 7
    s_add_u32 s{sMT}, s{sMT}, s51
    s_lshr_b32 s{sB}, s50, 1
    s_and_b32 s50, s50, 1
    s_mul_i32 s50, s50, 7
    s_add_u32 s{sMTL}, s50, s51
    s_mul_i32 s52, s{sMT}, 7282
    s_lshr_b32 s52, s52, 16
    s_mul_i32 s49, s52, 9
    s_sub_u32 s{sCP}, s{sMT}, s49
    s_mov_b32 s{sC0}, 0
    """)
    a(f"""
    s_cmp_eq_u32 s{sCP}, 0
    s_cselect_b32 s55, 2, 3
    s_mul_i32 s53, s52, s55
    s_sub_u32 s54, 8, s53
    s_min_u32 s54, s54, s55
    """)
    a(f"""
    v_lshrrev_b32 v3, 2, v0
    v_mul_u32_u24 v3, 576, v3
    v_lshrrev_b32 v4, 5, v0
    v_lshlrev_b32 v4, 1, v4
    v_xor_b32 v4, v4, v0
    v_and_b32 v4, 3, v4
    v_lshlrev_b32 v4, 4, v4
    s_lshl_b32 s48, s{sNG}, 6
    v_add3_u32 v3, v3, v4, s48
    """)
    a("""
    v_lshrrev_b32 v12, 2, v0
    v_and_b32 v12, 4, v12
    v_xor_b32 v12, v12, v0
    v_lshlrev_b32 v12, 4, v12
    """)
    a("s_waitcnt lgkmcnt(0)")
    if "pfine" in OPT or "xfine" in OPT: stamp(a, 1)
    a(f"s_mul_i32 s48, s{sB}, {XB_SIZE}\ns_add_u32 s4, s4, s48\ns_addc_u32 s5, s5, 0")
    srd(a, sX, 4, 5, XB_SIZE)
    srd(a, sW, 6, 7, W_SIZE)
    srd(a, sD, 12, 13, 256)
    if "dur" in OPT:
        a(f"""
        s_cmp_lg_u32 s{sWV}, 0
        s_cbranch_scc1 L_nodur
        s_not_b32 s98, s98
        v_mov_b32 v4, s98
        v_mov_b32 v5, 8
        s_mov_b64 exec, 1
        buffer_atomic_umax v4, v5, s[{sD}:{sD+3}], 0 offen
        s_mov_b64 exec, -1
        L_nodur:
        """)
    a(f"""
    s_lshl_b32 s48, s2, 3
    s_add_u32 s48, s48, s{sWV}
    s_cmp_lg_u32 s48, 4
    s_cbranch_scc1 L_nononce
    s_memrealtime s[56:57]
    s_waitcnt lgkmcnt(0)
    s_or_b32 s56, s56, 1
    v_mov_b32 v4, s56
    v_mov_b32 v5, 0
    s_mov_b64 exec, 1
    buffer_store_dword v4, v5, s[{sD}:{sD+3}], 0 offen sc1
    s_mov_b64 exec, -1
    L_nononce:
    """)
    PL = 176
    def w_share(dst):
        a(f"""
        s_lshr_b32 s48, s2, 3
        s_and_b32 s50, s48, 1
        s_mul_i32 s50, s50, 36
        v_add_u32 v10, s50, v0
        v_lshlrev_b32 v10, 7, v10
        s_lshr_b32 s48, s48, 1
        s_mul_i32 s48, s48, 165888
        s_mul_i32 s50, s{sWV}, 9216
        s_add_u32 s48, s48, s50
        s_mov_b32 exec_hi, 0xf
        buffer_load_dword v{dst}, v10, s[{sW}:{sW+3}], s48 offen
        s_mov_b32 exec_hi, -1
        """)
    def x_loop(lbl, end_s):
        a(f"""
        {lbl}:
        s_cmp_ge_u32 s50, 99
        s_cselect_b32 s51, 99, 0
        s_sub_u32 s50, s50, s51
        s_lshl_b32 s51, s50, 10
        s_mov_b32 m0, s51
        s_add_i32 s51, s51, s49
        s_cmp_lt_i32 s51, 0
        s_cselect_b32 s58, 0x7fff0000, 0
        v_or_b32 v11, s58, v12
        s_max_i32 s51, s51, 0
        s_add_u32 s50, s50, 4
        s_add_u32 s59, s59, 4
        buffer_load_dwordx4 v11, s[{sX}:{sX+3}], s51 offen lds
        s_cmp_lt_u32 s59, {end_s}
        s_cbranch_scc1 {lbl}
        """)
    a(f"""
    s_mul_i32 s49, s{sMTL}, {288*288}
    s_sub_i32 s49, s49, {64*288}
    s_cmp_ge_u32 s{sWV}, 4
    s_cbranch_scc1 L_hfirst
    s_cmp_ge_u32 s{sWV}, 2
    s_cbranch_scc1 L_nopf0
    """)
    w_share(251)
    a(f"""
    L_nopf0:
    s_mov_b32 s59, s{sWV}
    s_mul_i32 s60, s{sNG}, 11
    s_add_u32 s60, s60, s59
    s_mov_b32 s50, s60
    """)
    x_loop("L_xl0", 12)
    if "xfine" in OPT: stamp(a, 2)
    a(f"s_cmp_lt_u32 s{sWV}, 2\ns_cbranch_scc1 L_nopf1\ns_mov_b32 s62, s50")
    w_share(251)
    a("s_mov_b32 s50, s62\nL_nopf1:")
    x_loop("L_xl1", 99)
    if "xfine" in OPT: stamp(a, 3)
    a("s_branch L_xdone\nL_hfirst:")
    a(f"""
    s_sub_u32 s61, s{sWV}, 4
    s_lshl_b32 s56, s54, 2
    s_add_u32 s56, s56, 1
    s_lshl_b32 s57, s56, 1
    s_mul_i32 s58, s{sNG}, s56
    s_lshl_b32 s58, s58, 3
    s_mul_i32 s59, s61, s57
    s_add_u32 s58, s58, s59
    v_add_u32 v10, s58, v0
    v_mul_u32_u24 v11, 911, v10
    v_lshrrev_b32 v11, 16, v11
    v_mul_u32_u24 v13, 72, v11
    v_sub_u32 v10, v10, v13
    v_lshlrev_b32 v10, 7, v10
    s_lshl_b32 s58, s53, 2
    s_sub_u32 s58, s58, 1
    v_add_u32 v11, s58, v11
    s_mov_b32 s58, 82944
    v_mul_lo_u32 v11, v11, s58
    v_add_u32 v10, v10, v11
    s_mul_i32 s58, s{sCP}, 9216
    v_add_u32 v10, s58, v10
    v_cmp_gt_u32 vcc, s57, v0
    s_nop 1
    s_mov_b64 exec, vcc
    buffer_load_dword v251, v10, s[{sW}:{sW+3}], 0 offen
    s_mov_b64 exec, -1
    """)
    if "xfine" in OPT: stamp(a, 2)
    a(f"""
    s_add_u32 s56, s53, s61
    s_lshl_b32 s56, s56, 1
    s_mul_i32 s57, s56, 165888
    s_mul_i32 s58, s{sCP}, 9216
    s_add_u32 s57, s57, s58
    s_sub_u32 s58, s57, 82944
    s_cmp_eq_u32 s56, 0
    s_cselect_b32 s58, 0, s58
    s_cselect_b32 s59, 0x7fff0000, 0
    s_cmp_ge_u32 s61, s54
    s_cselect_b32 s60, 0x7fff0000, 0
    s_or_b32 s59, s59, s60
    v_or_b32 v24, s59, v3
    v_or_b32 v25, s60, v3
    s_waitcnt vmcnt(0)
    """)
    if "xfine" in OPT: stamp(a, 3)
    a(f"""
    buffer_load_dwordx4 v[{PL}:{PL+3}], v25, s[{sW}:{sW+3}], s57 offen
    buffer_load_dwordx4 v[{PL+4}:{PL+7}], v24, s[{sW}:{sW+3}], s58 offen
    s_add_u32 s58, s57, 82944
    buffer_load_dwordx4 v[{PL+8}:{PL+11}], v25, s[{sW}:{sW+3}], s58 offen
    s_add_u32 s58, s57, 165888
    buffer_load_dwordx4 v[{PL+12}:{PL+15}], v25, s[{sW}:{sW+3}], s58 offen
    s_add_u32 s58, s57, 248832
    buffer_load_dwordx4 v[{PL+16}:{PL+19}], v25, s[{sW}:{sW+3}], s58 offen
    """)
    a("L_xdone:")
    if "pfine" in OPT: stamp(a, 2)
    srd(a, sWo, 8, 9, 144 * 288)
    srd(a, sG, 14, 15, GF_SIZE)
    a(f"s_add_u32 s48, s14, {E_OFF}\ns_addc_u32 s49, s15, 0")
    srd(a, sE, 48, 49, E_SIZE)
    a(f"s_cmp_ge_u32 s{sWV}, 4\ns_cbranch_scc1 L_helper")
    gen_mfma(a)
    a("L_helper:")
    gen_helper(a)
    a("L_end:\ns_endpgm\nL_code_end:")
    a('.section .rodata,"a"')
    a(".p2align 6")
    kernel_desc(a, NAME, 256)
    return a.text()
M_, Y_ = 16, 52
XA, XB = 88, 128
GR = 168
WA, WB = GR + 32, GR + 40
vS, vW, vG, vXb, vSb, vWb = 2, 4, 5, 6, 7, 8
vS1, vSb1 = 15, 216
vP = ((3, 10), (11, 12))
vPt = 13
vW0 = 14
sD0, sD1 = 76, 77
sSlotW, sSlotS = 61, 62
sGc, sGp, sGo0, sGo1 = 64, 65, 66, 67
class Sched:
    def __init__(self, a):
        self.a = a; self.lds = []; self.vm = []
    def lds_issue(self, tag): self.lds.append(tag)
    def vm_issue(self, tag): self.vm.append(tag)
    def need(self, ltags=(), vtags=()):
        parts = []
        li = max((i for i, t in enumerate(self.lds) if t in ltags), default=-1)
        if li >= 0:
            n = min(len(self.lds) - 1 - li, 15)
            parts.append(f"lgkmcnt({n})")
            self.lds = self.lds[len(self.lds) - n:] if n > 0 else []
        vi = max((i for i, t in enumerate(self.vm) if t in vtags), default=-1)
        if vi >= 0:
            n = len(self.vm) - 1 - vi
            parts.append(f"vmcnt({n})")
            self.vm = self.vm[len(self.vm) - n:] if n > 0 else []
        if parts:
            self.a("s_waitcnt " + " ".join(parts))
def sp_order():
    r = []
    for i in range(10):
        if i >= 1: r.append((0, i - 1, i))
        if i <= 8: r.append((1, i, i))
    return r
def emit_sp(a, sc, acc, xset, wfrag, wtags, xp, fillers, pre=None, lookahead=4):
    order = sp_order()
    for n, (s, T, i) in enumerate(order):
        if pre is not None:
            for f in pre[n]: f()
        pend_l = set(sc.lds); pend_v = set(sc.vm)
        now_l = ({f"{xp}{i}"} | set(wtags[s][0])) & pend_l
        now_v = set(wtags[s][1]) & pend_v
        if now_l or now_v:
            lt = set()
            for (s2, T2, i2) in order[n:n + lookahead]:
                lt |= {f"{xp}{i2}"} | set(wtags[s2][0])
            lt &= pend_l
            sc.need(lt if now_l else (), now_v)
        d = acc + 4 * T
        a(f"v_mfma_f32_16x16x32_bf16 v[{d}:{d+3}], v[{wfrag[s]}:{wfrag[s]+3}], v[{xset+4*i}:{xset+4*i+3}], v[{d}:{d+3}]")
        for f in fillers[n]: f()
def place(items, start, step=1, ngaps=18):
    g = [[] for _ in range(ngaps)]
    for k, it in enumerate(items):
        g[start + k * step].append(it)
    return g
def merge(*gs):
    return [sum((g[n] for g in gs), []) for n in range(len(gs[0]))]
def gen_mfma(a):
    ins = lambda t: (lambda: a(t))
    a(f"v_mov_b32 v{vW0}, v3")
    for i in range(1, 4):
        a(f"v_add_u32 v{16+i}, {i*(165888-1024)}, v3")
    a(f"""
    s_mul_i32 s48, s{sWV}, {4*165888}
    s_lshl_b32 s49, s{sWV}, 12
    s_add_u32 m0, s49, {LDS_W}
    s_nop 0
    buffer_load_dwordx4 v3, s[{sW}:{sW+3}], s48 offen lds
    """)
    for i in range(1, 4):
        a(f"buffer_load_dwordx4 v{16+i}, s[{sW}:{sW+3}], s48 offen offset:{i*1024} lds")
    if "pfine" in OPT: stamp(a, 3)
    a("s_setprio 1")
    a(f"s_lshr_b32 s{sT}, s{sWV}, 1\ns_and_b32 s{sT+1}, s{sWV}, 1")
    a(f"""
    v_and_b32 v9, 15, v0
    v_lshrrev_b32 v10, 5, v0
    v_lshlrev_b32 v10, 1, v10
    v_sub_u32 v9, v9, v10
    s_lshl_b32 s{sT+2}, s{sT}, 3
    s_sub_u32 s{sT+2}, 12, s{sT+2}
    v_add_u32 v9, s{sT+2}, v9
    v_bfe_u32 v10, v0, 4, 1
    v_lshlrev_b32 v10, 4, v10
    v_bfe_u32 v11, v9, 2, 1
    v_lshlrev_b32 v11, 4, v11
    v_xor_b32 v11, v11, v10
    v_lshlrev_b32 v{vSb1}, 5, v9
    v_add_u32 v{vSb1}, v{vSb1}, v11
    v_add_u32 v{vSb1}, {LDS_S}, v{vSb1}
    v_xor_b32 v{vSb}, 16, v{vSb1}
    v_add_u32 v{vSb}, 128, v{vSb}
    v_bfe_u32 v9, v0, 1, 3
    v_lshrrev_b32 v11, 5, v0
    v_sub_u32 v9, v9, v11
    v_lshlrev_b32 v9, 2, v9
    v_and_b32 v11, 1, v0
    v_add_u32 v9, v9, v11
    s_lshl_b32 s{sT+2}, s{sT}, 4
    s_sub_u32 s{sT+2}, 24, s{sT+2}
    v_add_u32 v9, s{sT+2}, v9
    v_mul_u32_u24 v{vXb}, 288, v9
    v_add_u32 v{vXb}, v{vXb}, v10
    """)
    tr_lane(a, vWb, 9, 10)
    a(f"""
    s_lshl_b32 s{sT+2}, s{sT+1}, 5
    v_xor_b32 v{vWb}, s{sT+2}, v{vWb}
    s_lshl_b32 s{sT+2}, s{sT}, 12
    s_add_u32 s{sT+2}, s{sT+2}, {LDS_W}
    v_add_u32 v{vWb}, s{sT+2}, v{vWb}
    s_mul_i32 s{sT+2}, s{sNG}, 147456
    s_lshl_b32 s{sT+3}, s{sT}, 13
    s_add_u32 s{sT+2}, s{sT+2}, s{sT+3}
    s_lshl_b32 s{sT+3}, s{sT+1}, 10
    s_add_u32 s{sT+2}, s{sT+2}, s{sT+3}
    v_lshlrev_b32 v{vG}, 4, v0
    v_add_u32 v{vG}, s{sT+2}, v{vG}
    """)
    for r in range(M_, Y_ + 36):
        a(f"v_mov_b32 v{r}, 0")
    a(f"""
    s_mov_b32 s{sSlotW}, 0
    s_mov_b32 s{sSlotS}, 0
    s_mov_b32 s{sIt}, 0
    s_mov_b32 s{sGc}, s{sC0}
    s_mov_b32 s{sGp}, 0
    v_mov_b32 v{vS}, v{vSb}
    v_mov_b32 v{vS1}, v{vSb1}
    v_mov_b32 v{vW}, v{vWb}
    """)
    PF = "pfine" in OPT
    stamp(a, 4 if PF else 1)
    a("s_waitcnt vmcnt(4)\ns_barrier")
    stamp(a, 5 if PF else 2)
    for i in range(1, 4):
        a(f"v_add_u32 v{123+i}, {i*(165888-1024)}, v{vW0}")
    a(f"""
    s_mul_i32 s48, s{sWV}, {4*165888}
    s_add_u32 s48, s48, 9216
    s_lshl_b32 s49, s{sWV}, 12
    s_add_u32 m0, s49, {LDS_W + WSLOT}
    s_nop 0
    buffer_load_dwordx4 v{vW0}, s[{sW}:{sW+3}], s48 offen lds
    """)
    for i in range(1, 4):
        a(f"buffer_load_dwordx4 v{123+i}, s[{sW}:{sW+3}], s48 offen offset:{i*1024} lds")
    a(f"""
    s_mul_i32 s48, s{sWV}, 45
    v_add_u32 v124, s48, v0
    v_mul_u32_u24 v125, 1821, v124
    v_lshrrev_b32 v125, 16, v125
    v_mul_u32_u24 v126, 36, v125
    v_sub_u32 v124, v124, v126
    s_lshr_b32 s48, s2, 3
    s_and_b32 s49, s48, 1
    s_mul_i32 s49, s49, 36
    v_add_u32 v124, s49, v124
    v_lshlrev_b32 v124, 7, v124
    v_mul_u32_u24 v125, 9216, v125
    v_add_u32 v124, v124, v125
    s_lshr_b32 s48, s48, 1
    s_mul_i32 s48, s48, 165888
    s_add_u32 s48, s48, {4*9216}
    s_mov_b32 exec_hi, 0x1fff
    buffer_load_dword v251, v124, s[{sW}:{sW+3}], s48 offen
    s_mov_b32 exec_hi, -1
    s_lshr_b32 s48, s2, 3
    s_mul_i32 s48, s48, 12
    s_mul_i32 s49, s{sWV}, 3
    s_add_u32 s48, s48, s49
    v_add_u32 v124, s48, v0
    v_lshlrev_b32 v124, 7, v124
    s_mov_b64 exec, 7
    buffer_load_dword v250, v124, s[{sWo}:{sWo+3}], 0 offen
    s_mov_b64 exec, -1
    """)
    a("s_waitcnt vmcnt(6)\ns_barrier")
    stamp(a, 6 if PF else 3)
    sc = Sched(a)
    def rd_x(xset, i, vaddr, imm, tag):
        def f():
            a(f"ds_read_b128 v[{xset+4*i}:{xset+4*i+3}], v{vaddr} offset:{imm}")
            sc.lds_issue(tag)
        return f
    def rd_w(reg, h, imm, tag):
        def f():
            a(f"ds_read_b64_tr_b16 v[{reg+2*h}:{reg+2*h+1}], v{vW} offset:{imm}")
            sc.lds_issue(tag)
        return f
    def a_reads(sp, xset, wreg, p):
        w = lambda s: [rd_w(wreg + 4 * s, h, (2 * sp + 8 * s) * 1024 + h * 256, f"{p}w{s}") for h in range(2)]
        x = lambda i: rd_x(xset, i, vS if sp == 0 else vS1, 512 * i, f"{p}x{i}")
        return w(1) + [x(0)] + w(0) + [x(i) for i in range(1, 10)]
    def b_reads(sp, xset, p):
        return [rd_x(xset, i, vP[sp][i >> 3], 9216 * (i & 7), f"{p}x{i}") for i in range(10)]
    def x_addr(sp):
        r, rb = vP[sp]; sd = (sD0, sD1)[sp]
        return [ins(f"v_add_u32 v{r}, s{sd}, v{vXb}"), ins(f"v_lshrrev_b32 v{vPt}, 2, v{r}"), ins(f"v_and_b32 v{vPt}, 64, v{vPt}"),
                ins(f"v_xor_b32 v{r}, v{r}, v{vPt}"), ins(f"v_add_u32 v{rb}, {8*9216}, v{r}")]
    def spread4(items):
        g = [[] for _ in range(18)]
        g[0] += items[:2]; g[1].append(items[2]); g[2].append(items[3]); g[3].append(items[4])
        return g
    def gload(setidx, sp, s):
        reg = GR + 16 * setidx + 8 * sp + 4 * s
        so = sGo0 if sp == 0 else sGo1
        def f():
            a(f"buffer_load_dwordx4 v[{reg}:{reg+3}], v{vG}, s[{sG}:{sG+3}], s{so} offen offset:{s*2048} sc1")
            sc.vm_issue(f"g{setidx}_{sp}_{s}")
        return f
    def g_advance():
        return [ins(f"s_cmp_ge_u32 s{sGp}, 9\ns_cselect_b32 s{sGo0}, {GF_PROD}, 0"),
                ins(f"s_lshl_b32 s{sGo1}, s{sGc}, 14\ns_add_u32 s{sGo0}, s{sGo0}, s{sGo1}"),
                ins(f"s_add_u32 s{sGo1}, s{sGo0}, 4096\ns_add_u32 s{sGp}, s{sGp}, 1"),
                ins(f"s_add_u32 s{sGc}, s{sGc}, 1\ns_cmp_eq_u32 s{sGc}, 9"),
                ins(f"s_cselect_b32 s{sGc}, 0, s{sGc}")]
    def barrier_drain():
        sc.need(set(sc.lds), ())
        a("s_barrier")
    def barrier_drain_vm():
        sc.need(set(sc.lds), ())
        a("s_waitcnt vmcnt(2)\ns_barrier")
    for f in a_reads(0, XA, WA, "A"): f()
    def phase_a_iter(last, gset):
        fill = place(a_reads(1, XB, WB, "B"), 0)
        if gset is not None:
            fill = merge(fill, place(g_advance(), 13))
        if last:
            fill = merge(fill, place([ins(f"s_lshl_b32 s{sD1}, s{sC0}, 5\ns_add_u32 s{sD1}, s{sD1}, 576"), ins(f"s_add_u32 s{sD0}, s{sD1}, 2304")], 10),
                         place(x_addr(0), 13))
        emit_sp(a, sc, M_, XA, (WA, WA + 4), ((["Aw0"], []), (["Aw1"], [])), "Ax", fill)
        if not last:
            upd = [ins(f"s_add_u32 s{sSlotW}, s{sSlotW}, {WSLOT}\ns_cmp_eq_u32 s{sSlotW}, {3*WSLOT}"),
                   ins(f"s_cselect_b32 s{sSlotW}, 0, s{sSlotW}\ns_xor_b32 s{sSlotS}, s{sSlotS}, {SSLOT}\nv_add_u32 v{vW}, s{sSlotW}, v{vWb}"),
                   ins(f"v_add_u32 v{vS}, s{sSlotS}, v{vSb}\nv_add_u32 v{vS1}, s{sSlotS}, v{vSb1}")]
            fill = merge(place(upd + [barrier_drain if gset is not None else barrier_drain_vm], 0), place(a_reads(0, XA, WA, "A"), 4))
        else:
            fill = merge(place([ins("s_nop 0"), ins("s_nop 0"), ins("s_nop 0"), barrier_drain], 0), spread4(x_addr(1)), place(b_reads(0, XA, "A"), 4))
        if gset is not None:
            fill = merge(fill, place([gload(gset, 0, 0), gload(gset, 0, 1), gload(gset, 1, 0), gload(gset, 1, 1)], 14))
        emit_sp(a, sc, M_, XB, (WB, WB + 4), ((["Bw0"], []), (["Bw1"], [])), "Bx", fill)
    a("L_A:")
    st = list(sc.lds)
    phase_a_iter(False, None)
    assert sc.lds == st
    if PF: stamp_dyn(a, 7, sIt)
    a(f"s_add_u32 s{sIt}, s{sIt}, 1\ns_cmp_lt_u32 s{sIt}, 7\ns_cbranch_scc1 L_A")
    phase_a_iter(False, 0)
    if PF: stamp(a, 14)
    phase_a_iter(True, 1)
    stamp(a, 15 if PF else 4)
    if PF: HF_OFF[0] = True
    a(f"s_mov_b32 s{sIt}, s{sC0}")
    sTrip = sT + 4
    def b_chunk(acc, u, arr, extra0=None, extra1=None, pre0=None, pre1=None):
        cur, nxt = u, (u + 2) % 3
        wr = GR + 16 * cur
        upd = [ins(f"s_add_u32 s{sIt}, s{sIt}, 1\ns_cmp_eq_u32 s{sIt}, 9"),
               ins(f"s_cselect_b32 s{sIt}, 0, s{sIt}\ns_lshl_b32 s{sD1}, s{sIt}, 5")]
        if arr is None:
            upd.append(ins(f"s_cmp_eq_u32 s{sTrip}, 2\ns_cselect_b32 s{sT+1}, 0, 576\ns_add_u32 s{sD1}, s{sD1}, s{sT+1}\ns_add_u32 s{sD0}, s{sD1}, 2304"))
        elif arr == 1:
            upd.append(ins(f"s_add_u32 s{sD1}, s{sD1}, 576\ns_add_u32 s{sD0}, s{sD1}, 2304"))
        else:
            upd.append(ins(f"s_add_u32 s{sD0}, s{sD1}, 2304"))
        fill = merge(place(b_reads(1, XB, "B"), 0), place(upd, 10), place(x_addr(1), 13))
        if extra0: fill = merge(fill, extra0)
        emit_sp(a, sc, acc, XA, (wr, wr + 4), (([], [f"g{cur}_0_0"]), ([], [f"g{cur}_0_1"])), "Ax", fill, pre0)
        fill = merge(place(g_advance(), 0), spread4(x_addr(0)), place(b_reads(0, XA, "A"), 4),
                     place([gload(nxt, 0, 0), gload(nxt, 0, 1), gload(nxt, 1, 0), gload(nxt, 1, 1)], 14))
        if extra1: fill = merge(fill, extra1)
        emit_sp(a, sc, acc, XB, (wr + 8, wr + 12), (([], [f"g{cur}_1_0"]), ([], [f"g{cur}_1_1"])), "Bx", fill, pre1)
    a(f"s_mov_b32 s{sTrip}, 0")
    a("L_B1:")
    st_l, st_v = list(sc.lds), list(sc.vm)
    for u in range(3):
        b_chunk(Y_, u, 1 if u < 2 else None)
    stamp_dyn(a, 5, sTrip) if "pre" in OPT else None
    a("s_barrier")
    stamp_dyn(a, 5, sTrip) if "pre" not in OPT else None
    a(f"s_add_u32 s{sTrip}, s{sTrip}, 1\ns_cmp_lt_u32 s{sTrip}, 3\ns_cbranch_scc1 L_B1")
    assert sc.lds == st_l and sc.vm == st_v
    a(f"""
    s_mul_i32 s{sT+1}, s{sWV}, 9216
    s_add_u32 s{sT+1}, s{sT+1}, {LDS_Y0}
    v_lshlrev_b32 v9, 4, v0
    v_add_u32 v9, s{sT+1}, v9
    """)
    order = sp_order()
    pre = [[] for _ in range(18)]
    seen = set()
    for n, (s, T, i) in enumerate(order):
        if T not in seen:
            seen.add(T)
            m = max(n - 1, 0)
            for r in range(4):
                pre[m if n > 0 else 0].append(ins(f"v_add_f32 v{Y_+4*T+r}, v{M_+4*T+r}, v{Y_+4*T+r}"))
    def ywrite(T):
        def f():
            a(f"ds_write_b128 v9, v[{Y_+4*T}:{Y_+4*T+3}] offset:{T*1024}")
            sc.lds_issue(f"yw{T}")
        return f
    b_chunk(M_, 0, 0, pre0=pre, extra1=place([ywrite(T) for T in range(9)], 0, 2))
    def bar_y0():
        sc.need({f"yw{T}" for T in range(9)}, ())
        a("s_barrier")
    b_chunk(M_, 1, 0, extra0=place([bar_y0], 12))
    b_chunk(M_, 2, 0)
    stamp(a, 8)
    a(f"s_mov_b32 s{sTrip}, 1")
    a("L_B2:")
    assert sc.lds == st_l and sc.vm == st_v, (sc.lds, st_l, sc.vm, st_v)
    for u in range(3):
        b_chunk(M_, u, 0)
    stamp_dyn(a, 8, sTrip)
    a(f"s_add_u32 s{sTrip}, s{sTrip}, 1\ns_cmp_lt_u32 s{sTrip}, 3\ns_cbranch_scc1 L_B2")
    a("s_setprio 0")
    a(f"""
    s_lshr_b32 s{sT}, s{sWV}, 1
    s_and_b32 s{sT+1}, s{sWV}, 1
    s_mul_i32 s{sT+2}, s{sWV}, 5120
    s_add_u32 s{sT+2}, s{sT+2}, {LDS_Y1}
    v_lshlrev_b32 v9, 4, v0
    v_add_u32 v10, s{sT+2}, v9
    s_xor_b32 s{sT+2}, s{sWV}, 2
    s_mul_i32 s{sT+2}, s{sT+2}, 5120
    s_add_u32 s{sT+2}, s{sT+2}, {LDS_Y1}
    v_add_u32 v11, s{sT+2}, v9
    """)
    act_consts(a, f"s{sT+1}", sT + 5, sT + 6, 12)
    a(f"""
    s_mov_b32 s56, s{sT+5}
    s_mov_b32 s57, s{sT+5}
    s_mov_b32 s58, s{sT+6}
    s_mov_b32 s59, s{sT+6}
    s_mov_b32 s60, 1.0
    s_mov_b32 s61, 1.0
    v_mov_b32 v14, v12
    v_mov_b32 v15, v12
    """)
    a(f"""
    s_mul_i32 s49, s{sMT}, {9*2*18*512}
    s_lshl_b32 s48, s48, 9
    s_add_u32 s48, s48, s49
    s_add_u32 s48, s48, {18*512}
    s_mul_i32 s49, s{sT}, {2*18*512}
    s_add_u32 s48, s48, s49
    v_lshlrev_b32 v13, 3, v0
    v_add_u32 v13, s48, v13
    s_waitcnt lgkmcnt(0)
    s_cmp_eq_u32 s{sT}, 0
    s_cbranch_scc0 L_t_k1
    """)
    K = XA
    def tail(keep, send, lbl):
        for i, T in enumerate(send):
            a(f"ds_write_b128 v10, v[{M_+4*T}:{M_+4*T+3}] offset:{i*1024}")
        a("s_waitcnt lgkmcnt(0)\ns_barrier")
        for i, T in enumerate(keep):
            a(f"ds_read_b128 v[{K+4*i}:{K+4*i+3}], v11 offset:{i*1024}")
        for i, T in enumerate(keep):
            a(f"s_waitcnt lgkmcnt({len(keep)-1-i})")
            for r in (0, 2):
                a(f"v_pk_add_f32 v[{M_+4*T+r}:{M_+4*T+r+1}], v[{M_+4*T+r}:{M_+4*T+r+1}], v[{K+4*i+r}:{K+4*i+r+1}]")
        activation_pk(a, [M_ + 4*T + r for T in keep for r in (0, 2)], 56, 58, 60, 14, Y_)
        for i, T in enumerate(keep):
            a(f"s_mov_b32 s49, {i*2*2*18*512}")
            a(f"buffer_store_dwordx2 v[{Y_+2*i}:{Y_+2*i+1}], v13, s[{sE}:{sE+3}], s49 offen sc1")
    a("s_nop 7")
    tail([0, 2, 4, 6, 8], [1, 3, 5, 7], "k0")
    a("s_branch L_t_j\nL_t_k1:\ns_nop 7")
    tail([1, 3, 5, 7], [0, 2, 4, 6, 8], "k1")
    a("L_t_j:")
    stamp(a, 11)
    z_unit_setup(a, 1)
    z_units(a, [sWV], "m", 0)
    a("s_waitcnt lgkmcnt(0)\ns_barrier")
    stamp(a, 12)
    HF_OFF[0] = False
    stamp_flush(a)
    a("s_endpgm")
def z_unit_setup(a, q):
    a(f"""
    s_mul_i32 s48, s{sMT}, {9*2*18*512}
    s_mul_i32 s49, s{sNG}, {2*18*512}
    s_add_u32 s48, s48, s49
    s_add_u32 s48, s48, {q*18*512}
    v_lshlrev_b32 v14, 3, v0
    v_add_u32 v14, s48, v14
    v_lshlrev_b32 v15, 4, v0
    v_add_u32 v15, {LDS_Z}, v15
    """)
def z_units(a, cts, lbl, nap):
    ZL, ZZ, ZT, ZM = 128, 140, 146, 150
    for u, c in enumerate(cts):
        a(f"s_lshl_b32 s{50+2*u}, s{c}, 9\ns_add_u32 s{51+2*u}, s{50+2*u}, 4608")
    a(f"s_mov_b32 s{sSpin}, 0\nL_zp_{lbl}:")
    for u in range(len(cts)):
        a(f"buffer_load_dwordx2 v[{ZL+4*u}:{ZL+4*u+1}], v14, s[{sE}:{sE+3}], s{50+2*u} offen sc1")
        a(f"buffer_load_dwordx2 v[{ZL+4*u+2}:{ZL+4*u+3}], v14, s[{sE}:{sE+3}], s{51+2*u} offen sc1")
    a(f"s_add_u32 s{sSpin}, s{sSpin}, 1\ns_waitcnt vmcnt(0)")
    a(f"v_max_u32 v{ZM}, v{ZL}, v{ZL+1}\nv_max3_u32 v{ZM}, v{ZM}, v{ZL+2}, v{ZL+3}")
    for u in range(1, len(cts)):
        a(f"v_max3_u32 v{ZM}, v{ZM}, v{ZL+4*u}, v{ZL+4*u+1}\nv_max3_u32 v{ZM}, v{ZM}, v{ZL+4*u+2}, v{ZL+4*u+3}")
    a(f"""
    v_cmp_eq_u32 vcc, -1, v{ZM}
    s_cmp_ge_u32 s{sSpin}, {SPIN_MAX}
    s_cbranch_scc1 L_zd_{lbl}
    s_cbranch_vccz L_zd_{lbl}
    """)
    if nap: a(f"s_sleep {nap}")
    a(f"s_branch L_zp_{lbl}\nL_zd_{lbl}:")
    for u, c in enumerate(cts):
        z_mul(a, ZZ + 2*u, ZL + 4*u, ZL + 4*u + 2, ZT)
        z_mul(a, ZZ + 2*u + 1, ZL + 4*u + 1, ZL + 4*u + 3, ZT)
        a(f"""
        s_lshr_b32 s48, s{c}, 1
        s_lshl_b32 s48, s48, 10
        s_and_b32 s49, s{c}, 1
        s_lshl_b32 s49, s49, 3
        s_add_u32 s48, s48, s49
        v_add_u32 v{ZM}, s48, v15
        ds_write_b64 v{ZM}, v[{ZZ+2*u}:{ZZ+2*u+1}]
        """)
WO = 64
def gen_helper(a):
    sH = sT
    sCw, sSl, sCs, sSs = 72, 73, 74, 75
    vSx, vSw, vPat, vLo = 20, 21, 22, 23
    SB, SD, ID, IJ = 28, 40, 52, 56
    a(f"s_sub_u32 s{sH}, s{sWV}, 4")
    if "pfine" in OPT: HF_OFF[0] = True
    for i in range(4):
        a(f"v_add_u32 v{16+i}, {i*(165888-1024)}, v3")
    def wdma():
        a(f"""
        s_mul_i32 s50, s{sH}, {4*165888}
        s_mul_i32 s49, s{sCw}, 9216
        s_add_u32 s50, s50, s49
        s_lshl_b32 s49, s{sH}, 12
        s_add_u32 s49, s49, s{sSl}
        s_add_u32 m0, s49, {LDS_W}
        s_add_u32 s{sSl}, s{sSl}, {WSLOT}
        s_cmp_eq_u32 s{sSl}, {3*WSLOT}
        s_cselect_b32 s{sSl}, 0, s{sSl}
        """)
        next_mod(a, sCw, 9)
        for i in range(4):
            if "nodma" in OPT and wdma.n > 0:
                a(f"buffer_load_dword v112, v0, s[{sD}:{sD+3}], 0 offen")
            else:
                a(f"buffer_load_dwordx4 v{16+i}, s[{sW}:{sW+3}], s50 offen offset:{i*1024} lds")
        wdma.n += 1
    wdma.n = 0
    PL = 176
    a(f"s_mov_b32 s{sCw}, 2\ns_mov_b32 s{sSl}, {2*WSLOT}")
    a(f"""
    v_bfe_u32 v24, v0, 1, 3
    v_lshlrev_b32 v24, 2, v24
    v_and_b32 v25, 1, v0
    v_add_u32 v24, v24, v25
    v_lshrrev_b32 v25, 5, v0
    v_lshl_add_u32 v24, v25, 1, v24
    v_mul_u32_u24 v{vSx}, 288, v24
    v_bfe_u32 v24, v0, 4, 1
    v_lshl_add_u32 v{vSx}, v24, 4, v{vSx}
    s_mul_i32 s48, s{sH}, 9216
    v_add_u32 v{vSx}, s48, v{vSx}
    v_and_b32 v24, 15, v0
    v_lshlrev_b32 v24, 5, v24
    v_bfe_u32 v26, v0, 2, 1
    v_xor_b32 v26, v26, v25
    v_lshl_add_u32 v24, v26, 4, v24
    v_bfe_u32 v26, v0, 4, 1
    v_lshl_add_u32 v24, v26, 3, v24
    s_lshl_b32 s48, s{sH}, 9
    s_add_u32 s48, s48, {LDS_S}
    v_add_u32 v{vSw}, s48, v24
    v_sub_u32 v{vLo}, 1, v25
    v_bfe_u32 v24, v0, 4, 1
    v_mul_u32_u24 v{vPat}, 544, v24
    v_bfe_u32 v24, v0, 2, 2
    v_lshl_add_u32 v{vPat}, v24, 6, v{vPat}
    v_and_b32 v24, 3, v0
    v_lshl_add_u32 v{vPat}, v24, 3, v{vPat}
    """)
    a(f"""
    v_lshrrev_b32 v24, 3, v0
    v_lshrrev_b32 v26, 4, v0
    v_xor_b32 v24, v24, v26
    v_and_b32 v24, 1, v24
    v_and_b32 v26, 1, v0
    v_lshlrev_b32 v26, 4, v26
    v_mov_b32 v27, 0x3f80
    v_lshlrev_b32 v27, v26, v27
    v_lshlrev_b32 v28, 15, v25
    v_lshlrev_b32 v28, v26, v28
    v_or_b32 v28, v28, v27
    v_bfe_u32 v26, v0, 1, 2
    v_lshl_or_b32 v26, v24, 2, v26
    """)
    for r in range(4):
        a(f"v_cmp_eq_u32 vcc, {r}, v26\ns_nop 1\nv_cndmask_b32 v{ID+r}, 0, v27, vcc\nv_cndmask_b32 v{IJ+r}, 0, v28, vcc")
    srd(a, sF, 14, 15, FL_OFF + FL_SIZE)
    def s_reads():
        if "nos" in OPT and s_compute.n > 0:
            a("v_lshlrev_b32 v113, 2, v0\nds_read_b32 v114, v113\nds_read_b32 v114, v113\nds_read_b32 v114, v113"); return
        a(f"""
        s_lshl_b32 s48, s{sCs}, 5
        v_add_u32 v24, s48, v{vSx}
        v_lshrrev_b32 v25, 2, v24
        v_and_b32 v25, 64, v25
        v_xor_b32 v24, v24, v25
        v_add_u32 v25, {8*9216}, v24
        ds_read_b128 v[{SB}:{SB+3}], v24
        ds_read_b128 v[{SB+4}:{SB+7}], v24 offset:{4*9216}
        ds_read_b128 v[{SB+8}:{SB+11}], v25
        """)
    def s_compute(between=None):
        if "nos" in OPT and s_compute.n > 0: return
        a(f"v_add_u32 v26, s{sSs}, v{vSw}")
        a("s_setprio 3")
        for k in range(3):
            a(f"v_mfma_f32_16x16x32_bf16 v[{SD+4*k}:{SD+4*k+3}], v[{ID}:{ID+3}], v[{SB+4*k}:{SB+4*k+3}], 0")
        a("s_setprio 0")
        if between: between()
        else: a("s_nop 7")
        for k in range(3):
            if k == 2: a("s_nop 3")
            a(f"v_cvt_pk_bf16_f32 v{SD+4*k}, v{SD+4*k}, v{SD+4*k+1}\nv_cvt_pk_bf16_f32 v{SD+4*k+1}, v{SD+4*k+2}, v{SD+4*k+3}")
            if k == 2:
                lab = s_compute.n; s_compute.n += 1
                a(f"s_cmp_eq_u32 s{sH}, 3\ns_cbranch_scc1 L_s3_{lab}")
            a(f"ds_write_b64 v26, v[{SD+4*k}:{SD+4*k+1}] offset:{2048*k}")
        a(f"L_s3_{lab}:")
    s_compute.n = 0
    PB, PD, PK = 64, 128, 160
    def prod_stage():
        a(f"""
        s_mul_i32 s57, s{sH}, 5120
        s_add_u32 s57, s57, {LDS_W + 3*WSLOT - 4*5120}
        v_lshlrev_b32 v24, 4, v0
        v_add_u32 v24, s57, v24
        """)
        for k in range(5):
            a(f"ds_write_b128 v24, v[{PL+4*k}:{PL+4*k+3}] offset:{1024*k}")
        a("s_waitcnt lgkmcnt(0)")
        for c, e, o in ((0, 0, 1024), (2, 0, 2048), (1, 3072, 2048), (3, 3072, 4096)):
            a(f"v_mul_u32_u24 v26, {o}, v{vLo}\nv_sub_u32 v27, 1, v{vLo}\nv_mul_u32_u24 v27, {e}, v27\nv_add3_u32 v26, v26, v27, v{vPat}")
            a(f"v_add_u32 v26, s57, v26\nv_xor_b32 v27, 32, v26")
            for nh in range(2):
                b = PB + 8 * c + 4 * nh
                for h in range(2):
                    a(f"ds_read_b64_tr_b16 v[{b+2*h}:{b+2*h+1}], v{26+nh} offset:{h*256}")
        a("s_waitcnt lgkmcnt(0)")
    def production():
        a("s_setprio 3")
        for f in range(8):
            a(f"v_mfma_f32_16x16x32_bf16 v[{PD+4*f}:{PD+4*f+3}], v[{IJ}:{IJ+3}], v[{PB+4*f}:{PB+4*f+3}], 0")
        a("s_setprio 0")
        a(f"""
        s_add_u32 s57, s53, s{sH}
        s_and_b32 s58, s57, 3
        s_lshl_b32 s58, s58, 1
        s_lshr_b32 s57, s57, 2
        s_add_u32 s57, s57, s58
        s_lshl_b32 s58, s{sCP}, 3
        s_add_u32 s57, s57, s58
        s_lshl_b32 s57, s57, 11
        s_mul_i32 s58, s{sNG}, 147456
        s_add_u32 s57, s57, s58
        s_cmp_ge_u32 s{sH}, s54
        s_cselect_b32 s57, 0x7f000000, s57
        s_add_u32 s58, s57, {GF_PROD}
        v_and_b32 v26, 15, v0
        v_lshlrev_b32 v26, 4, v26
        v_lshrrev_b32 v27, 5, v0
        v_lshl_add_u32 v26, v27, 8, v26
        v_bfe_u32 v27, v0, 4, 1
        v_lshl_add_u32 v26, v27, 3, v26
        """)
        for f in range(8):
            c, nh = f >> 1, f & 1
            a(f"v_cvt_pk_bf16_f32 v{PK+2*f}, v{PD+4*f}, v{PD+4*f+1}\nv_cvt_pk_bf16_f32 v{PK+2*f+1}, v{PD+4*f+2}, v{PD+4*f+3}")
            so = "s57" if c < 2 else "s58"
            a(f"buffer_store_dwordx2 v[{PK+2*f}:{PK+2*f+1}], v26, s[{sG}:{sG+3}], {so} offen offset:{nh*1024 + (c & 1)*512} sc1")
    if "xfine" in OPT: stamp(a, 6)
    a("s_waitcnt vmcnt(0)")
    if "xfine" in OPT: stamp(a, 7)
    prod_stage()
    if "xfine" in OPT: stamp(a, 8)
    production()
    if "xfine" in OPT: stamp(a, 9)
    a(f"s_mov_b32 s{sCs}, 0\ns_mov_b32 s{sSs}, 0")
    if "xfine" in OPT: stamp(a, 10)
    a("s_barrier")
    if "xfine" in OPT: stamp(a, 11)
    s_reads()
    a("s_waitcnt lgkmcnt(0)")
    s_compute()
    a(f"v_mov_b32 v26, 0\nbuffer_load_dword v60, v26, s[{sD}:{sD+3}], 0 offen sc1")
    next_mod(a, sCs, 9)
    s_reads()
    if "xfine" in OPT: stamp(a, 12)
    a("s_waitcnt lgkmcnt(3)")
    if "xfine" in OPT: stamp(a, 13)
    a("s_barrier")
    if "xfine" in OPT: stamp(a, 14); HF_OFF[0] = True
    for r in range(4): a(f"v_mov_b32 v{120+r}, -1")
    def flag_store(kind):
        a(f"""
        s_mul_i32 s49, s{sNG}, 28
        s_add_u32 s49, s49, s{sMT}
        s_lshl_b32 s49, s49, 7
        """)
        if kind == "A":
            a(f"s_lshl_b32 s48, s{sH}, 2\ns_add_u32 s49, s49, s48\ns_add_u32 s49, s49, {FL_OFF}\ns_cmp_lt_u32 s{sH}, 3")
        else:
            a(f"s_add_u32 s49, s49, {FL_OFF + 12}\ns_cmp_eq_u32 s{sH}, 1")
        a(f"""
        s_cselect_b32 s49, s49, 0x7f000000
        v_mov_b32 v26, s49
        v_mov_b32 v27, s{sNonce}
        s_mov_b64 exec, 1
        buffer_store_dword v27, v26, s[{sF}:{sF+3}], 0 offen sc1
        s_mov_b64 exec, -1
        """)
    def poison():
        a(f"""
        s_mul_i32 s56, s{sMT}, {9*2*18*512}
        s_lshl_b32 s57, s{sNG}, 10
        s_add_u32 s56, s56, s57
        v_lshlrev_b32 v26, 4, v0
        v_add_u32 v26, s56, v26
        """)
        for i in range(5):
            a(f"s_add_u32 s57, s{sH}, {4*i}\ns_min_u32 s57, s57, 17\ns_mul_i32 s57, s57, {18*512}")
            a(f"buffer_store_dwordx4 v[120:123], v26, s[{sE}:{sE+3}], s57 offen sc1")
    waits = {0: 4, 1: 5, 2: 4, 3: 4, 4: 9, 5: 9, 6: 4, 7: 0, 8: 0}
    for it in range(9):
        if it == 5 and "hfine" in OPT: stamp(a, 1)
        if it == 7:
            gf_flag_addr(a)
            a(f"s_cmp_lg_u32 s{sH}, 0\ns_cbranch_scc1 L_H_np")
            a(f"buffer_load_dwordx3 v[124:126], v63, s[{sF}:{sF+3}], 0 offen sc1")
            a("L_H_np:")
        if it <= 6:
            a(f"s_cmp_ge_u32 s{sH}, 2\ns_cbranch_scc1 L_H_d1_{it}")
            wdma()
            a(f"L_H_d1_{it}:")
        if it <= 7:
            a("s_waitcnt lgkmcnt(0)")
            a(f"s_xor_b32 s{sSs}, s{sSs}, {SSLOT}")
            s_compute()
        if it <= 6:
            a(f"s_cmp_lt_u32 s{sH}, 2\ns_cbranch_scc1 L_H_d2_{it}")
            wdma()
            a(f"L_H_d2_{it}:")
        if it == 4: poison()
        if it <= 6:
            next_mod(a, sCs, 9)
            s_reads()
        if it == 5 and "hfine" in OPT: stamp(a, 3)
        a(f"s_waitcnt vmcnt({waits[it]}) lgkmcnt({3 if it <= 6 else 0})")
        if it == 5 and "hfine" in OPT: stamp(a, 4)
        if it == 0:
            a(f"""
            s_mov_b32 s{sSpin}, 0
            L_H_nspin:
            v_readfirstlane_b32 s{sNonce}, v60
            s_add_u32 s{sSpin}, s{sSpin}, 1
            s_cmp_lg_u32 s{sNonce}, 0
            s_cbranch_scc1 L_H_n0
            s_cmp_ge_u32 s{sSpin}, {SPIN_MAX}
            s_cbranch_scc1 L_H_n0
            v_mov_b32 v26, 0
            buffer_load_dword v60, v26, s[{sD}:{sD+3}], 0 offen sc1
            s_waitcnt vmcnt(0)
            s_branch L_H_nspin
            L_H_n0:
            """)
            flag_store("A")
        if it == 7:
            a(f"""
            s_cmp_lg_u32 s{sH}, 0
            s_cbranch_scc1 L_H_f4
            s_mov_b32 s{sSpin}, 0
            L_H_fspin:
            v_cmp_ne_u32 vcc, s{sNonce}, v124
            v_cmp_ne_u32 s[56:57], s{sNonce}, v125
            v_cmp_ne_u32 s[58:59], s{sNonce}, v126
            s_add_u32 s{sSpin}, s{sSpin}, 1
            s_or_b64 vcc, vcc, s[56:57]
            s_or_b64 vcc, vcc, s[58:59]
            s_cmp_ge_u32 s{sSpin}, {SPIN_MAX}
            s_cbranch_scc1 L_H_f4
            s_cbranch_vccz L_H_f4
            buffer_load_dwordx3 v[124:126], v63, s[{sF}:{sF+3}], 0 offen sc1
            s_waitcnt vmcnt(0)
            s_branch L_H_fspin
            L_H_f4:
            """)
        a("s_barrier")
        if it == 5 and "hfine" in OPT: stamp(a, 5)
        if it == 6 and "hfine" in OPT: stamp(a, 6)
    if "hfine" not in OPT: stamp(a, 1)
    if "hfine" in OPT: HF_OFF[0] = True
    flag_store("B")
    a(f"v_lshlrev_b32 v24, 4, v0\ns_mov_b32 s50, s{sH}")
    a(f"""
    L_wo:
    s_lshl_b32 s51, s50, 10
    s_add_u32 m0, s51, {LDS_W}
    s_add_u32 s50, s50, 4
    buffer_load_dwordx4 v24, s[{sWo}:{sWo+3}], s51 offen lds
    s_sleep 2
    s_cmp_lt_u32 s50, 41
    s_cbranch_scc1 L_wo
    s_barrier
    """)
    a(f"s_mul_i32 s48, s{sB}, {XB_SIZE}\ns_add_u32 s10, s10, s48\ns_addc_u32 s11, s11, 0")
    srd(a, sO, 10, 11, XB_SIZE)
    a(f"""
    v_mul_u32_u24 v62, 28, v0
    v_add_u32 v62, s{sMT}, v62
    v_lshlrev_b32 v62, 7, v62
    v_add_u32 v62, {FL_OFF + 12}, v62
    s_mov_b32 s{sSpin}, 0
    s_mov_b64 exec, 0x1ff
    L_fb:
    buffer_load_dword v61, v62, s[{sF}:{sF+3}], 0 offen sc1
    s_add_u32 s{sSpin}, s{sSpin}, 1
    s_waitcnt vmcnt(0)
    v_cmp_ne_u32 vcc, s{sNonce}, v61
    s_cmp_ge_u32 s{sSpin}, {SPIN_MAX}
    s_cbranch_scc1 L_fbd
    s_cbranch_vccz L_fbd
    s_sleep 4
    s_branch L_fb
    L_fbd:
    s_mov_b64 exec, -1
    s_barrier
    """)
    a(f"""
    v_lshrrev_b32 v24, 2, v0
    v_mul_u32_u24 v24, 288, v24
    v_and_b32 v25, 3, v0
    v_lshlrev_b32 v25, 3, v25
    v_add_u32 v24, v24, v25
    s_lshl_b32 s48, s{sH}, 5
    s_add_u32 s48, s48, {LDS_W}
    v_add_u32 v24, s48, v24
    v_add_u32 v25, {8*32}, v24
    """)
    for d, (va, off) in enumerate(((24, 0), (24, 128), (25, 0))):
        base = WO + 18 * d
        for P in range(4):
            a(f"ds_read_b64_tr_b16 v[{base+4*P}:{base+4*P+1}], v{va} offset:{off + 32*P*288}")
            a(f"ds_read_b64_tr_b16 v[{base+4*P+2}:{base+4*P+3}], v{va} offset:{off + (32*P+16)*288}")
        a(f"ds_read_b64_tr_b16 v[{base+16}:{base+17}], v{va} offset:{off + 128*288}")
        a("s_waitcnt lgkmcnt(0)")
    a(f"""
    v_and_b32 v41, 15, v0
    v_lshrrev_b32 v42, 1, v41
    v_lshlrev_b32 v42, 2, v42
    v_and_b32 v41, 1, v41
    v_add_u32 v41, v41, v42
    s_mul_i32 s48, s{sMTL}, 288
    s_lshl_b32 s49, s{sNG}, 5
    s_add_u32 s48, s48, s49
    v_add_u32 v41, s48, v41
    v_mul_u32_u24 v41, 288, v41
    v_lshrrev_b32 v42, 4, v0
    v_lshlrev_b32 v42, 3, v42
    v_add_u32 v41, v41, v42
    s_lshl_b32 s48, s{sH}, 5
    v_add_u32 v41, s48, v41
    """)
    a(f"s_and_b32 s76, s{sH}, 1\ns_lshr_b32 s77, s{sH}, 1")
    act_consts(a, "s76", 78, 79, 43)
    a(f"""
    s_mul_i32 s49, s{sMT}, {9*2*18*512}
    s_lshl_b32 s48, s48, 9
    s_add_u32 s48, s48, s49
    s_mul_i32 s49, s77, {2*18*512}
    s_add_u32 s48, s48, s49
    v_lshlrev_b32 v44, 3, v0
    v_add_u32 v44, s48, v44
    s_mul_i32 s48, s76, 9216
    s_lshl_b32 s49, s77, 10
    s_add_u32 s48, s48, s49
    s_add_u32 s48, s48, {LDS_Y0}
    v_lshlrev_b32 v45, 4, v0
    v_add_u32 v45, s48, v45
    """)
    a(f"v_mov_b32 v24, {LDS_CNT}\nv_mov_b32 v25, 0\nds_write_b32 v24, v25\ns_waitcnt lgkmcnt(0)")
    a("s_barrier")
    stamp(a, 2)
    a("s_barrier")
    for i in range(5):
        a(f"ds_read_b128 v[{128+4*i}:{131+4*i}], v45 offset:{i*2048}")
        a(f"ds_read_b128 v[{148+4*i}:{151+4*i}], v45 offset:{i*2048 + 2*9216}")
    for i in range(5):
        a(f"s_waitcnt lgkmcnt({8-2*i})")
        for r in range(4): a(f"v_add_f32 v{128+4*i+r}, v{128+4*i+r}, v{148+4*i+r}")
    activation(a, list(range(128, 148)), 78, 79, 43, 20)
    for i in range(5):
        if i == 4: a("s_cmp_eq_u32 s77, 1\ns_cbranch_scc1 L_y0_done")
        a(f"s_mov_b32 s49, {i*2*2*18*512}")
        a(f"buffer_store_dwordx2 v[{20+2*i}:{21+2*i}], v44, s[{sE}:{sE+3}], s49 offen sc1")
    a("L_y0_done:")
    stamp(a, 3)
    z_unit_setup(a, 0)
    a(f"s_add_u32 s60, s{sH}, 4\ns_cmp_eq_u32 s{sH}, 0\ns_cselect_b32 s61, 8, s{sH}\ns_sleep 12")
    z_units(a, [sH, 60, 61], "q0", 4)
    if "qfine" in OPT: stamp(a, 9)
    a(f"""
    s_waitcnt lgkmcnt(0)
    v_mov_b32 v24, {LDS_CNT}
    v_mov_b32 v25, 1
    s_mov_b64 exec, 1
    ds_add_u32 v24, v25
    s_mov_b64 exec, -1
    s_mov_b32 s{sSpin}, 0
    L_q0c:
    ds_read_b32 v25, v24
    s_add_u32 s{sSpin}, s{sSpin}, 1
    s_waitcnt lgkmcnt(0)
    v_readfirstlane_b32 s48, v25
    s_cmp_ge_u32 s{sSpin}, {SPIN_MAX}
    s_cbranch_scc1 L_q0cd
    s_cmp_lt_u32 s48, 4
    s_cbranch_scc0 L_q0cd
    s_sleep 1
    s_branch L_q0c
    L_q0cd:
    """)
    if "qfine" in OPT: stamp(a, 10)
    ZR = 160
    for P in range(4):
        a(f"ds_read_b128 v[{ZR+4*P}:{ZR+4*P+3}], v15 offset:{P*1024}")
    a(f"ds_read_b64 v[{ZR+16}:{ZR+17}], v15 offset:4096")
    a("s_waitcnt lgkmcnt(0)")
    def proj(zr, qoff, lbl):
        a("s_setprio 3")
        for P in range(4):
            for d in range(3):
                base = WO + 18 * d; acc = 20 + 4 * d
                c = "0" if P == 0 else f"v[{acc}:{acc+3}]"
                a(f"v_mfma_f32_16x16x32_bf16 v[{acc}:{acc+3}], v[{base+4*P}:{base+4*P+3}], v[{zr+4*P}:{zr+4*P+3}], {c}")
        a("s_nop 7")
        for d in range(3):
            base = WO + 18 * d; acc = 20 + 4 * d
            a(f"v_mfma_f32_16x16x16_bf16 v[{acc}:{acc+3}], v[{base+16}:{base+17}], v[{zr+16}:{zr+17}], v[{acc}:{acc+3}]")
        a("s_setprio 0\ns_nop 7")
        for d in range(3):
            acc = 20 + 4 * d
            if d == 2: a(f"s_cmp_lg_u32 s{sH}, 0\ns_cbranch_scc1 L_pj_{lbl}")
            a(f"v_cvt_pk_bf16_f32 v{32+2*d}, v{acc}, v{acc+1}\nv_cvt_pk_bf16_f32 v{33+2*d}, v{acc+2}, v{acc+3}")
            a(f"buffer_store_dwordx2 v[{32+2*d}:{33+2*d}], v41, s[{sO}:{sO+3}], 0 offen offset:{qoff + 128*d}")
        a(f"L_pj_{lbl}:")
    if "qfine" in OPT: stamp(a, 11)
    proj(ZR, 0, "q0")
    stamp(a, 4)
    a("s_barrier")
    z_unit_setup(a, 1)
    a(f"s_add_u32 s60, s{sH}, 4\ns_cmp_eq_u32 s{sH}, 0\ns_cselect_b32 s61, 8, s60")
    z_units(a, [60, 61], "h", 0)
    a("s_waitcnt lgkmcnt(0)\ns_barrier")
    stamp(a, 5)
    a(f"v_lshlrev_b32 v15, 4, v0\nv_add_u32 v15, {LDS_Z}, v15")
    for P in range(4):
        a(f"ds_read_b128 v[{ZR+4*P}:{ZR+4*P+3}], v15 offset:{P*1024}")
    a(f"ds_read_b64 v[{ZR+16}:{ZR+17}], v15 offset:4096")
    a("s_waitcnt lgkmcnt(0)")
    proj(ZR, 576, "q1")
    stamp(a, 6)
    a("s_waitcnt vmcnt(0)")
    if "dur" in OPT:
        a(f"""
        s_memrealtime s[98:99]
        s_waitcnt lgkmcnt(0)
        v_mov_b32 v4, s98
        v_mov_b32 v5, 12
        s_mov_b64 exec, 1
        buffer_atomic_umax v4, v5, s[{sD}:{sD+3}], 0 offen
        s_waitcnt vmcnt(0)
        s_mov_b64 exec, -1
        """)
    stamp(a, 7)
    stamp(a, 8)
    HF_OFF[0] = False
    stamp_flush(a)
    a("s_endpgm")
def gf_flag_addr(a):
    a(f"""
    v_min_u32 v63, 27, v0
    s_mul_i32 s48, s{sNG}, 28
    v_add_u32 v63, s48, v63
    v_lshlrev_b32 v63, 7, v63
    v_add_u32 v63, {FL_OFF}, v63
    """)
sys.stdout.write(gen())
```

```python
import sys
from asmlib import *
OPT = set(sys.argv[1].split(",")) if len(sys.argv) > 1 else set()
STAMP = "stamp" in OPT
NAME = "standalone__autoregressive_conv_wavenet__speech_kernel"
XROWS = 352
LDS_W = XROWS * 288
WSLOT = 16384
LDS_S = LDS_W + 3 * WSLOT
SSLOT = 176 * 32
LDS_TOTAL = 163840
LDS_Y0 = LDS_W
LDS_Y1 = LDS_W + 36864
LDS_Z = LDS_W + 57344
LDS_CNT = LDS_Y1 + 4096
GF_PROD = 9 * 72 * 2048
GF_SIZE = 2 * GF_PROD
E_OFF = 0x400000
E_SIZE = 28 * 9 * 2 * 18 * 512
FL_OFF = 0x900000
FL_SIZE = 256 * 128
W_SIZE = 31 * 144 * 288 * 2
XB_SIZE = 4000 * 288
STAMP_OFF = 0x1000000
SPIN_MAX = 200000
NOFF = 128 if 'dur' in OPT else 0
sX, sW, sG, sE, sO, sWo, sD, sF = 16, 20, 24, 28, 32, 36, 84, 88
sNG, sMT, sMTL, sB, sC0, sWV = 42, 43, 44, 45, 46, 47
sIt = 63
sT = 68
sNonce = 80
sSpin = 81
sCP = 82
ST0 = 92
def srd(a, d, lo, hi, size):
    a(f"s_mov_b32 s{d}, s{lo}\ns_and_b32 s{d+1}, s{hi}, 0xffff\ns_mov_b32 s{d+2}, {size}\ns_mov_b32 s{d+3}, 0x20000")
HF_OFF = [False]
def stamp(a, idx):
    if not STAMP or HF_OFF[0]: return
    import inspect
    if "xfine" in OPT and idx != 0 and 'xfine' not in inspect.stack()[1].code_context[0]: return
    a(f"s_memtime s[{ST0}:{ST0+1}]\ns_memrealtime s[{ST0+2}:{ST0+3}]\ns_waitcnt lgkmcnt(0)")
    a(f"v_writelane_b32 v253, s{ST0}, {2*idx}\nv_writelane_b32 v253, s{ST0+2}, {2*idx+1}")
def stamp_dyn(a, base, sreg):
    if not STAMP or HF_OFF[0]: return
    a(f"s_memtime s[{ST0}:{ST0+1}]\ns_memrealtime s[{ST0+2}:{ST0+3}]\ns_waitcnt lgkmcnt(0)")
    a(f"s_lshl_b32 s96, s{sreg}, 1\ns_add_u32 m0, s96, {2*base}\ns_nop 3")
    a(f"v_writelane_b32 v253, s{ST0}, m0\ns_add_u32 m0, m0, 1\ns_nop 3\nv_writelane_b32 v253, s{ST0+2}, m0")
def stamp_flush(a):
    if not STAMP: return
    a(f"""
    s_mov_b32 s{ST0}, s14
    s_and_b32 s{ST0+1}, s15, 0xffff
    s_mov_b32 s{ST0+2}, 0x2000000
    s_mov_b32 s{ST0+3}, 0x20000
    s_lshl_b32 s48, s2, 3
    s_add_u32 s48, s48, s{sWV}
    s_lshl_b32 s48, s48, 7
    s_add_u32 s48, s48, {STAMP_OFF}
    v_lshlrev_b32 v252, 2, v0
    v_add_u32 v252, s48, v252
    s_mov_b64 exec, 0xffffffff
    buffer_store_dword v253, v252, s[{ST0}:{ST0+3}], 0 offen
    s_waitcnt vmcnt(0)
    s_mov_b64 exec, -1
    """)
def bf16_op(a, op, dst, xa, xb, t):
    a(f"v_lshlrev_b32 v{t}, 16, v{xa}")
    a(f"v_lshlrev_b32 v{t+1}, 16, v{xb}")
    a(f"v_and_b32 v{t+2}, 0xffff0000, v{xa}")
    a(f"v_and_b32 v{t+3}, 0xffff0000, v{xb}")
    a(f"{op} v{t}, v{t}, v{t+1}")
    a(f"{op} v{t+2}, v{t+2}, v{t+3}")
    a(f"v_cvt_pk_bf16_f32 v{dst}, v{t}, v{t+2}")
def next_mod(a, s, n):
    a(f"s_add_u32 s{s}, s{s}, 1\ns_cmp_eq_u32 s{s}, {n}\ns_cselect_b32 s{s}, 0, s{s}")
def tr_lane(a, vd, vt, vt2):
    a(f"""
    v_lshrrev_b32 v{vd}, 5, v0
    v_lshlrev_b32 v{vd}, 10, v{vd}
    v_bfe_u32 v{vt}, v0, 4, 1
    v_mul_u32_u24 v{vt}, 544, v{vt}
    v_add_u32 v{vd}, v{vd}, v{vt}
    v_bfe_u32 v{vt}, v0, 2, 2
    v_lshlrev_b32 v{vt}, 6, v{vt}
    v_add_u32 v{vd}, v{vd}, v{vt}
    v_and_b32 v{vt}, 3, v0
    v_lshlrev_b32 v{vt}, 3, v{vt}
    v_add_u32 v{vd}, v{vd}, v{vt}
    """)
def activation(a, regs, sA, sS1, vS0, dst):
    for r in regs: a(f"v_mul_f32 v{r}, s{sA}, v{r}")
    for r in regs: a(f"v_exp_f32 v{r}, v{r}")
    for r in regs: a(f"v_add_f32 v{r}, 1.0, v{r}")
    for r in regs: a(f"v_rcp_f32 v{r}, v{r}")
    a("s_nop 0")
    for r in regs: a(f"v_fma_f32 v{r}, v{r}, s{sS1}, v{vS0}")
    for k in range(len(regs) // 2):
        a(f"v_cvt_pk_bf16_f32 v{dst+k}, v{regs[2*k]}, v{regs[2*k+1]}")
    for k in range(len(regs) // 2):
        a(f"v_min_u32 v{dst+k}, 0xfffffffe, v{dst+k}")
def activation_pk(a, pairs, sA, sS1, sOne, vS0, dst):
    for r in pairs: a(f"v_pk_mul_f32 v[{r}:{r+1}], v[{r}:{r+1}], s[{sA}:{sA+1}]")
    for r in pairs: a(f"v_exp_f32 v{r}, v{r}\nv_exp_f32 v{r+1}, v{r+1}")
    for r in pairs: a(f"v_pk_add_f32 v[{r}:{r+1}], v[{r}:{r+1}], s[{sOne}:{sOne+1}]")
    for r in pairs: a(f"v_rcp_f32 v{r}, v{r}\nv_rcp_f32 v{r+1}, v{r+1}")
    for r in pairs: a(f"v_pk_fma_f32 v[{r}:{r+1}], v[{r}:{r+1}], s[{sS1}:{sS1+1}], v[{vS0}:{vS0+1}]")
    for k, r in enumerate(pairs): a(f"v_cvt_pk_bf16_f32 v{dst+k}, v{r}, v{r+1}")
    for k in range(len(pairs)): a(f"v_min_u32 v{dst+k}, 0xfffffffe, v{dst+k}")

def act_consts(a, nh_s, sA, sS1, vS0):
    a(f"""
    s_lshl_b32 s48, s{sNG}, 1
    s_add_u32 s48, s48, {nh_s}
    s_cmp_lt_u32 s48, 9
    s_mov_b32 s{sA}, 0xbfb8aa3b
    s_cselect_b32 s{sA}, 0xc038aa3b, s{sA}
    s_cselect_b32 s{sS1}, 2.0, 1.0
    s_cselect_b32 s49, -1.0, 0
    v_mov_b32 v{vS0}, s49
    """)
def z_mul(a, dst, f, g, t):
    bf16_op(a, "v_mul_f32", dst, f, g, t)
def gen():
    a = Asm()
    a(f"; @launch grid=(252,1,1) block=(512,1,1) lds={LDS_TOTAL}")
    a('.amdgcn_target "amdgcn-amd-amdhsa--gfx950"')
    a(".text")
    a(f".globl {NAME}")
    kernel_header(a, NAME)
    a("s_cmp_ge_u32 s2, 252\ns_cbranch_scc1 L_end")
    a("""
    s_load_dwordx4 s[4:7], s[0:1], 0
    s_load_dwordx4 s[8:11], s[0:1], 16
    s_load_dwordx4 s[12:15], s[0:1], 32
    s_getpc_b64 s[40:41]
    L_pc:
    v_lshlrev_b32 v1, 7, v0
    v_min_u32 v1, L_code_end-L_pc-4, v1
    global_load_dword v254, v1, s[40:41]
    """)
    if STAMP: a("v_mov_b32 v253, 0")
    if "dur" in OPT: a("s_memrealtime s[98:99]")
    stamp(a, 0)
    a(f"""
    v_lshrrev_b32 v1, 6, v0
    v_and_b32 v0, 63, v0
    v_readfirstlane_b32 s{sWV}, v1
    s_and_b32 s48, s2, 7
    s_lshr_b32 s49, s2, 3
    s_and_b32 s50, s48, 3
    s_lshr_b32 s48, s48, 2
    s_lshl_b32 s48, s48, 5
    s_add_u32 s48, s48, s49
    s_mul_i32 s51, s48, 7282
    s_lshr_b32 s51, s51, 16
    s_mul_i32 s49, s51, 9
    s_sub_u32 s{sNG}, s48, s49
    s_mul_i32 s{sMT}, s50, 7
    s_add_u32 s{sMT}, s{sMT}, s51
    s_lshr_b32 s{sB}, s50, 1
    s_and_b32 s50, s50, 1
    s_mul_i32 s50, s50, 7
    s_add_u32 s{sMTL}, s50, s51
    s_mul_i32 s52, s{sMT}, 7282
    s_lshr_b32 s52, s52, 16
    s_mul_i32 s49, s52, 9
    s_sub_u32 s{sCP}, s{sMT}, s49
    s_mov_b32 s{sC0}, 0
    """)
    a(f"""
    s_cmp_eq_u32 s{sCP}, 0
    s_cselect_b32 s55, 2, 3
    s_mul_i32 s53, s52, s55
    s_sub_u32 s54, 8, s53
    s_min_u32 s54, s54, s55
    """)
    a(f"""
    v_lshrrev_b32 v3, 2, v0
    v_mul_u32_u24 v3, 576, v3
    v_lshrrev_b32 v4, 5, v0
    v_lshlrev_b32 v4, 1, v4
    v_xor_b32 v4, v4, v0
    v_and_b32 v4, 3, v4
    v_lshlrev_b32 v4, 4, v4
    s_lshl_b32 s48, s{sNG}, 6
    v_add3_u32 v3, v3, v4, s48
    """)
    a("""
    v_lshrrev_b32 v12, 2, v0
    v_and_b32 v12, 4, v12
    v_xor_b32 v12, v12, v0
    v_lshlrev_b32 v12, 4, v12
    """)
    a("s_waitcnt lgkmcnt(0)")
    if "pfine" in OPT or "xfine" in OPT: stamp(a, 1)
    a(f"s_mul_i32 s48, s{sB}, {XB_SIZE}\ns_add_u32 s4, s4, s48\ns_addc_u32 s5, s5, 0")
    srd(a, sX, 4, 5, XB_SIZE)
    srd(a, sW, 6, 7, W_SIZE)
    srd(a, sD, 12, 13, 256)
    if "dur" in OPT:
        a(f"""
        s_cmp_lg_u32 s{sWV}, 0
        s_cbranch_scc1 L_nodur
        s_not_b32 s98, s98
        v_mov_b32 v4, s98
        v_mov_b32 v5, 8
        s_mov_b64 exec, 1
        buffer_atomic_umax v4, v5, s[{sD}:{sD+3}], 0 offen
        s_mov_b64 exec, -1
        L_nodur:
        """)
    a(f"""
    s_lshl_b32 s48, s2, 3
    s_add_u32 s48, s48, s{sWV}
    s_cmp_lg_u32 s48, 4
    s_cbranch_scc1 L_nononce
    s_memrealtime s[56:57]
    s_waitcnt lgkmcnt(0)
    s_or_b32 s56, s56, 1
    v_mov_b32 v4, s56
    v_mov_b32 v5, {NOFF}
    s_mov_b64 exec, 1
    buffer_store_dword v4, v5, s[{sD}:{sD+3}], 0 offen sc1
    s_mov_b64 exec, -1
    L_nononce:
    """)
    PL = 176
    def w_share(dst):
        a(f"""
        s_lshr_b32 s48, s2, 3
        s_and_b32 s50, s48, 1
        s_mul_i32 s50, s50, 36
        v_add_u32 v10, s50, v0
        v_lshlrev_b32 v10, 7, v10
        s_lshr_b32 s48, s48, 1
        s_mul_i32 s48, s48, 165888
        s_mul_i32 s50, s{sWV}, 9216
        s_add_u32 s48, s48, s50
        s_mov_b32 exec_hi, 0xf
        buffer_load_dword v{dst}, v10, s[{sW}:{sW+3}], s48 offen
        s_mov_b32 exec_hi, -1
        """)
    def x_loop(lbl, end_s):
        a(f"""
        {lbl}:
        s_cmp_ge_u32 s50, 99
        s_cselect_b32 s51, 99, 0
        s_sub_u32 s50, s50, s51
        s_lshl_b32 s51, s50, 10
        s_mov_b32 m0, s51
        s_add_i32 s51, s51, s49
        s_cmp_lt_i32 s51, 0
        s_cselect_b32 s58, 0x7fff0000, 0
        v_or_b32 v11, s58, v12
        s_max_i32 s51, s51, 0
        s_add_u32 s50, s50, 4
        s_add_u32 s59, s59, 4
        buffer_load_dwordx4 v11, s[{sX}:{sX+3}], s51 offen lds
        s_cmp_lt_u32 s59, {end_s}
        s_cbranch_scc1 {lbl}
        """)
    a(f"""
    s_mul_i32 s49, s{sMTL}, {288*288}
    s_sub_i32 s49, s49, {64*288}
    s_cmp_ge_u32 s{sWV}, 4
    s_cbranch_scc1 L_hfirst
    s_cmp_ge_u32 s{sWV}, 2
    s_cbranch_scc1 L_nopf0
    """)
    w_share(251)
    a(f"""
    L_nopf0:
    s_mov_b32 s59, s{sWV}
    s_mul_i32 s60, s{sNG}, 11
    s_add_u32 s60, s60, s59
    s_mov_b32 s50, s60
    """)
    x_loop("L_xl0", 12)
    if "xfine" in OPT: stamp(a, 2)
    a(f"s_cmp_lt_u32 s{sWV}, 2\ns_cbranch_scc1 L_nopf1\ns_mov_b32 s62, s50")
    w_share(251)
    a("s_mov_b32 s50, s62\nL_nopf1:")
    x_loop("L_xl1", 99)
    if "xfine" in OPT: stamp(a, 3)
    a("s_branch L_xdone\nL_hfirst:")
    a(f"""
    s_sub_u32 s61, s{sWV}, 4
    s_lshl_b32 s56, s54, 2
    s_add_u32 s56, s56, 1
    s_lshl_b32 s57, s56, 1
    s_mul_i32 s58, s{sNG}, s56
    s_lshl_b32 s58, s58, 3
    s_mul_i32 s59, s61, s57
    s_add_u32 s58, s58, s59
    v_add_u32 v10, s58, v0
    v_mul_u32_u24 v11, 911, v10
    v_lshrrev_b32 v11, 16, v11
    v_mul_u32_u24 v13, 72, v11
    v_sub_u32 v10, v10, v13
    v_lshlrev_b32 v10, 7, v10
    s_lshl_b32 s58, s53, 2
    s_sub_u32 s58, s58, 1
    v_add_u32 v11, s58, v11
    s_mov_b32 s58, 82944
    v_mul_lo_u32 v11, v11, s58
    v_add_u32 v10, v10, v11
    s_mul_i32 s58, s{sCP}, 9216
    v_add_u32 v10, s58, v10
    v_cmp_gt_u32 vcc, s57, v0
    s_nop 1
    s_mov_b64 exec, vcc
    buffer_load_dword v251, v10, s[{sW}:{sW+3}], 0 offen
    s_mov_b64 exec, -1
    """)
    if "xfine" in OPT: stamp(a, 2)
    a(f"""
    s_add_u32 s56, s53, s61
    s_lshl_b32 s56, s56, 1
    s_mul_i32 s57, s56, 165888
    s_mul_i32 s58, s{sCP}, 9216
    s_add_u32 s57, s57, s58
    s_sub_u32 s58, s57, 82944
    s_cmp_eq_u32 s56, 0
    s_cselect_b32 s58, 0, s58
    s_cselect_b32 s59, 0x7fff0000, 0
    s_cmp_ge_u32 s61, s54
    s_cselect_b32 s60, 0x7fff0000, 0
    s_or_b32 s59, s59, s60
    v_or_b32 v24, s59, v3
    v_or_b32 v25, s60, v3
    s_waitcnt vmcnt(0)
    """)
    if "xfine" in OPT: stamp(a, 3)
    a(f"""
    buffer_load_dwordx4 v[{PL}:{PL+3}], v25, s[{sW}:{sW+3}], s57 offen
    buffer_load_dwordx4 v[{PL+4}:{PL+7}], v24, s[{sW}:{sW+3}], s58 offen
    s_add_u32 s58, s57, 82944
    buffer_load_dwordx4 v[{PL+8}:{PL+11}], v25, s[{sW}:{sW+3}], s58 offen
    s_add_u32 s58, s57, 165888
    buffer_load_dwordx4 v[{PL+12}:{PL+15}], v25, s[{sW}:{sW+3}], s58 offen
    s_add_u32 s58, s57, 248832
    buffer_load_dwordx4 v[{PL+16}:{PL+19}], v25, s[{sW}:{sW+3}], s58 offen
    """)
    a("L_xdone:")
    if "pfine" in OPT: stamp(a, 2)
    srd(a, sWo, 8, 9, 144 * 288)
    srd(a, sG, 14, 15, GF_SIZE)
    a(f"s_add_u32 s48, s14, {E_OFF}\ns_addc_u32 s49, s15, 0")
    srd(a, sE, 48, 49, E_SIZE)
    a(f"s_cmp_ge_u32 s{sWV}, 4\ns_cbranch_scc1 L_helper")
    gen_mfma(a)
    a("L_helper:")
    gen_helper(a)
    a("L_end:\ns_endpgm\nL_code_end:")
    a('.section .rodata,"a"')
    a(".p2align 6")
    kernel_desc(a, NAME, 256)
    return a.text()
M_, Y_ = 16, 52
XA, XB = 88, 128
GR = 168
WA, WB = GR + 32, GR + 40
vS, vW, vG, vXb, vSb, vWb = 2, 4, 5, 6, 7, 8
vS1, vSb1 = 15, 216
vP = ((3, 10), (11, 12))
vPt = 13
vW0 = 14
sD0, sD1 = 76, 77
sSlotW, sSlotS = 61, 62
sGc, sGp, sGo0, sGo1 = 64, 65, 66, 67
class Sched:
    def __init__(self, a):
        self.a = a; self.lds = []; self.vm = []
    def lds_issue(self, tag): self.lds.append(tag)
    def vm_issue(self, tag): self.vm.append(tag)
    def need(self, ltags=(), vtags=()):
        parts = []
        li = max((i for i, t in enumerate(self.lds) if t in ltags), default=-1)
        if li >= 0:
            n = min(len(self.lds) - 1 - li, 15)
            parts.append(f"lgkmcnt({n})")
            self.lds = self.lds[len(self.lds) - n:] if n > 0 else []
        vi = max((i for i, t in enumerate(self.vm) if t in vtags), default=-1)
        if vi >= 0:
            n = len(self.vm) - 1 - vi
            parts.append(f"vmcnt({n})")
            self.vm = self.vm[len(self.vm) - n:] if n > 0 else []
        if parts:
            self.a("s_waitcnt " + " ".join(parts))
def sp_order():
    r = []
    for i in range(10):
        if i >= 1: r.append((0, i - 1, i))
        if i <= 8: r.append((1, i, i))
    return r
def emit_sp(a, sc, acc, xset, wfrag, wtags, xp, fillers, pre=None, lookahead=4):
    order = sp_order()
    for n, (s, T, i) in enumerate(order):
        if pre is not None:
            for f in pre[n]: f()
        pend_l = set(sc.lds); pend_v = set(sc.vm)
        now_l = ({f"{xp}{i}"} | set(wtags[s][0])) & pend_l
        now_v = set(wtags[s][1]) & pend_v
        if now_l or now_v:
            lt = set()
            for (s2, T2, i2) in order[n:n + lookahead]:
                lt |= {f"{xp}{i2}"} | set(wtags[s2][0])
            lt &= pend_l
            sc.need(lt if now_l else (), now_v)
        d = acc + 4 * T
        a(f"v_mfma_f32_16x16x32_bf16 v[{d}:{d+3}], v[{wfrag[s]}:{wfrag[s]+3}], v[{xset+4*i}:{xset+4*i+3}], v[{d}:{d+3}]")
        for f in fillers[n]: f()
def place(items, start, step=1, ngaps=18):
    g = [[] for _ in range(ngaps)]
    for k, it in enumerate(items):
        g[start + k * step].append(it)
    return g
def merge(*gs):
    return [sum((g[n] for g in gs), []) for n in range(len(gs[0]))]
def gen_mfma(a):
    ins = lambda t: (lambda: a(t))
    a(f"v_mov_b32 v{vW0}, v3")
    for i in range(1, 4):
        a(f"v_add_u32 v{16+i}, {i*(165888-1024)}, v3")
    a(f"""
    s_mul_i32 s48, s{sWV}, {4*165888}
    s_lshl_b32 s49, s{sWV}, 12
    s_add_u32 m0, s49, {LDS_W}
    s_nop 0
    buffer_load_dwordx4 v3, s[{sW}:{sW+3}], s48 offen lds
    """)
    for i in range(1, 4):
        a(f"buffer_load_dwordx4 v{16+i}, s[{sW}:{sW+3}], s48 offen offset:{i*1024} lds")
    if "pfine" in OPT: stamp(a, 3)
    a("s_setprio 1")
    a(f"s_lshr_b32 s{sT}, s{sWV}, 1\ns_and_b32 s{sT+1}, s{sWV}, 1")
    a(f"""
    v_and_b32 v9, 15, v0
    v_lshrrev_b32 v10, 5, v0
    v_lshlrev_b32 v10, 1, v10
    v_sub_u32 v9, v9, v10
    s_lshl_b32 s{sT+2}, s{sT}, 3
    s_sub_u32 s{sT+2}, 12, s{sT+2}
    v_add_u32 v9, s{sT+2}, v9
    v_bfe_u32 v10, v0, 4, 1
    v_lshlrev_b32 v10, 4, v10
    v_bfe_u32 v11, v9, 2, 1
    v_lshlrev_b32 v11, 4, v11
    v_xor_b32 v11, v11, v10
    v_lshlrev_b32 v{vSb1}, 5, v9
    v_add_u32 v{vSb1}, v{vSb1}, v11
    v_add_u32 v{vSb1}, {LDS_S}, v{vSb1}
    v_xor_b32 v{vSb}, 16, v{vSb1}
    v_add_u32 v{vSb}, 128, v{vSb}
    v_bfe_u32 v9, v0, 1, 3
    v_lshrrev_b32 v11, 5, v0
    v_sub_u32 v9, v9, v11
    v_lshlrev_b32 v9, 2, v9
    v_and_b32 v11, 1, v0
    v_add_u32 v9, v9, v11
    s_lshl_b32 s{sT+2}, s{sT}, 4
    s_sub_u32 s{sT+2}, 24, s{sT+2}
    v_add_u32 v9, s{sT+2}, v9
    v_mul_u32_u24 v{vXb}, 288, v9
    v_add_u32 v{vXb}, v{vXb}, v10
    """)
    tr_lane(a, vWb, 9, 10)
    a(f"""
    s_lshl_b32 s{sT+2}, s{sT+1}, 5
    v_xor_b32 v{vWb}, s{sT+2}, v{vWb}
    s_lshl_b32 s{sT+2}, s{sT}, 12
    s_add_u32 s{sT+2}, s{sT+2}, {LDS_W}
    v_add_u32 v{vWb}, s{sT+2}, v{vWb}
    s_mul_i32 s{sT+2}, s{sNG}, 147456
    s_lshl_b32 s{sT+3}, s{sT}, 13
    s_add_u32 s{sT+2}, s{sT+2}, s{sT+3}
    s_lshl_b32 s{sT+3}, s{sT+1}, 10
    s_add_u32 s{sT+2}, s{sT+2}, s{sT+3}
    v_lshlrev_b32 v{vG}, 4, v0
    v_add_u32 v{vG}, s{sT+2}, v{vG}
    """)
    for r in range(M_, Y_ + 36):
        a(f"v_mov_b32 v{r}, 0")
    a(f"""
    s_mov_b32 s{sSlotW}, 0
    s_mov_b32 s{sSlotS}, 0
    s_mov_b32 s{sIt}, 0
    s_mov_b32 s{sGc}, s{sC0}
    s_mov_b32 s{sGp}, 0
    v_mov_b32 v{vS}, v{vSb}
    v_mov_b32 v{vS1}, v{vSb1}
    v_mov_b32 v{vW}, v{vWb}
    """)
    PF = "pfine" in OPT
    stamp(a, 4 if PF else 1)
    a("s_waitcnt vmcnt(4)\ns_barrier")
    stamp(a, 5 if PF else 2)
    for i in range(1, 4):
        a(f"v_add_u32 v{123+i}, {i*(165888-1024)}, v{vW0}")
    a(f"""
    s_mul_i32 s48, s{sWV}, {4*165888}
    s_add_u32 s48, s48, 9216
    s_lshl_b32 s49, s{sWV}, 12
    s_add_u32 m0, s49, {LDS_W + WSLOT}
    s_nop 0
    buffer_load_dwordx4 v{vW0}, s[{sW}:{sW+3}], s48 offen lds
    """)
    for i in range(1, 4):
        a(f"buffer_load_dwordx4 v{123+i}, s[{sW}:{sW+3}], s48 offen offset:{i*1024} lds")
    a(f"""
    s_mul_i32 s48, s{sWV}, 45
    v_add_u32 v124, s48, v0
    v_mul_u32_u24 v125, 1821, v124
    v_lshrrev_b32 v125, 16, v125
    v_mul_u32_u24 v126, 36, v125
    v_sub_u32 v124, v124, v126
    s_lshr_b32 s48, s2, 3
    s_and_b32 s49, s48, 1
    s_mul_i32 s49, s49, 36
    v_add_u32 v124, s49, v124
    v_lshlrev_b32 v124, 7, v124
    v_mul_u32_u24 v125, 9216, v125
    v_add_u32 v124, v124, v125
    s_lshr_b32 s48, s48, 1
    s_mul_i32 s48, s48, 165888
    s_add_u32 s48, s48, {4*9216}
    s_mov_b32 exec_hi, 0x1fff
    buffer_load_dword v251, v124, s[{sW}:{sW+3}], s48 offen
    s_mov_b32 exec_hi, -1
    s_lshr_b32 s48, s2, 3
    s_mul_i32 s48, s48, 12
    s_mul_i32 s49, s{sWV}, 3
    s_add_u32 s48, s48, s49
    v_add_u32 v124, s48, v0
    v_lshlrev_b32 v124, 7, v124
    s_mov_b64 exec, 7
    buffer_load_dword v250, v124, s[{sWo}:{sWo+3}], 0 offen
    s_mov_b64 exec, -1
    """)
    a("s_waitcnt vmcnt(6)\ns_barrier")
    stamp(a, 6 if PF else 3)
    sc = Sched(a)
    def rd_x(xset, i, vaddr, imm, tag):
        def f():
            a(f"ds_read_b128 v[{xset+4*i}:{xset+4*i+3}], v{vaddr} offset:{imm}")
            sc.lds_issue(tag)
        return f
    def rd_w(reg, h, imm, tag):
        def f():
            a(f"ds_read_b64_tr_b16 v[{reg+2*h}:{reg+2*h+1}], v{vW} offset:{imm}")
            sc.lds_issue(tag)
        return f
    def a_reads(sp, xset, wreg, p):
        w = lambda s: [rd_w(wreg + 4 * s, h, (2 * sp + 8 * s) * 1024 + h * 256, f"{p}w{s}") for h in range(2)]
        x = lambda i: rd_x(xset, i, vS if sp == 0 else vS1, 512 * i, f"{p}x{i}")
        return w(1) + [x(0)] + w(0) + [x(i) for i in range(1, 10)]
    def b_reads(sp, xset, p):
        return [rd_x(xset, i, vP[sp][i >> 3], 9216 * (i & 7), f"{p}x{i}") for i in range(10)]
    def x_addr(sp):
        r, rb = vP[sp]; sd = (sD0, sD1)[sp]
        return [ins(f"v_add_u32 v{r}, s{sd}, v{vXb}"), ins(f"v_lshrrev_b32 v{vPt}, 2, v{r}"), ins(f"v_and_b32 v{vPt}, 64, v{vPt}"),
                ins(f"v_xor_b32 v{r}, v{r}, v{vPt}"), ins(f"v_add_u32 v{rb}, {8*9216}, v{r}")]
    def spread4(items):
        g = [[] for _ in range(18)]
        g[0] += items[:2]; g[1].append(items[2]); g[2].append(items[3]); g[3].append(items[4])
        return g
    def gload(setidx, sp, s):
        reg = GR + 16 * setidx + 8 * sp + 4 * s
        so = sGo0 if sp == 0 else sGo1
        def f():
            a(f"buffer_load_dwordx4 v[{reg}:{reg+3}], v{vG}, s[{sG}:{sG+3}], s{so} offen offset:{s*2048} sc1")
            sc.vm_issue(f"g{setidx}_{sp}_{s}")
        return f
    def g_advance():
        return [ins(f"s_cmp_ge_u32 s{sGp}, 9\ns_cselect_b32 s{sGo0}, {GF_PROD}, 0"),
                ins(f"s_lshl_b32 s{sGo1}, s{sGc}, 14\ns_add_u32 s{sGo0}, s{sGo0}, s{sGo1}"),
                ins(f"s_add_u32 s{sGo1}, s{sGo0}, 4096\ns_add_u32 s{sGp}, s{sGp}, 1"),
                ins(f"s_add_u32 s{sGc}, s{sGc}, 1\ns_cmp_eq_u32 s{sGc}, 9"),
                ins(f"s_cselect_b32 s{sGc}, 0, s{sGc}")]
    def barrier_drain():
        sc.need(set(sc.lds), ())
        a("s_barrier")
    def barrier_drain_vm():
        sc.need(set(sc.lds), ())
        a("s_waitcnt vmcnt(2)\ns_barrier")
    for f in a_reads(0, XA, WA, "A"): f()
    def phase_a_iter(last, gset):
        fill = place(a_reads(1, XB, WB, "B"), 0)
        if gset is not None:
            fill = merge(fill, place(g_advance(), 13))
        if last:
            fill = merge(fill, place([ins(f"s_lshl_b32 s{sD1}, s{sC0}, 5\ns_add_u32 s{sD1}, s{sD1}, 576"), ins(f"s_add_u32 s{sD0}, s{sD1}, 2304")], 10),
                         place(x_addr(0), 13))
        emit_sp(a, sc, M_, XA, (WA, WA + 4), ((["Aw0"], []), (["Aw1"], [])), "Ax", fill)
        if not last:
            upd = [ins(f"s_add_u32 s{sSlotW}, s{sSlotW}, {WSLOT}\ns_cmp_eq_u32 s{sSlotW}, {3*WSLOT}"),
                   ins(f"s_cselect_b32 s{sSlotW}, 0, s{sSlotW}\ns_xor_b32 s{sSlotS}, s{sSlotS}, {SSLOT}\nv_add_u32 v{vW}, s{sSlotW}, v{vWb}"),
                   ins(f"v_add_u32 v{vS}, s{sSlotS}, v{vSb}\nv_add_u32 v{vS1}, s{sSlotS}, v{vSb1}")]
            fill = merge(place(upd + [barrier_drain if gset is not None else barrier_drain_vm], 0), place(a_reads(0, XA, WA, "A"), 4))
        else:
            fill = merge(place([ins("s_nop 0"), ins("s_nop 0"), ins("s_nop 0"), barrier_drain], 0), spread4(x_addr(1)), place(b_reads(0, XA, "A"), 4))
        if gset is not None:
            fill = merge(fill, place([gload(gset, 0, 0), gload(gset, 0, 1), gload(gset, 1, 0), gload(gset, 1, 1)], 14))
        emit_sp(a, sc, M_, XB, (WB, WB + 4), ((["Bw0"], []), (["Bw1"], [])), "Bx", fill)
    a("L_A:")
    st = list(sc.lds)
    phase_a_iter(False, None)
    assert sc.lds == st
    if PF: stamp_dyn(a, 7, sIt)
    a(f"s_add_u32 s{sIt}, s{sIt}, 1\ns_cmp_lt_u32 s{sIt}, 7\ns_cbranch_scc1 L_A")
    phase_a_iter(False, 0)
    if PF: stamp(a, 14)
    phase_a_iter(True, 1)
    stamp(a, 15 if PF else 4)
    if PF: HF_OFF[0] = True
    a(f"s_mov_b32 s{sIt}, s{sC0}")
    sTrip = sT + 4
    def b_chunk(acc, u, arr, extra0=None, extra1=None, pre0=None, pre1=None):
        cur, nxt = u, (u + 2) % 3
        wr = GR + 16 * cur
        upd = [ins(f"s_add_u32 s{sIt}, s{sIt}, 1\ns_cmp_eq_u32 s{sIt}, 9"),
               ins(f"s_cselect_b32 s{sIt}, 0, s{sIt}\ns_lshl_b32 s{sD1}, s{sIt}, 5")]
        if arr is None:
            upd.append(ins(f"s_cmp_eq_u32 s{sTrip}, 2\ns_cselect_b32 s{sT+1}, 0, 576\ns_add_u32 s{sD1}, s{sD1}, s{sT+1}\ns_add_u32 s{sD0}, s{sD1}, 2304"))
        elif arr == 1:
            upd.append(ins(f"s_add_u32 s{sD1}, s{sD1}, 576\ns_add_u32 s{sD0}, s{sD1}, 2304"))
        else:
            upd.append(ins(f"s_add_u32 s{sD0}, s{sD1}, 2304"))
        fill = merge(place(b_reads(1, XB, "B"), 0), place(upd, 10), place(x_addr(1), 13))
        if extra0: fill = merge(fill, extra0)
        emit_sp(a, sc, acc, XA, (wr, wr + 4), (([], [f"g{cur}_0_0"]), ([], [f"g{cur}_0_1"])), "Ax", fill, pre0)
        fill = merge(place(g_advance(), 0), spread4(x_addr(0)), place(b_reads(0, XA, "A"), 4),
                     place([gload(nxt, 0, 0), gload(nxt, 0, 1), gload(nxt, 1, 0), gload(nxt, 1, 1)], 14))
        if extra1: fill = merge(fill, extra1)
        emit_sp(a, sc, acc, XB, (wr + 8, wr + 12), (([], [f"g{cur}_1_0"]), ([], [f"g{cur}_1_1"])), "Bx", fill, pre1)
    a(f"s_mov_b32 s{sTrip}, 0")
    a("L_B1:")
    st_l, st_v = list(sc.lds), list(sc.vm)
    for u in range(3):
        b_chunk(Y_, u, 1 if u < 2 else None)
    stamp_dyn(a, 5, sTrip) if "pre" in OPT else None
    a("s_barrier")
    stamp_dyn(a, 5, sTrip) if "pre" not in OPT else None
    a(f"s_add_u32 s{sTrip}, s{sTrip}, 1\ns_cmp_lt_u32 s{sTrip}, 3\ns_cbranch_scc1 L_B1")
    assert sc.lds == st_l and sc.vm == st_v
    a(f"""
    s_mul_i32 s{sT+1}, s{sWV}, 9216
    s_add_u32 s{sT+1}, s{sT+1}, {LDS_Y0}
    v_lshlrev_b32 v9, 4, v0
    v_add_u32 v9, s{sT+1}, v9
    """)
    order = sp_order()
    pre = [[] for _ in range(18)]
    seen = set()
    for n, (s, T, i) in enumerate(order):
        if T not in seen:
            seen.add(T)
            m = max(n - 1, 0)
            for r in range(4):
                pre[m if n > 0 else 0].append(ins(f"v_add_f32 v{Y_+4*T+r}, v{M_+4*T+r}, v{Y_+4*T+r}"))
    def ywrite(T):
        def f():
            a(f"ds_write_b128 v9, v[{Y_+4*T}:{Y_+4*T+3}] offset:{T*1024}")
            sc.lds_issue(f"yw{T}")
        return f
    b_chunk(M_, 0, 0, pre0=pre, extra1=place([ywrite(T) for T in range(9)], 0, 2))
    def bar_y0():
        sc.need({f"yw{T}" for T in range(9)}, ())
        a("s_barrier")
    b_chunk(M_, 1, 0, extra0=place([bar_y0], 12))
    b_chunk(M_, 2, 0)
    stamp(a, 8)
    a(f"s_mov_b32 s{sTrip}, 1")
    a("L_B2:")
    assert sc.lds == st_l and sc.vm == st_v, (sc.lds, st_l, sc.vm, st_v)
    for u in range(3):
        b_chunk(M_, u, 0)
    stamp_dyn(a, 8, sTrip)
    a(f"s_add_u32 s{sTrip}, s{sTrip}, 1\ns_cmp_lt_u32 s{sTrip}, 3\ns_cbranch_scc1 L_B2")
    a("s_setprio 0")
    a(f"""
    s_lshr_b32 s{sT}, s{sWV}, 1
    s_and_b32 s{sT+1}, s{sWV}, 1
    s_mul_i32 s{sT+2}, s{sWV}, 5120
    s_add_u32 s{sT+2}, s{sT+2}, {LDS_Y1}
    v_lshlrev_b32 v9, 4, v0
    v_add_u32 v10, s{sT+2}, v9
    s_xor_b32 s{sT+2}, s{sWV}, 2
    s_mul_i32 s{sT+2}, s{sT+2}, 5120
    s_add_u32 s{sT+2}, s{sT+2}, {LDS_Y1}
    v_add_u32 v11, s{sT+2}, v9
    """)
    act_consts(a, f"s{sT+1}", sT + 5, sT + 6, 12)
    a(f"""
    s_mov_b32 s56, s{sT+5}
    s_mov_b32 s57, s{sT+5}
    s_mov_b32 s58, s{sT+6}
    s_mov_b32 s59, s{sT+6}
    s_mov_b32 s60, 1.0
    s_mov_b32 s61, 1.0
    v_mov_b32 v14, v12
    v_mov_b32 v15, v12
    """)
    a(f"""
    s_mul_i32 s49, s{sMT}, {9*2*18*512}
    s_lshl_b32 s48, s48, 9
    s_add_u32 s48, s48, s49
    s_add_u32 s48, s48, {18*512}
    s_mul_i32 s49, s{sT}, {2*18*512}
    s_add_u32 s48, s48, s49
    v_lshlrev_b32 v13, 3, v0
    v_add_u32 v13, s48, v13
    s_waitcnt lgkmcnt(0)
    s_cmp_eq_u32 s{sT}, 0
    s_cbranch_scc0 L_t_k1
    """)
    K = XA
    def tail(keep, send, lbl):
        for i, T in enumerate(send):
            a(f"ds_write_b128 v10, v[{M_+4*T}:{M_+4*T+3}] offset:{i*1024}")
        a("s_waitcnt lgkmcnt(0)\ns_barrier")
        for i, T in enumerate(keep):
            a(f"ds_read_b128 v[{K+4*i}:{K+4*i+3}], v11 offset:{i*1024}")
        for i, T in enumerate(keep):
            a(f"s_waitcnt lgkmcnt({len(keep)-1-i})")
            for r in (0, 2):
                a(f"v_pk_add_f32 v[{M_+4*T+r}:{M_+4*T+r+1}], v[{M_+4*T+r}:{M_+4*T+r+1}], v[{K+4*i+r}:{K+4*i+r+1}]")
        activation_pk(a, [M_ + 4*T + r for T in keep for r in (0, 2)], 56, 58, 60, 14, Y_)
        for i, T in enumerate(keep):
            a(f"s_mov_b32 s49, {i*2*2*18*512}")
            a(f"buffer_store_dwordx2 v[{Y_+2*i}:{Y_+2*i+1}], v13, s[{sE}:{sE+3}], s49 offen sc1")
    a("s_nop 7")
    tail([0, 2, 4, 6, 8], [1, 3, 5, 7], "k0")
    a("s_branch L_t_j\nL_t_k1:\ns_nop 7")
    tail([1, 3, 5, 7], [0, 2, 4, 6, 8], "k1")
    a("L_t_j:")
    stamp(a, 11)
    z_unit_setup(a, 1)
    z_units(a, [sWV], "m", 0)
    a("s_waitcnt lgkmcnt(0)\ns_barrier")
    stamp(a, 12)
    HF_OFF[0] = False
    stamp_flush(a)
    a("s_endpgm")
def z_unit_setup(a, q):
    a(f"""
    s_mul_i32 s48, s{sMT}, {9*2*18*512}
    s_mul_i32 s49, s{sNG}, {2*18*512}
    s_add_u32 s48, s48, s49
    s_add_u32 s48, s48, {q*18*512}
    v_lshlrev_b32 v14, 3, v0
    v_add_u32 v14, s48, v14
    v_lshlrev_b32 v15, 4, v0
    v_add_u32 v15, {LDS_Z}, v15
    """)
def z_units(a, cts, lbl, nap):
    ZL, ZZ, ZT, ZM = 128, 140, 146, 150
    for u, c in enumerate(cts):
        a(f"s_lshl_b32 s{50+2*u}, s{c}, 9\ns_add_u32 s{51+2*u}, s{50+2*u}, 4608")
    a(f"s_mov_b32 s{sSpin}, 0\nL_zp_{lbl}:")
    for u in range(len(cts)):
        a(f"buffer_load_dwordx2 v[{ZL+4*u}:{ZL+4*u+1}], v14, s[{sE}:{sE+3}], s{50+2*u} offen sc1")
        a(f"buffer_load_dwordx2 v[{ZL+4*u+2}:{ZL+4*u+3}], v14, s[{sE}:{sE+3}], s{51+2*u} offen sc1")
    a(f"s_add_u32 s{sSpin}, s{sSpin}, 1\ns_waitcnt vmcnt(0)")
    a(f"v_max_u32 v{ZM}, v{ZL}, v{ZL+1}\nv_max3_u32 v{ZM}, v{ZM}, v{ZL+2}, v{ZL+3}")
    for u in range(1, len(cts)):
        a(f"v_max3_u32 v{ZM}, v{ZM}, v{ZL+4*u}, v{ZL+4*u+1}\nv_max3_u32 v{ZM}, v{ZM}, v{ZL+4*u+2}, v{ZL+4*u+3}")
    a(f"""
    v_cmp_eq_u32 vcc, -1, v{ZM}
    s_cmp_ge_u32 s{sSpin}, {SPIN_MAX}
    s_cbranch_scc1 L_zd_{lbl}
    s_cbranch_vccz L_zd_{lbl}
    """)
    if nap: a(f"s_sleep {nap}")
    a(f"s_branch L_zp_{lbl}\nL_zd_{lbl}:")
    for u, c in enumerate(cts):
        z_mul(a, ZZ + 2*u, ZL + 4*u, ZL + 4*u + 2, ZT)
        z_mul(a, ZZ + 2*u + 1, ZL + 4*u + 1, ZL + 4*u + 3, ZT)
        a(f"""
        s_lshr_b32 s48, s{c}, 1
        s_lshl_b32 s48, s48, 10
        s_and_b32 s49, s{c}, 1
        s_lshl_b32 s49, s49, 3
        s_add_u32 s48, s48, s49
        v_add_u32 v{ZM}, s48, v15
        ds_write_b64 v{ZM}, v[{ZZ+2*u}:{ZZ+2*u+1}]
        """)
WO = 64
def gen_helper(a):
    sH = sT
    sCw, sSl, sCs, sSs = 72, 73, 74, 75
    vSx, vSw, vPat, vLo = 20, 21, 22, 23
    SB, SD, ID, IJ = 28, 40, 52, 56
    a(f"s_sub_u32 s{sH}, s{sWV}, 4")
    if "pfine" in OPT: HF_OFF[0] = True
    for i in range(4):
        a(f"v_add_u32 v{16+i}, {i*(165888-1024)}, v3")
    def wdma():
        a(f"""
        s_mul_i32 s50, s{sH}, {4*165888}
        s_mul_i32 s49, s{sCw}, 9216
        s_add_u32 s50, s50, s49
        s_lshl_b32 s49, s{sH}, 12
        s_add_u32 s49, s49, s{sSl}
        s_add_u32 m0, s49, {LDS_W}
        s_add_u32 s{sSl}, s{sSl}, {WSLOT}
        s_cmp_eq_u32 s{sSl}, {3*WSLOT}
        s_cselect_b32 s{sSl}, 0, s{sSl}
        """)
        next_mod(a, sCw, 9)
        for i in range(4):
            if "nodma" in OPT and wdma.n > 0:
                a(f"buffer_load_dword v112, v0, s[{sD}:{sD+3}], 0 offen")
            else:
                a(f"buffer_load_dwordx4 v{16+i}, s[{sW}:{sW+3}], s50 offen offset:{i*1024} lds")
        wdma.n += 1
    wdma.n = 0
    PL = 176
    a(f"s_mov_b32 s{sCw}, 2\ns_mov_b32 s{sSl}, {2*WSLOT}")
    a(f"""
    v_bfe_u32 v24, v0, 1, 3
    v_lshlrev_b32 v24, 2, v24
    v_and_b32 v25, 1, v0
    v_add_u32 v24, v24, v25
    v_lshrrev_b32 v25, 5, v0
    v_lshl_add_u32 v24, v25, 1, v24
    v_mul_u32_u24 v{vSx}, 288, v24
    v_bfe_u32 v24, v0, 4, 1
    v_lshl_add_u32 v{vSx}, v24, 4, v{vSx}
    s_mul_i32 s48, s{sH}, 9216
    v_add_u32 v{vSx}, s48, v{vSx}
    v_and_b32 v24, 15, v0
    v_lshlrev_b32 v24, 5, v24
    v_bfe_u32 v26, v0, 2, 1
    v_xor_b32 v26, v26, v25
    v_lshl_add_u32 v24, v26, 4, v24
    v_bfe_u32 v26, v0, 4, 1
    v_lshl_add_u32 v24, v26, 3, v24
    s_lshl_b32 s48, s{sH}, 9
    s_add_u32 s48, s48, {LDS_S}
    v_add_u32 v{vSw}, s48, v24
    v_sub_u32 v{vLo}, 1, v25
    v_bfe_u32 v24, v0, 4, 1
    v_mul_u32_u24 v{vPat}, 544, v24
    v_bfe_u32 v24, v0, 2, 2
    v_lshl_add_u32 v{vPat}, v24, 6, v{vPat}
    v_and_b32 v24, 3, v0
    v_lshl_add_u32 v{vPat}, v24, 3, v{vPat}
    """)
    a(f"""
    v_lshrrev_b32 v24, 3, v0
    v_lshrrev_b32 v26, 4, v0
    v_xor_b32 v24, v24, v26
    v_and_b32 v24, 1, v24
    v_and_b32 v26, 1, v0
    v_lshlrev_b32 v26, 4, v26
    v_mov_b32 v27, 0x3f80
    v_lshlrev_b32 v27, v26, v27
    v_lshlrev_b32 v28, 15, v25
    v_lshlrev_b32 v28, v26, v28
    v_or_b32 v28, v28, v27
    v_bfe_u32 v26, v0, 1, 2
    v_lshl_or_b32 v26, v24, 2, v26
    """)
    for r in range(4):
        a(f"v_cmp_eq_u32 vcc, {r}, v26\ns_nop 1\nv_cndmask_b32 v{ID+r}, 0, v27, vcc\nv_cndmask_b32 v{IJ+r}, 0, v28, vcc")
    srd(a, sF, 14, 15, FL_OFF + FL_SIZE)
    def s_reads():
        if "nos" in OPT and s_compute.n > 0:
            a("v_lshlrev_b32 v113, 2, v0\nds_read_b32 v114, v113\nds_read_b32 v114, v113\nds_read_b32 v114, v113"); return
        a(f"""
        s_lshl_b32 s48, s{sCs}, 5
        v_add_u32 v24, s48, v{vSx}
        v_lshrrev_b32 v25, 2, v24
        v_and_b32 v25, 64, v25
        v_xor_b32 v24, v24, v25
        v_add_u32 v25, {8*9216}, v24
        ds_read_b128 v[{SB}:{SB+3}], v24
        ds_read_b128 v[{SB+4}:{SB+7}], v24 offset:{4*9216}
        ds_read_b128 v[{SB+8}:{SB+11}], v25
        """)
    def s_compute(between=None):
        if "nos" in OPT and s_compute.n > 0: return
        a(f"v_add_u32 v26, s{sSs}, v{vSw}")
        a("s_setprio 3")
        for k in range(3):
            a(f"v_mfma_f32_16x16x32_bf16 v[{SD+4*k}:{SD+4*k+3}], v[{ID}:{ID+3}], v[{SB+4*k}:{SB+4*k+3}], 0")
        a("s_setprio 0")
        if between: between()
        else: a("s_nop 7")
        for k in range(3):
            if k == 2: a("s_nop 3")
            a(f"v_cvt_pk_bf16_f32 v{SD+4*k}, v{SD+4*k}, v{SD+4*k+1}\nv_cvt_pk_bf16_f32 v{SD+4*k+1}, v{SD+4*k+2}, v{SD+4*k+3}")
            if k == 2:
                lab = s_compute.n; s_compute.n += 1
                a(f"s_cmp_eq_u32 s{sH}, 3\ns_cbranch_scc1 L_s3_{lab}")
            a(f"ds_write_b64 v26, v[{SD+4*k}:{SD+4*k+1}] offset:{2048*k}")
        a(f"L_s3_{lab}:")
    s_compute.n = 0
    PB, PD, PK = 64, 128, 160
    def prod_stage():
        a(f"""
        s_mul_i32 s57, s{sH}, 5120
        s_add_u32 s57, s57, {LDS_W + 3*WSLOT - 4*5120}
        v_lshlrev_b32 v24, 4, v0
        v_add_u32 v24, s57, v24
        """)
        for k in range(5):
            a(f"ds_write_b128 v24, v[{PL+4*k}:{PL+4*k+3}] offset:{1024*k}")
        a("s_waitcnt lgkmcnt(0)")
        for c, e, o in ((0, 0, 1024), (2, 0, 2048), (1, 3072, 2048), (3, 3072, 4096)):
            a(f"v_mul_u32_u24 v26, {o}, v{vLo}\nv_sub_u32 v27, 1, v{vLo}\nv_mul_u32_u24 v27, {e}, v27\nv_add3_u32 v26, v26, v27, v{vPat}")
            a(f"v_add_u32 v26, s57, v26\nv_xor_b32 v27, 32, v26")
            for nh in range(2):
                b = PB + 8 * c + 4 * nh
                for h in range(2):
                    a(f"ds_read_b64_tr_b16 v[{b+2*h}:{b+2*h+1}], v{26+nh} offset:{h*256}")
        a("s_waitcnt lgkmcnt(0)")
    def production():
        a("s_setprio 3")
        for f in range(8):
            a(f"v_mfma_f32_16x16x32_bf16 v[{PD+4*f}:{PD+4*f+3}], v[{IJ}:{IJ+3}], v[{PB+4*f}:{PB+4*f+3}], 0")
        a("s_setprio 0")
        a(f"""
        s_add_u32 s57, s53, s{sH}
        s_and_b32 s58, s57, 3
        s_lshl_b32 s58, s58, 1
        s_lshr_b32 s57, s57, 2
        s_add_u32 s57, s57, s58
        s_lshl_b32 s58, s{sCP}, 3
        s_add_u32 s57, s57, s58
        s_lshl_b32 s57, s57, 11
        s_mul_i32 s58, s{sNG}, 147456
        s_add_u32 s57, s57, s58
        s_cmp_ge_u32 s{sH}, s54
        s_cselect_b32 s57, 0x7f000000, s57
        s_add_u32 s58, s57, {GF_PROD}
        v_and_b32 v26, 15, v0
        v_lshlrev_b32 v26, 4, v26
        v_lshrrev_b32 v27, 5, v0
        v_lshl_add_u32 v26, v27, 8, v26
        v_bfe_u32 v27, v0, 4, 1
        v_lshl_add_u32 v26, v27, 3, v26
        """)
        for f in range(8):
            c, nh = f >> 1, f & 1
            a(f"v_cvt_pk_bf16_f32 v{PK+2*f}, v{PD+4*f}, v{PD+4*f+1}\nv_cvt_pk_bf16_f32 v{PK+2*f+1}, v{PD+4*f+2}, v{PD+4*f+3}")
            so = "s57" if c < 2 else "s58"
            a(f"buffer_store_dwordx2 v[{PK+2*f}:{PK+2*f+1}], v26, s[{sG}:{sG+3}], {so} offen offset:{nh*1024 + (c & 1)*512} sc1")
    if "xfine" in OPT: stamp(a, 6)
    a("s_waitcnt vmcnt(0)")
    if "xfine" in OPT: stamp(a, 7)
    prod_stage()
    if "xfine" in OPT: stamp(a, 8)
    production()
    if "xfine" in OPT: stamp(a, 9)
    a(f"s_mov_b32 s{sCs}, 0\ns_mov_b32 s{sSs}, 0")
    if "xfine" in OPT: stamp(a, 10)
    a("s_barrier")
    if "xfine" in OPT: stamp(a, 11)
    s_reads()
    a("s_waitcnt lgkmcnt(0)")
    s_compute()
    a(f"v_mov_b32 v26, {NOFF}\nbuffer_load_dword v60, v26, s[{sD}:{sD+3}], 0 offen sc1")
    next_mod(a, sCs, 9)
    s_reads()
    if "xfine" in OPT: stamp(a, 12)
    a("s_waitcnt lgkmcnt(3)")
    if "xfine" in OPT: stamp(a, 13)
    a("s_barrier")
    if "xfine" in OPT: stamp(a, 14); HF_OFF[0] = True
    for r in range(4): a(f"v_mov_b32 v{120+r}, -1")
    def flag_store(kind):
        a(f"""
        s_mul_i32 s49, s{sNG}, 28
        s_add_u32 s49, s49, s{sMT}
        s_lshl_b32 s49, s49, 7
        """)
        if kind == "A":
            a(f"s_lshl_b32 s48, s{sH}, 2\ns_add_u32 s49, s49, s48\ns_add_u32 s49, s49, {FL_OFF}\ns_cmp_lt_u32 s{sH}, 3")
        else:
            a(f"s_add_u32 s49, s49, {FL_OFF + 12}\ns_cmp_eq_u32 s{sH}, 1")
        a(f"""
        s_cselect_b32 s49, s49, 0x7f000000
        v_mov_b32 v26, s49
        v_mov_b32 v27, s{sNonce}
        s_mov_b64 exec, 1
        buffer_store_dword v27, v26, s[{sF}:{sF+3}], 0 offen sc1
        s_mov_b64 exec, -1
        """)
    def poison():
        a(f"""
        s_mul_i32 s56, s{sMT}, {9*2*18*512}
        s_lshl_b32 s57, s{sNG}, 10
        s_add_u32 s56, s56, s57
        v_lshlrev_b32 v26, 4, v0
        v_add_u32 v26, s56, v26
        """)
        for i in range(5):
            a(f"s_add_u32 s57, s{sH}, {4*i}\ns_min_u32 s57, s57, 17\ns_mul_i32 s57, s57, {18*512}")
            a(f"buffer_store_dwordx4 v[120:123], v26, s[{sE}:{sE+3}], s57 offen sc1")
    waits = {0: 4, 1: 5, 2: 4, 3: 4, 4: 9, 5: 9, 6: 4, 7: 0, 8: 0}
    for it in range(9):
        if it == 5 and "hfine" in OPT: stamp(a, 1)
        if it == 7:
            gf_flag_addr(a)
            a(f"s_cmp_lg_u32 s{sH}, 0\ns_cbranch_scc1 L_H_np")
            a(f"buffer_load_dwordx3 v[124:126], v63, s[{sF}:{sF+3}], 0 offen sc1")
            a("L_H_np:")
        if it <= 6:
            a(f"s_cmp_ge_u32 s{sH}, 2\ns_cbranch_scc1 L_H_d1_{it}")
            wdma()
            a(f"L_H_d1_{it}:")
        if it <= 7:
            a("s_waitcnt lgkmcnt(0)")
            a(f"s_xor_b32 s{sSs}, s{sSs}, {SSLOT}")
            s_compute()
        if it <= 6:
            a(f"s_cmp_lt_u32 s{sH}, 2\ns_cbranch_scc1 L_H_d2_{it}")
            wdma()
            a(f"L_H_d2_{it}:")
        if it == 4: poison()
        if it <= 6:
            next_mod(a, sCs, 9)
            s_reads()
        if it == 5 and "hfine" in OPT: stamp(a, 3)
        a(f"s_waitcnt vmcnt({waits[it]}) lgkmcnt({3 if it <= 6 else 0})")
        if it == 5 and "hfine" in OPT: stamp(a, 4)
        if it == 0:
            a(f"""
            s_mov_b32 s{sSpin}, 0
            L_H_nspin:
            v_readfirstlane_b32 s{sNonce}, v60
            s_add_u32 s{sSpin}, s{sSpin}, 1
            s_cmp_lg_u32 s{sNonce}, 0
            s_cbranch_scc1 L_H_n0
            s_cmp_ge_u32 s{sSpin}, {SPIN_MAX}
            s_cbranch_scc1 L_H_n0
            v_mov_b32 v26, {NOFF}
            buffer_load_dword v60, v26, s[{sD}:{sD+3}], 0 offen sc1
            s_waitcnt vmcnt(0)
            s_branch L_H_nspin
            L_H_n0:
            """)
            flag_store("A")
        if it == 7:
            a(f"""
            s_cmp_lg_u32 s{sH}, 0
            s_cbranch_scc1 L_H_f4
            s_mov_b32 s{sSpin}, 0
            L_H_fspin:
            v_cmp_ne_u32 vcc, s{sNonce}, v124
            v_cmp_ne_u32 s[56:57], s{sNonce}, v125
            v_cmp_ne_u32 s[58:59], s{sNonce}, v126
            s_add_u32 s{sSpin}, s{sSpin}, 1
            s_or_b64 vcc, vcc, s[56:57]
            s_or_b64 vcc, vcc, s[58:59]
            s_cmp_ge_u32 s{sSpin}, {SPIN_MAX}
            s_cbranch_scc1 L_H_f4
            s_cbranch_vccz L_H_f4
            buffer_load_dwordx3 v[124:126], v63, s[{sF}:{sF+3}], 0 offen sc1
            s_waitcnt vmcnt(0)
            s_branch L_H_fspin
            L_H_f4:
            """)
        a("s_barrier")
        if it == 5 and "hfine" in OPT: stamp(a, 5)
        if it == 6 and "hfine" in OPT: stamp(a, 6)
    if "hfine" not in OPT: stamp(a, 1)
    if "hfine" in OPT: HF_OFF[0] = True
    flag_store("B")
    a(f"v_lshlrev_b32 v24, 4, v0\ns_mov_b32 s50, s{sH}")
    a(f"""
    L_wo:
    s_lshl_b32 s51, s50, 10
    s_add_u32 m0, s51, {LDS_W}
    s_add_u32 s50, s50, 4
    buffer_load_dwordx4 v24, s[{sWo}:{sWo+3}], s51 offen lds
    s_sleep 2
    s_cmp_lt_u32 s50, 41
    s_cbranch_scc1 L_wo
    s_barrier
    """)
    a(f"s_mul_i32 s48, s{sB}, {XB_SIZE}\ns_add_u32 s10, s10, s48\ns_addc_u32 s11, s11, 0")
    srd(a, sO, 10, 11, XB_SIZE)
    a(f"""
    v_mul_u32_u24 v62, 28, v0
    v_add_u32 v62, s{sMT}, v62
    v_lshlrev_b32 v62, 7, v62
    v_add_u32 v62, {FL_OFF + 12}, v62
    s_mov_b32 s{sSpin}, 0
    s_mov_b64 exec, 0x1ff
    L_fb:
    buffer_load_dword v61, v62, s[{sF}:{sF+3}], 0 offen sc1
    s_add_u32 s{sSpin}, s{sSpin}, 1
    s_waitcnt vmcnt(0)
    v_cmp_ne_u32 vcc, s{sNonce}, v61
    s_cmp_ge_u32 s{sSpin}, {SPIN_MAX}
    s_cbranch_scc1 L_fbd
    s_cbranch_vccz L_fbd
    s_sleep 4
    s_branch L_fb
    L_fbd:
    s_mov_b64 exec, -1
    s_barrier
    """)
    a(f"""
    v_lshrrev_b32 v24, 2, v0
    v_mul_u32_u24 v24, 288, v24
    v_and_b32 v25, 3, v0
    v_lshlrev_b32 v25, 3, v25
    v_add_u32 v24, v24, v25
    s_lshl_b32 s48, s{sH}, 5
    s_add_u32 s48, s48, {LDS_W}
    v_add_u32 v24, s48, v24
    v_add_u32 v25, {8*32}, v24
    """)
    for d, (va, off) in enumerate(((24, 0), (24, 128), (25, 0))):
        base = WO + 18 * d
        for P in range(4):
            a(f"ds_read_b64_tr_b16 v[{base+4*P}:{base+4*P+1}], v{va} offset:{off + 32*P*288}")
            a(f"ds_read_b64_tr_b16 v[{base+4*P+2}:{base+4*P+3}], v{va} offset:{off + (32*P+16)*288}")
        a(f"ds_read_b64_tr_b16 v[{base+16}:{base+17}], v{va} offset:{off + 128*288}")
        a("s_waitcnt lgkmcnt(0)")
    a(f"""
    v_and_b32 v41, 15, v0
    v_lshrrev_b32 v42, 1, v41
    v_lshlrev_b32 v42, 2, v42
    v_and_b32 v41, 1, v41
    v_add_u32 v41, v41, v42
    s_mul_i32 s48, s{sMTL}, 288
    s_lshl_b32 s49, s{sNG}, 5
    s_add_u32 s48, s48, s49
    v_add_u32 v41, s48, v41
    v_mul_u32_u24 v41, 288, v41
    v_lshrrev_b32 v42, 4, v0
    v_lshlrev_b32 v42, 3, v42
    v_add_u32 v41, v41, v42
    s_lshl_b32 s48, s{sH}, 5
    v_add_u32 v41, s48, v41
    """)
    a(f"s_and_b32 s76, s{sH}, 1\ns_lshr_b32 s77, s{sH}, 1")
    act_consts(a, "s76", 78, 79, 43)
    a(f"""
    s_mul_i32 s49, s{sMT}, {9*2*18*512}
    s_lshl_b32 s48, s48, 9
    s_add_u32 s48, s48, s49
    s_mul_i32 s49, s77, {2*18*512}
    s_add_u32 s48, s48, s49
    v_lshlrev_b32 v44, 3, v0
    v_add_u32 v44, s48, v44
    s_mul_i32 s48, s76, 9216
    s_lshl_b32 s49, s77, 10
    s_add_u32 s48, s48, s49
    s_add_u32 s48, s48, {LDS_Y0}
    v_lshlrev_b32 v45, 4, v0
    v_add_u32 v45, s48, v45
    """)
    a(f"v_mov_b32 v24, {LDS_CNT}\nv_mov_b32 v25, 0\nds_write_b32 v24, v25\ns_waitcnt lgkmcnt(0)")
    a("s_barrier")
    stamp(a, 2)
    a("s_barrier")
    for i in range(5):
        a(f"ds_read_b128 v[{128+4*i}:{131+4*i}], v45 offset:{i*2048}")
        a(f"ds_read_b128 v[{148+4*i}:{151+4*i}], v45 offset:{i*2048 + 2*9216}")
    for i in range(5):
        a(f"s_waitcnt lgkmcnt({8-2*i})")
        for r in range(4): a(f"v_add_f32 v{128+4*i+r}, v{128+4*i+r}, v{148+4*i+r}")
    activation(a, list(range(128, 148)), 78, 79, 43, 20)
    for i in range(5):
        if i == 4: a("s_cmp_eq_u32 s77, 1\ns_cbranch_scc1 L_y0_done")
        a(f"s_mov_b32 s49, {i*2*2*18*512}")
        a(f"buffer_store_dwordx2 v[{20+2*i}:{21+2*i}], v44, s[{sE}:{sE+3}], s49 offen sc1")
    a("L_y0_done:")
    stamp(a, 3)
    z_unit_setup(a, 0)
    a(f"s_add_u32 s60, s{sH}, 4\ns_cmp_eq_u32 s{sH}, 0\ns_cselect_b32 s61, 8, s{sH}\ns_sleep 12")
    z_units(a, [sH, 60, 61], "q0", 4)
    if "qfine" in OPT: stamp(a, 9)
    a(f"""
    s_waitcnt lgkmcnt(0)
    v_mov_b32 v24, {LDS_CNT}
    v_mov_b32 v25, 1
    s_mov_b64 exec, 1
    ds_add_u32 v24, v25
    s_mov_b64 exec, -1
    s_mov_b32 s{sSpin}, 0
    L_q0c:
    ds_read_b32 v25, v24
    s_add_u32 s{sSpin}, s{sSpin}, 1
    s_waitcnt lgkmcnt(0)
    v_readfirstlane_b32 s48, v25
    s_cmp_ge_u32 s{sSpin}, {SPIN_MAX}
    s_cbranch_scc1 L_q0cd
    s_cmp_lt_u32 s48, 4
    s_cbranch_scc0 L_q0cd
    s_sleep 1
    s_branch L_q0c
    L_q0cd:
    """)
    if "qfine" in OPT: stamp(a, 10)
    ZR = 160
    for P in range(4):
        a(f"ds_read_b128 v[{ZR+4*P}:{ZR+4*P+3}], v15 offset:{P*1024}")
    a(f"ds_read_b64 v[{ZR+16}:{ZR+17}], v15 offset:4096")
    a("s_waitcnt lgkmcnt(0)")
    def proj(zr, qoff, lbl):
        a("s_setprio 3")
        for P in range(4):
            for d in range(3):
                base = WO + 18 * d; acc = 20 + 4 * d
                c = "0" if P == 0 else f"v[{acc}:{acc+3}]"
                a(f"v_mfma_f32_16x16x32_bf16 v[{acc}:{acc+3}], v[{base+4*P}:{base+4*P+3}], v[{zr+4*P}:{zr+4*P+3}], {c}")
        a("s_nop 7")
        for d in range(3):
            base = WO + 18 * d; acc = 20 + 4 * d
            a(f"v_mfma_f32_16x16x16_bf16 v[{acc}:{acc+3}], v[{base+16}:{base+17}], v[{zr+16}:{zr+17}], v[{acc}:{acc+3}]")
        a("s_setprio 0\ns_nop 7")
        for d in range(3):
            acc = 20 + 4 * d
            if d == 2: a(f"s_cmp_lg_u32 s{sH}, 0\ns_cbranch_scc1 L_pj_{lbl}")
            a(f"v_cvt_pk_bf16_f32 v{32+2*d}, v{acc}, v{acc+1}\nv_cvt_pk_bf16_f32 v{33+2*d}, v{acc+2}, v{acc+3}")
            a(f"buffer_store_dwordx2 v[{32+2*d}:{33+2*d}], v41, s[{sO}:{sO+3}], 0 offen offset:{qoff + 128*d}")
        a(f"L_pj_{lbl}:")
    if "qfine" in OPT: stamp(a, 11)
    proj(ZR, 0, "q0")
    stamp(a, 4)
    a("s_barrier")
    z_unit_setup(a, 1)
    a(f"s_add_u32 s60, s{sH}, 4\ns_cmp_eq_u32 s{sH}, 0\ns_cselect_b32 s61, 8, s60")
    z_units(a, [60, 61], "h", 0)
    a("s_waitcnt lgkmcnt(0)\ns_barrier")
    stamp(a, 5)
    a(f"v_lshlrev_b32 v15, 4, v0\nv_add_u32 v15, {LDS_Z}, v15")
    for P in range(4):
        a(f"ds_read_b128 v[{ZR+4*P}:{ZR+4*P+3}], v15 offset:{P*1024}")
    a(f"ds_read_b64 v[{ZR+16}:{ZR+17}], v15 offset:4096")
    a("s_waitcnt lgkmcnt(0)")
    proj(ZR, 576, "q1")
    stamp(a, 6)
    a("s_waitcnt vmcnt(0)")
    if "dur" in OPT:
        a(f"""
        s_memrealtime s[98:99]
        s_waitcnt lgkmcnt(0)
        v_mov_b32 v4, s98
        v_mov_b32 v5, 12
        s_mov_b64 exec, 1
        buffer_atomic_umax v4, v5, s[{sD}:{sD+3}], 0 offen
        s_waitcnt vmcnt(0)
        s_mov_b64 exec, -1
        """)
    stamp(a, 7)
    stamp(a, 8)
    HF_OFF[0] = False
    stamp_flush(a)
    a("s_endpgm")
def gf_flag_addr(a):
    a(f"""
    v_min_u32 v63, 27, v0
    s_mul_i32 s48, s{sNG}, 28
    v_add_u32 v63, s48, v63
    v_lshlrev_b32 v63, 7, v63
    v_add_u32 v63, {FL_OFF}, v63
    """)
sys.stdout.write(gen())
```

```python
import sys
from asmlib import *
OPT = set(sys.argv[1].split(",")) if len(sys.argv) > 1 else set()
STAMP = "stamp" in OPT
NAME = "standalone__autoregressive_conv_wavenet__speech_kernel"
XROWS = 352
LDS_W = XROWS * 288
WSLOT = 16384
LDS_S = LDS_W + 3 * WSLOT
SSLOT = 176 * 32
LDS_TOTAL = 163840
LDS_Y0 = LDS_W
LDS_Y1 = LDS_W + 36864
LDS_Z = LDS_W + 57344
LDS_CNT = LDS_Y1 + 4096
GF_PROD = 9 * 72 * 2048
GF_SIZE = 2 * GF_PROD
E_OFF = 0x400000
E_SIZE = 28 * 9 * 2 * 18 * 512
FL_OFF = 0x900000
FL_SIZE = 256 * 128
W_SIZE = 31 * 144 * 288 * 2
XB_SIZE = 4000 * 288
STAMP_OFF = 0x1000000
SPIN_MAX = 200000
NOFF = 128 if 'dur' in OPT else 0
sX, sW, sG, sE, sO, sWo, sD, sF = 16, 20, 24, 28, 32, 36, 84, 88
sNG, sMT, sMTL, sB, sC0, sWV = 42, 43, 44, 45, 46, 47
sIt = 63
sT = 68
sNonce = 80
sSpin = 81
sCP = 82
ST0 = 92
def srd(a, d, lo, hi, size):
    a(f"s_mov_b32 s{d}, s{lo}\ns_and_b32 s{d+1}, s{hi}, 0xffff\ns_mov_b32 s{d+2}, {size}\ns_mov_b32 s{d+3}, 0x20000")
HF_OFF = [False]
def stamp(a, idx):
    if not STAMP or HF_OFF[0]: return
    import inspect
    if "xfine" in OPT and idx != 0 and 'xfine' not in inspect.stack()[1].code_context[0]: return
    a(f"s_memtime s[{ST0}:{ST0+1}]\ns_memrealtime s[{ST0+2}:{ST0+3}]\ns_waitcnt lgkmcnt(0)")
    a(f"v_writelane_b32 v253, s{ST0}, {2*idx}\nv_writelane_b32 v253, s{ST0+2}, {2*idx+1}")
def stamp_dyn(a, base, sreg):
    if not STAMP or HF_OFF[0]: return
    a(f"s_memtime s[{ST0}:{ST0+1}]\ns_memrealtime s[{ST0+2}:{ST0+3}]\ns_waitcnt lgkmcnt(0)")
    a(f"s_lshl_b32 s96, s{sreg}, 1\ns_add_u32 m0, s96, {2*base}\ns_nop 3")
    a(f"v_writelane_b32 v253, s{ST0}, m0\ns_add_u32 m0, m0, 1\ns_nop 3\nv_writelane_b32 v253, s{ST0+2}, m0")
def stamp_flush(a):
    if not STAMP: return
    a(f"""
    s_mov_b32 s{ST0}, s14
    s_and_b32 s{ST0+1}, s15, 0xffff
    s_mov_b32 s{ST0+2}, 0x2000000
    s_mov_b32 s{ST0+3}, 0x20000
    s_lshl_b32 s48, s2, 3
    s_add_u32 s48, s48, s{sWV}
    s_lshl_b32 s48, s48, 7
    s_add_u32 s48, s48, {STAMP_OFF}
    v_lshlrev_b32 v252, 2, v0
    v_add_u32 v252, s48, v252
    s_mov_b64 exec, 0xffffffff
    buffer_store_dword v253, v252, s[{ST0}:{ST0+3}], 0 offen
    s_waitcnt vmcnt(0)
    s_mov_b64 exec, -1
    """)
def bf16_op(a, op, dst, xa, xb, t):
    a(f"v_lshlrev_b32 v{t}, 16, v{xa}")
    a(f"v_lshlrev_b32 v{t+1}, 16, v{xb}")
    a(f"v_and_b32 v{t+2}, 0xffff0000, v{xa}")
    a(f"v_and_b32 v{t+3}, 0xffff0000, v{xb}")
    a(f"{op} v{t}, v{t}, v{t+1}")
    a(f"{op} v{t+2}, v{t+2}, v{t+3}")
    a(f"v_cvt_pk_bf16_f32 v{dst}, v{t}, v{t+2}")
def next_mod(a, s, n):
    a(f"s_add_u32 s{s}, s{s}, 1\ns_cmp_eq_u32 s{s}, {n}\ns_cselect_b32 s{s}, 0, s{s}")
def tr_lane(a, vd, vt, vt2):
    a(f"""
    v_lshrrev_b32 v{vd}, 5, v0
    v_lshlrev_b32 v{vd}, 10, v{vd}
    v_bfe_u32 v{vt}, v0, 4, 1
    v_mul_u32_u24 v{vt}, 544, v{vt}
    v_add_u32 v{vd}, v{vd}, v{vt}
    v_bfe_u32 v{vt}, v0, 2, 2
    v_lshlrev_b32 v{vt}, 6, v{vt}
    v_add_u32 v{vd}, v{vd}, v{vt}
    v_and_b32 v{vt}, 3, v0
    v_lshlrev_b32 v{vt}, 3, v{vt}
    v_add_u32 v{vd}, v{vd}, v{vt}
    """)
def activation(a, regs, sA, sS1, vS0, dst):
    for r in regs: a(f"v_mul_f32 v{r}, s{sA}, v{r}")
    for r in regs: a(f"v_exp_f32 v{r}, v{r}")
    for r in regs: a(f"v_add_f32 v{r}, 1.0, v{r}")
    for r in regs: a(f"v_rcp_f32 v{r}, v{r}")
    a("s_nop 0")
    for r in regs: a(f"v_fma_f32 v{r}, v{r}, s{sS1}, v{vS0}")
    for k in range(len(regs) // 2):
        a(f"v_cvt_pk_bf16_f32 v{dst+k}, v{regs[2*k]}, v{regs[2*k+1]}")
    for k in range(len(regs) // 2):
        a(f"v_min_u32 v{dst+k}, 0xfffffffe, v{dst+k}")
def activation_pk(a, pairs, sA, sS1, sOne, vS0, dst):
    for r in pairs: a(f"v_pk_mul_f32 v[{r}:{r+1}], v[{r}:{r+1}], s[{sA}:{sA+1}]")
    for r in pairs: a(f"v_exp_f32 v{r}, v{r}\nv_exp_f32 v{r+1}, v{r+1}")
    for r in pairs: a(f"v_pk_add_f32 v[{r}:{r+1}], v[{r}:{r+1}], s[{sOne}:{sOne+1}]")
    for r in pairs: a(f"v_rcp_f32 v{r}, v{r}\nv_rcp_f32 v{r+1}, v{r+1}")
    for r in pairs: a(f"v_pk_fma_f32 v[{r}:{r+1}], v[{r}:{r+1}], s[{sS1}:{sS1+1}], v[{vS0}:{vS0+1}]")
    for k, r in enumerate(pairs): a(f"v_cvt_pk_bf16_f32 v{dst+k}, v{r}, v{r+1}")
    for k in range(len(pairs)): a(f"v_min_u32 v{dst+k}, 0xfffffffe, v{dst+k}")

def act_consts(a, nh_s, sA, sS1, vS0):
    a(f"""
    s_lshl_b32 s48, s{sNG}, 1
    s_add_u32 s48, s48, {nh_s}
    s_cmp_lt_u32 s48, 9
    s_mov_b32 s{sA}, 0xbfb8aa3b
    s_cselect_b32 s{sA}, 0xc038aa3b, s{sA}
    s_cselect_b32 s{sS1}, 2.0, 1.0
    s_cselect_b32 s49, -1.0, 0
    v_mov_b32 v{vS0}, s49
    """)
def z_mul(a, dst, f, g, t):
    bf16_op(a, "v_mul_f32", dst, f, g, t)
def gen():
    a = Asm()
    a(f"; @launch grid=(252,1,1) block=(512,1,1) lds={LDS_TOTAL}")
    a('.amdgcn_target "amdgcn-amd-amdhsa--gfx950"')
    a(".text")
    a(f".globl {NAME}")
    kernel_header(a, NAME)
    a("s_cmp_ge_u32 s2, 252\ns_cbranch_scc1 L_end")
    a("""
    s_load_dwordx4 s[4:7], s[0:1], 0
    s_load_dwordx4 s[8:11], s[0:1], 16
    s_load_dwordx4 s[12:15], s[0:1], 32
    s_getpc_b64 s[40:41]
    L_pc:
    v_lshlrev_b32 v1, 7, v0
    v_min_u32 v1, L_code_end-L_pc-4, v1
    global_load_dword v254, v1, s[40:41]
    """)
    if STAMP: a("v_mov_b32 v253, 0")
    if "dur" in OPT: a("s_memrealtime s[98:99]")
    stamp(a, 0)
    a(f"""
    v_lshrrev_b32 v1, 6, v0
    v_and_b32 v0, 63, v0
    v_readfirstlane_b32 s{sWV}, v1
    s_and_b32 s48, s2, 7
    s_lshr_b32 s49, s2, 3
    s_and_b32 s50, s48, 3
    s_lshr_b32 s48, s48, 2
    s_lshl_b32 s48, s48, 5
    s_add_u32 s48, s48, s49
    s_mul_i32 s51, s48, 7282
    s_lshr_b32 s51, s51, 16
    s_mul_i32 s49, s51, 9
    s_sub_u32 s{sNG}, s48, s49
    s_mul_i32 s{sMT}, s50, 7
    s_add_u32 s{sMT}, s{sMT}, s51
    s_lshr_b32 s{sB}, s50, 1
    s_and_b32 s50, s50, 1
    s_mul_i32 s50, s50, 7
    s_add_u32 s{sMTL}, s50, s51
    s_mul_i32 s52, s{sMT}, 7282
    s_lshr_b32 s52, s52, 16
    s_mul_i32 s49, s52, 9
    s_sub_u32 s{sCP}, s{sMT}, s49
    s_mov_b32 s{sC0}, 0
    """)
    a(f"""
    s_cmp_eq_u32 s{sCP}, 0
    s_cselect_b32 s55, 2, 3
    s_mul_i32 s53, s52, s55
    s_sub_u32 s54, 8, s53
    s_min_u32 s54, s54, s55
    """)
    a(f"""
    v_lshrrev_b32 v3, 2, v0
    v_mul_u32_u24 v3, 576, v3
    v_lshrrev_b32 v4, 5, v0
    v_lshlrev_b32 v4, 1, v4
    v_xor_b32 v4, v4, v0
    v_and_b32 v4, 3, v4
    v_lshlrev_b32 v4, 4, v4
    s_lshl_b32 s48, s{sNG}, 6
    v_add3_u32 v3, v3, v4, s48
    """)
    a("""
    v_lshrrev_b32 v12, 2, v0
    v_and_b32 v12, 4, v12
    v_xor_b32 v12, v12, v0
    v_lshlrev_b32 v12, 4, v12
    """)
    a("s_waitcnt lgkmcnt(0)")
    if "pfine" in OPT or "xfine" in OPT: stamp(a, 1)
    a(f"s_mul_i32 s48, s{sB}, {XB_SIZE}\ns_add_u32 s4, s4, s48\ns_addc_u32 s5, s5, 0")
    srd(a, sX, 4, 5, XB_SIZE)
    srd(a, sW, 6, 7, W_SIZE)
    srd(a, sD, 12, 13, 256)
    a(f"""
    s_lshl_b32 s48, s2, 3
    s_add_u32 s48, s48, s{sWV}
    s_cmp_lg_u32 s48, 4
    s_cbranch_scc1 L_nononce
    s_memrealtime s[56:57]
    s_waitcnt lgkmcnt(0)
    s_or_b32 s56, s56, 1
    v_mov_b32 v4, s56
    v_mov_b32 v5, {NOFF}
    s_mov_b64 exec, 1
    buffer_store_dword v4, v5, s[{sD}:{sD+3}], 0 offen sc1
    s_mov_b64 exec, -1
    L_nononce:
    """)
    PL = 176
    def w_share(dst):
        a(f"""
        s_lshr_b32 s48, s2, 3
        s_and_b32 s50, s48, 1
        s_mul_i32 s50, s50, 36
        v_add_u32 v10, s50, v0
        v_lshlrev_b32 v10, 7, v10
        s_lshr_b32 s48, s48, 1
        s_mul_i32 s48, s48, 165888
        s_mul_i32 s50, s{sWV}, 9216
        s_add_u32 s48, s48, s50
        s_mov_b32 exec_hi, 0xf
        buffer_load_dword v{dst}, v10, s[{sW}:{sW+3}], s48 offen
        s_mov_b32 exec_hi, -1
        """)
    def x_loop(lbl, end_s):
        a(f"""
        {lbl}:
        s_cmp_ge_u32 s50, 99
        s_cselect_b32 s51, 99, 0
        s_sub_u32 s50, s50, s51
        s_lshl_b32 s51, s50, 10
        s_mov_b32 m0, s51
        s_add_i32 s51, s51, s49
        s_cmp_lt_i32 s51, 0
        s_cselect_b32 s58, 0x7fff0000, 0
        v_or_b32 v11, s58, v12
        s_max_i32 s51, s51, 0
        s_add_u32 s50, s50, 4
        s_add_u32 s59, s59, 4
        buffer_load_dwordx4 v11, s[{sX}:{sX+3}], s51 offen lds
        s_cmp_lt_u32 s59, {end_s}
        s_cbranch_scc1 {lbl}
        """)
    a(f"""
    s_mul_i32 s49, s{sMTL}, {288*288}
    s_sub_i32 s49, s49, {64*288}
    s_cmp_ge_u32 s{sWV}, 4
    s_cbranch_scc1 L_hfirst
    s_cmp_ge_u32 s{sWV}, 2
    s_cbranch_scc1 L_nopf0
    """)
    w_share(251)
    a(f"""
    L_nopf0:
    s_mov_b32 s59, s{sWV}
    s_mul_i32 s60, s{sNG}, 11
    s_add_u32 s60, s60, s59
    s_mov_b32 s50, s60
    """)
    x_loop("L_xl0", 12)
    if "xfine" in OPT: stamp(a, 2)
    a(f"s_cmp_lt_u32 s{sWV}, 2\ns_cbranch_scc1 L_nopf1\ns_mov_b32 s62, s50")
    w_share(251)
    a("s_mov_b32 s50, s62\nL_nopf1:")
    x_loop("L_xl1", 99)
    if "xfine" in OPT: stamp(a, 3)
    a("s_branch L_xdone\nL_hfirst:")
    a(f"""
    s_sub_u32 s61, s{sWV}, 4
    s_lshl_b32 s56, s54, 2
    s_add_u32 s56, s56, 1
    s_lshl_b32 s57, s56, 1
    s_mul_i32 s58, s{sNG}, s56
    s_lshl_b32 s58, s58, 3
    s_mul_i32 s59, s61, s57
    s_add_u32 s58, s58, s59
    v_add_u32 v10, s58, v0
    v_mul_u32_u24 v11, 911, v10
    v_lshrrev_b32 v11, 16, v11
    v_mul_u32_u24 v13, 72, v11
    v_sub_u32 v10, v10, v13
    v_lshlrev_b32 v10, 7, v10
    s_lshl_b32 s58, s53, 2
    s_sub_u32 s58, s58, 1
    v_add_u32 v11, s58, v11
    s_mov_b32 s58, 82944
    v_mul_lo_u32 v11, v11, s58
    v_add_u32 v10, v10, v11
    s_mul_i32 s58, s{sCP}, 9216
    v_add_u32 v10, s58, v10
    v_cmp_gt_u32 vcc, s57, v0
    s_nop 1
    s_mov_b64 exec, vcc
    buffer_load_dword v251, v10, s[{sW}:{sW+3}], 0 offen
    s_mov_b64 exec, -1
    """)
    if "xfine" in OPT: stamp(a, 2)
    a(f"""
    s_add_u32 s56, s53, s61
    s_lshl_b32 s56, s56, 1
    s_mul_i32 s57, s56, 165888
    s_mul_i32 s58, s{sCP}, 9216
    s_add_u32 s57, s57, s58
    s_sub_u32 s58, s57, 82944
    s_cmp_eq_u32 s56, 0
    s_cselect_b32 s58, 0, s58
    s_cselect_b32 s59, 0x7fff0000, 0
    s_cmp_ge_u32 s61, s54
    s_cselect_b32 s60, 0x7fff0000, 0
    s_or_b32 s59, s59, s60
    v_or_b32 v24, s59, v3
    v_or_b32 v25, s60, v3
    s_waitcnt vmcnt(0)
    """)
    if "xfine" in OPT: stamp(a, 3)
    a(f"""
    buffer_load_dwordx4 v[{PL}:{PL+3}], v25, s[{sW}:{sW+3}], s57 offen
    buffer_load_dwordx4 v[{PL+4}:{PL+7}], v24, s[{sW}:{sW+3}], s58 offen
    s_add_u32 s58, s57, 82944
    buffer_load_dwordx4 v[{PL+8}:{PL+11}], v25, s[{sW}:{sW+3}], s58 offen
    s_add_u32 s58, s57, 165888
    buffer_load_dwordx4 v[{PL+12}:{PL+15}], v25, s[{sW}:{sW+3}], s58 offen
    s_add_u32 s58, s57, 248832
    buffer_load_dwordx4 v[{PL+16}:{PL+19}], v25, s[{sW}:{sW+3}], s58 offen
    """)
    a("L_xdone:")
    if "pfine" in OPT: stamp(a, 2)
    srd(a, sWo, 8, 9, 144 * 288)
    srd(a, sG, 14, 15, GF_SIZE)
    a(f"s_add_u32 s48, s14, {E_OFF}\ns_addc_u32 s49, s15, 0")
    srd(a, sE, 48, 49, E_SIZE)
    a(f"s_cmp_ge_u32 s{sWV}, 4\ns_cbranch_scc1 L_helper")
    gen_mfma(a)
    a("L_helper:")
    gen_helper(a)
    a("L_end:\ns_endpgm\nL_code_end:")
    a('.section .rodata,"a"')
    a(".p2align 6")
    kernel_desc(a, NAME, 256)
    return a.text()
M_, Y_ = 16, 52
XA, XB = 88, 128
GR = 168
WA, WB = GR + 32, GR + 40
vS, vW, vG, vXb, vSb, vWb = 2, 4, 5, 6, 7, 8
vS1, vSb1 = 15, 216
vP = ((3, 10), (11, 12))
vPt = 13
vW0 = 14
sD0, sD1 = 76, 77
sSlotW, sSlotS = 61, 62
sGc, sGp, sGo0, sGo1 = 64, 65, 66, 67
class Sched:
    def __init__(self, a):
        self.a = a; self.lds = []; self.vm = []
    def lds_issue(self, tag): self.lds.append(tag)
    def vm_issue(self, tag): self.vm.append(tag)
    def need(self, ltags=(), vtags=()):
        parts = []
        li = max((i for i, t in enumerate(self.lds) if t in ltags), default=-1)
        if li >= 0:
            n = min(len(self.lds) - 1 - li, 15)
            parts.append(f"lgkmcnt({n})")
            self.lds = self.lds[len(self.lds) - n:] if n > 0 else []
        vi = max((i for i, t in enumerate(self.vm) if t in vtags), default=-1)
        if vi >= 0:
            n = len(self.vm) - 1 - vi
            parts.append(f"vmcnt({n})")
            self.vm = self.vm[len(self.vm) - n:] if n > 0 else []
        if parts:
            self.a("s_waitcnt " + " ".join(parts))
def sp_order():
    r = []
    for i in range(10):
        if i >= 1: r.append((0, i - 1, i))
        if i <= 8: r.append((1, i, i))
    return r
def emit_sp(a, sc, acc, xset, wfrag, wtags, xp, fillers, pre=None, lookahead=4):
    order = sp_order()
    for n, (s, T, i) in enumerate(order):
        if pre is not None:
            for f in pre[n]: f()
        pend_l = set(sc.lds); pend_v = set(sc.vm)
        now_l = ({f"{xp}{i}"} | set(wtags[s][0])) & pend_l
        now_v = set(wtags[s][1]) & pend_v
        if now_l or now_v:
            lt = set()
            for (s2, T2, i2) in order[n:n + lookahead]:
                lt |= {f"{xp}{i2}"} | set(wtags[s2][0])
            lt &= pend_l
            sc.need(lt if now_l else (), now_v)
        d = acc + 4 * T
        a(f"v_mfma_f32_16x16x32_bf16 v[{d}:{d+3}], v[{wfrag[s]}:{wfrag[s]+3}], v[{xset+4*i}:{xset+4*i+3}], v[{d}:{d+3}]")
        for f in fillers[n]: f()
def place(items, start, step=1, ngaps=18):
    g = [[] for _ in range(ngaps)]
    for k, it in enumerate(items):
        g[start + k * step].append(it)
    return g
def merge(*gs):
    return [sum((g[n] for g in gs), []) for n in range(len(gs[0]))]
def gen_mfma(a):
    ins = lambda t: (lambda: a(t))
    a(f"v_mov_b32 v{vW0}, v3")
    for i in range(1, 4):
        a(f"v_add_u32 v{16+i}, {i*(165888-1024)}, v3")
    a(f"""
    s_mul_i32 s48, s{sWV}, {4*165888}
    s_lshl_b32 s49, s{sWV}, 12
    s_add_u32 m0, s49, {LDS_W}
    s_nop 0
    buffer_load_dwordx4 v3, s[{sW}:{sW+3}], s48 offen lds
    """)
    for i in range(1, 4):
        a(f"buffer_load_dwordx4 v{16+i}, s[{sW}:{sW+3}], s48 offen offset:{i*1024} lds")
    if "pfine" in OPT: stamp(a, 3)
    a("s_setprio 1")
    a(f"s_lshr_b32 s{sT}, s{sWV}, 1\ns_and_b32 s{sT+1}, s{sWV}, 1")
    a(f"""
    v_and_b32 v9, 15, v0
    v_lshrrev_b32 v10, 5, v0
    v_lshlrev_b32 v10, 1, v10
    v_sub_u32 v9, v9, v10
    s_lshl_b32 s{sT+2}, s{sT}, 3
    s_sub_u32 s{sT+2}, 12, s{sT+2}
    v_add_u32 v9, s{sT+2}, v9
    v_bfe_u32 v10, v0, 4, 1
    v_lshlrev_b32 v10, 4, v10
    v_bfe_u32 v11, v9, 2, 1
    v_lshlrev_b32 v11, 4, v11
    v_xor_b32 v11, v11, v10
    v_lshlrev_b32 v{vSb1}, 5, v9
    v_add_u32 v{vSb1}, v{vSb1}, v11
    v_add_u32 v{vSb1}, {LDS_S}, v{vSb1}
    v_xor_b32 v{vSb}, 16, v{vSb1}
    v_add_u32 v{vSb}, 128, v{vSb}
    v_bfe_u32 v9, v0, 1, 3
    v_lshrrev_b32 v11, 5, v0
    v_sub_u32 v9, v9, v11
    v_lshlrev_b32 v9, 2, v9
    v_and_b32 v11, 1, v0
    v_add_u32 v9, v9, v11
    s_lshl_b32 s{sT+2}, s{sT}, 4
    s_sub_u32 s{sT+2}, 24, s{sT+2}
    v_add_u32 v9, s{sT+2}, v9
    v_mul_u32_u24 v{vXb}, 288, v9
    v_add_u32 v{vXb}, v{vXb}, v10
    """)
    tr_lane(a, vWb, 9, 10)
    a(f"""
    s_lshl_b32 s{sT+2}, s{sT+1}, 5
    v_xor_b32 v{vWb}, s{sT+2}, v{vWb}
    s_lshl_b32 s{sT+2}, s{sT}, 12
    s_add_u32 s{sT+2}, s{sT+2}, {LDS_W}
    v_add_u32 v{vWb}, s{sT+2}, v{vWb}
    s_mul_i32 s{sT+2}, s{sNG}, 147456
    s_lshl_b32 s{sT+3}, s{sT}, 13
    s_add_u32 s{sT+2}, s{sT+2}, s{sT+3}
    s_lshl_b32 s{sT+3}, s{sT+1}, 10
    s_add_u32 s{sT+2}, s{sT+2}, s{sT+3}
    v_lshlrev_b32 v{vG}, 4, v0
    v_add_u32 v{vG}, s{sT+2}, v{vG}
    """)
    for r in range(M_, Y_ + 36):
        a(f"v_mov_b32 v{r}, 0")
    a(f"""
    s_mov_b32 s{sSlotW}, 0
    s_mov_b32 s{sSlotS}, 0
    s_mov_b32 s{sIt}, 0
    s_mov_b32 s{sGc}, s{sC0}
    s_mov_b32 s{sGp}, 0
    v_mov_b32 v{vS}, v{vSb}
    v_mov_b32 v{vS1}, v{vSb1}
    v_mov_b32 v{vW}, v{vWb}
    """)
    PF = "pfine" in OPT
    stamp(a, 4 if PF else 1)
    a("s_waitcnt vmcnt(4)\ns_barrier")
    stamp(a, 5 if PF else 2)
    for i in range(1, 4):
        a(f"v_add_u32 v{123+i}, {i*(165888-1024)}, v{vW0}")
    a(f"""
    s_mul_i32 s48, s{sWV}, {4*165888}
    s_add_u32 s48, s48, 9216
    s_lshl_b32 s49, s{sWV}, 12
    s_add_u32 m0, s49, {LDS_W + WSLOT}
    s_nop 0
    buffer_load_dwordx4 v{vW0}, s[{sW}:{sW+3}], s48 offen lds
    """)
    for i in range(1, 4):
        a(f"buffer_load_dwordx4 v{123+i}, s[{sW}:{sW+3}], s48 offen offset:{i*1024} lds")
    a(f"""
    s_mul_i32 s48, s{sWV}, 45
    v_add_u32 v124, s48, v0
    v_mul_u32_u24 v125, 1821, v124
    v_lshrrev_b32 v125, 16, v125
    v_mul_u32_u24 v126, 36, v125
    v_sub_u32 v124, v124, v126
    s_lshr_b32 s48, s2, 3
    s_and_b32 s49, s48, 1
    s_mul_i32 s49, s49, 36
    v_add_u32 v124, s49, v124
    v_lshlrev_b32 v124, 7, v124
    v_mul_u32_u24 v125, 9216, v125
    v_add_u32 v124, v124, v125
    s_lshr_b32 s48, s48, 1
    s_mul_i32 s48, s48, 165888
    s_add_u32 s48, s48, {4*9216}
    s_mov_b32 exec_hi, 0x1fff
    buffer_load_dword v251, v124, s[{sW}:{sW+3}], s48 offen
    s_mov_b32 exec_hi, -1
    s_lshr_b32 s48, s2, 3
    s_mul_i32 s48, s48, 12
    s_mul_i32 s49, s{sWV}, 3
    s_add_u32 s48, s48, s49
    v_add_u32 v124, s48, v0
    v_lshlrev_b32 v124, 7, v124
    s_mov_b64 exec, 7
    buffer_load_dword v250, v124, s[{sWo}:{sWo+3}], 0 offen
    s_mov_b64 exec, -1
    """)
    a("s_waitcnt vmcnt(6)\ns_barrier")
    stamp(a, 6 if PF else 3)
    sc = Sched(a)
    def rd_x(xset, i, vaddr, imm, tag):
        def f():
            a(f"ds_read_b128 v[{xset+4*i}:{xset+4*i+3}], v{vaddr} offset:{imm}")
            sc.lds_issue(tag)
        return f
    def rd_w(reg, h, imm, tag):
        def f():
            a(f"ds_read_b64_tr_b16 v[{reg+2*h}:{reg+2*h+1}], v{vW} offset:{imm}")
            sc.lds_issue(tag)
        return f
    def a_reads(sp, xset, wreg, p):
        w = lambda s: [rd_w(wreg + 4 * s, h, (2 * sp + 8 * s) * 1024 + h * 256, f"{p}w{s}") for h in range(2)]
        x = lambda i: rd_x(xset, i, vS if sp == 0 else vS1, 512 * i, f"{p}x{i}")
        return w(1) + [x(0)] + w(0) + [x(i) for i in range(1, 10)]
    def b_reads(sp, xset, p):
        return [rd_x(xset, i, vP[sp][i >> 3], 9216 * (i & 7), f"{p}x{i}") for i in range(10)]
    def x_addr(sp):
        r, rb = vP[sp]; sd = (sD0, sD1)[sp]
        return [ins(f"v_add_u32 v{r}, s{sd}, v{vXb}"), ins(f"v_lshrrev_b32 v{vPt}, 2, v{r}"), ins(f"v_and_b32 v{vPt}, 64, v{vPt}"),
                ins(f"v_xor_b32 v{r}, v{r}, v{vPt}"), ins(f"v_add_u32 v{rb}, {8*9216}, v{r}")]
    def spread4(items):
        g = [[] for _ in range(18)]
        g[0] += items[:2]; g[1].append(items[2]); g[2].append(items[3]); g[3].append(items[4])
        return g
    def gload(setidx, sp, s):
        reg = GR + 16 * setidx + 8 * sp + 4 * s
        so = sGo0 if sp == 0 else sGo1
        def f():
            a(f"buffer_load_dwordx4 v[{reg}:{reg+3}], v{vG}, s[{sG}:{sG+3}], s{so} offen offset:{s*2048} sc1")
            sc.vm_issue(f"g{setidx}_{sp}_{s}")
        return f
    def g_advance():
        return [ins(f"s_cmp_ge_u32 s{sGp}, 9\ns_cselect_b32 s{sGo0}, {GF_PROD}, 0"),
                ins(f"s_lshl_b32 s{sGo1}, s{sGc}, 14\ns_add_u32 s{sGo0}, s{sGo0}, s{sGo1}"),
                ins(f"s_add_u32 s{sGo1}, s{sGo0}, 4096\ns_add_u32 s{sGp}, s{sGp}, 1"),
                ins(f"s_add_u32 s{sGc}, s{sGc}, 1\ns_cmp_eq_u32 s{sGc}, 9"),
                ins(f"s_cselect_b32 s{sGc}, 0, s{sGc}")]
    def barrier_drain():
        sc.need(set(sc.lds), ())
        a("s_barrier")
    def barrier_drain_vm():
        sc.need(set(sc.lds), ())
        a("s_waitcnt vmcnt(2)\ns_barrier")
    for f in a_reads(0, XA, WA, "A"): f()
    def phase_a_iter(last, gset):
        fill = place(a_reads(1, XB, WB, "B"), 0)
        if gset is not None:
            fill = merge(fill, place(g_advance(), 13))
        if last:
            fill = merge(fill, place([ins(f"s_lshl_b32 s{sD1}, s{sC0}, 5\ns_add_u32 s{sD1}, s{sD1}, 576"), ins(f"s_add_u32 s{sD0}, s{sD1}, 2304")], 10),
                         place(x_addr(0), 13))
        emit_sp(a, sc, M_, XA, (WA, WA + 4), ((["Aw0"], []), (["Aw1"], [])), "Ax", fill)
        if not last:
            upd = [ins(f"s_add_u32 s{sSlotW}, s{sSlotW}, {WSLOT}\ns_cmp_eq_u32 s{sSlotW}, {3*WSLOT}"),
                   ins(f"s_cselect_b32 s{sSlotW}, 0, s{sSlotW}\ns_xor_b32 s{sSlotS}, s{sSlotS}, {SSLOT}\nv_add_u32 v{vW}, s{sSlotW}, v{vWb}"),
                   ins(f"v_add_u32 v{vS}, s{sSlotS}, v{vSb}\nv_add_u32 v{vS1}, s{sSlotS}, v{vSb1}")]
            fill = merge(place(upd + [barrier_drain if gset is not None else barrier_drain_vm], 0), place(a_reads(0, XA, WA, "A"), 4))
        else:
            fill = merge(place([ins("s_nop 0"), ins("s_nop 0"), ins("s_nop 0"), barrier_drain], 0), spread4(x_addr(1)), place(b_reads(0, XA, "A"), 4))
        if gset is not None:
            fill = merge(fill, place([gload(gset, 0, 0), gload(gset, 0, 1), gload(gset, 1, 0), gload(gset, 1, 1)], 14))
        emit_sp(a, sc, M_, XB, (WB, WB + 4), ((["Bw0"], []), (["Bw1"], [])), "Bx", fill)
    a("L_A:")
    st = list(sc.lds)
    phase_a_iter(False, None)
    assert sc.lds == st
    if PF: stamp_dyn(a, 7, sIt)
    a(f"s_add_u32 s{sIt}, s{sIt}, 1\ns_cmp_lt_u32 s{sIt}, 7\ns_cbranch_scc1 L_A")
    phase_a_iter(False, 0)
    if PF: stamp(a, 14)
    phase_a_iter(True, 1)
    stamp(a, 15 if PF else 4)
    if PF: HF_OFF[0] = True
    a(f"s_mov_b32 s{sIt}, s{sC0}")
    sTrip = sT + 4
    def b_chunk(acc, u, arr, extra0=None, extra1=None, pre0=None, pre1=None):
        cur, nxt = u, (u + 2) % 3
        wr = GR + 16 * cur
        upd = [ins(f"s_add_u32 s{sIt}, s{sIt}, 1\ns_cmp_eq_u32 s{sIt}, 9"),
               ins(f"s_cselect_b32 s{sIt}, 0, s{sIt}\ns_lshl_b32 s{sD1}, s{sIt}, 5")]
        if arr is None:
            upd.append(ins(f"s_cmp_eq_u32 s{sTrip}, 2\ns_cselect_b32 s{sT+1}, 0, 576\ns_add_u32 s{sD1}, s{sD1}, s{sT+1}\ns_add_u32 s{sD0}, s{sD1}, 2304"))
        elif arr == 1:
            upd.append(ins(f"s_add_u32 s{sD1}, s{sD1}, 576\ns_add_u32 s{sD0}, s{sD1}, 2304"))
        else:
            upd.append(ins(f"s_add_u32 s{sD0}, s{sD1}, 2304"))
        fill = merge(place(b_reads(1, XB, "B"), 0), place(upd, 10), place(x_addr(1), 13))
        if extra0: fill = merge(fill, extra0)
        emit_sp(a, sc, acc, XA, (wr, wr + 4), (([], [f"g{cur}_0_0"]), ([], [f"g{cur}_0_1"])), "Ax", fill, pre0)
        fill = merge(place(g_advance(), 0), spread4(x_addr(0)), place(b_reads(0, XA, "A"), 4),
                     place([gload(nxt, 0, 0), gload(nxt, 0, 1), gload(nxt, 1, 0), gload(nxt, 1, 1)], 14))
        if extra1: fill = merge(fill, extra1)
        emit_sp(a, sc, acc, XB, (wr + 8, wr + 12), (([], [f"g{cur}_1_0"]), ([], [f"g{cur}_1_1"])), "Bx", fill, pre1)
    a(f"s_mov_b32 s{sTrip}, 0")
    a("L_B1:")
    st_l, st_v = list(sc.lds), list(sc.vm)
    for u in range(3):
        b_chunk(Y_, u, 1 if u < 2 else None)
    stamp_dyn(a, 5, sTrip) if "pre" in OPT else None
    a("s_barrier")
    stamp_dyn(a, 5, sTrip) if "pre" not in OPT else None
    a(f"s_add_u32 s{sTrip}, s{sTrip}, 1\ns_cmp_lt_u32 s{sTrip}, 3\ns_cbranch_scc1 L_B1")
    assert sc.lds == st_l and sc.vm == st_v
    a(f"""
    s_mul_i32 s{sT+1}, s{sWV}, 9216
    s_add_u32 s{sT+1}, s{sT+1}, {LDS_Y0}
    v_lshlrev_b32 v9, 4, v0
    v_add_u32 v9, s{sT+1}, v9
    """)
    order = sp_order()
    pre = [[] for _ in range(18)]
    seen = set()
    for n, (s, T, i) in enumerate(order):
        if T not in seen:
            seen.add(T)
            m = max(n - 1, 0)
            for r in range(4):
                pre[m if n > 0 else 0].append(ins(f"v_add_f32 v{Y_+4*T+r}, v{M_+4*T+r}, v{Y_+4*T+r}"))
    def ywrite(T):
        def f():
            a(f"ds_write_b128 v9, v[{Y_+4*T}:{Y_+4*T+3}] offset:{T*1024}")
            sc.lds_issue(f"yw{T}")
        return f
    b_chunk(M_, 0, 0, pre0=pre, extra1=place([ywrite(T) for T in range(9)], 0, 2))
    def bar_y0():
        sc.need({f"yw{T}" for T in range(9)}, ())
        a("s_barrier")
    b_chunk(M_, 1, 0, extra0=place([bar_y0], 12))
    b_chunk(M_, 2, 0)
    stamp(a, 8)
    a(f"s_mov_b32 s{sTrip}, 1")
    a("L_B2:")
    assert sc.lds == st_l and sc.vm == st_v, (sc.lds, st_l, sc.vm, st_v)
    for u in range(3):
        b_chunk(M_, u, 0)
    stamp_dyn(a, 8, sTrip)
    a(f"s_add_u32 s{sTrip}, s{sTrip}, 1\ns_cmp_lt_u32 s{sTrip}, 3\ns_cbranch_scc1 L_B2")
    a("s_setprio 0")
    a(f"""
    s_lshr_b32 s{sT}, s{sWV}, 1
    s_and_b32 s{sT+1}, s{sWV}, 1
    s_mul_i32 s{sT+2}, s{sWV}, 5120
    s_add_u32 s{sT+2}, s{sT+2}, {LDS_Y1}
    v_lshlrev_b32 v9, 4, v0
    v_add_u32 v10, s{sT+2}, v9
    s_xor_b32 s{sT+2}, s{sWV}, 2
    s_mul_i32 s{sT+2}, s{sT+2}, 5120
    s_add_u32 s{sT+2}, s{sT+2}, {LDS_Y1}
    v_add_u32 v11, s{sT+2}, v9
    """)
    act_consts(a, f"s{sT+1}", sT + 5, sT + 6, 12)
    a(f"""
    s_mov_b32 s56, s{sT+5}
    s_mov_b32 s57, s{sT+5}
    s_mov_b32 s58, s{sT+6}
    s_mov_b32 s59, s{sT+6}
    s_mov_b32 s60, 1.0
    s_mov_b32 s61, 1.0
    v_mov_b32 v14, v12
    v_mov_b32 v15, v12
    """)
    a(f"""
    s_mul_i32 s49, s{sMT}, {9*2*18*512}
    s_lshl_b32 s48, s48, 9
    s_add_u32 s48, s48, s49
    s_add_u32 s48, s48, {18*512}
    s_mul_i32 s49, s{sT}, {2*18*512}
    s_add_u32 s48, s48, s49
    v_lshlrev_b32 v13, 3, v0
    v_add_u32 v13, s48, v13
    s_waitcnt lgkmcnt(0)
    s_cmp_eq_u32 s{sT}, 0
    s_cbranch_scc0 L_t_k1
    """)
    K = XA
    def tail(keep, send, lbl):
        for i, T in enumerate(send):
            a(f"ds_write_b128 v10, v[{M_+4*T}:{M_+4*T+3}] offset:{i*1024}")
        a("s_waitcnt lgkmcnt(0)\ns_barrier")
        for i, T in enumerate(keep):
            a(f"ds_read_b128 v[{K+4*i}:{K+4*i+3}], v11 offset:{i*1024}")
        for i, T in enumerate(keep):
            a(f"s_waitcnt lgkmcnt({len(keep)-1-i})")
            for r in (0, 2):
                a(f"v_pk_add_f32 v[{M_+4*T+r}:{M_+4*T+r+1}], v[{M_+4*T+r}:{M_+4*T+r+1}], v[{K+4*i+r}:{K+4*i+r+1}]")
        activation_pk(a, [M_ + 4*T + r for T in keep for r in (0, 2)], 56, 58, 60, 14, Y_)
        for i, T in enumerate(keep):
            a(f"s_mov_b32 s49, {i*2*2*18*512}")
            a(f"buffer_store_dwordx2 v[{Y_+2*i}:{Y_+2*i+1}], v13, s[{sE}:{sE+3}], s49 offen sc1")
    a("s_nop 7")
    tail([0, 2, 4, 6, 8], [1, 3, 5, 7], "k0")
    a("s_branch L_t_j\nL_t_k1:\ns_nop 7")
    tail([1, 3, 5, 7], [0, 2, 4, 6, 8], "k1")
    a("L_t_j:")
    stamp(a, 11)
    z_unit_setup(a, 1)
    z_units(a, [sWV], "m", 0)
    a("s_waitcnt lgkmcnt(0)\ns_barrier")
    stamp(a, 12)
    HF_OFF[0] = False
    stamp_flush(a)
    a("s_endpgm")
def z_unit_setup(a, q):
    a(f"""
    s_mul_i32 s48, s{sMT}, {9*2*18*512}
    s_mul_i32 s49, s{sNG}, {2*18*512}
    s_add_u32 s48, s48, s49
    s_add_u32 s48, s48, {q*18*512}
    v_lshlrev_b32 v14, 3, v0
    v_add_u32 v14, s48, v14
    v_lshlrev_b32 v15, 4, v0
    v_add_u32 v15, {LDS_Z}, v15
    """)
def z_units(a, cts, lbl, nap):
    ZL, ZZ, ZT, ZM = 128, 140, 146, 150
    for u, c in enumerate(cts):
        a(f"s_lshl_b32 s{50+2*u}, s{c}, 9\ns_add_u32 s{51+2*u}, s{50+2*u}, 4608")
    a(f"s_mov_b32 s{sSpin}, 0\nL_zp_{lbl}:")
    for u in range(len(cts)):
        a(f"buffer_load_dwordx2 v[{ZL+4*u}:{ZL+4*u+1}], v14, s[{sE}:{sE+3}], s{50+2*u} offen sc1")
        a(f"buffer_load_dwordx2 v[{ZL+4*u+2}:{ZL+4*u+3}], v14, s[{sE}:{sE+3}], s{51+2*u} offen sc1")
    a(f"s_add_u32 s{sSpin}, s{sSpin}, 1\ns_waitcnt vmcnt(0)")
    a(f"v_max_u32 v{ZM}, v{ZL}, v{ZL+1}\nv_max3_u32 v{ZM}, v{ZM}, v{ZL+2}, v{ZL+3}")
    for u in range(1, len(cts)):
        a(f"v_max3_u32 v{ZM}, v{ZM}, v{ZL+4*u}, v{ZL+4*u+1}\nv_max3_u32 v{ZM}, v{ZM}, v{ZL+4*u+2}, v{ZL+4*u+3}")
    a(f"""
    v_cmp_eq_u32 vcc, -1, v{ZM}
    s_cmp_ge_u32 s{sSpin}, {SPIN_MAX}
    s_cbranch_scc1 L_zd_{lbl}
    s_cbranch_vccz L_zd_{lbl}
    """)
    if nap: a(f"s_sleep {nap}")
    a(f"s_branch L_zp_{lbl}\nL_zd_{lbl}:")
    for u, c in enumerate(cts):
        z_mul(a, ZZ + 2*u, ZL + 4*u, ZL + 4*u + 2, ZT)
        z_mul(a, ZZ + 2*u + 1, ZL + 4*u + 1, ZL + 4*u + 3, ZT)
        a(f"""
        s_lshr_b32 s48, s{c}, 1
        s_lshl_b32 s48, s48, 10
        s_and_b32 s49, s{c}, 1
        s_lshl_b32 s49, s49, 3
        s_add_u32 s48, s48, s49
        v_add_u32 v{ZM}, s48, v15
        ds_write_b64 v{ZM}, v[{ZZ+2*u}:{ZZ+2*u+1}]
        """)
WO = 64
def gen_helper(a):
    sH = sT
    sCw, sSl, sCs, sSs = 72, 73, 74, 75
    vSx, vSw, vPat, vLo = 20, 21, 22, 23
    SB, SD, ID, IJ = 28, 40, 52, 56
    a(f"s_sub_u32 s{sH}, s{sWV}, 4")
    if "pfine" in OPT: HF_OFF[0] = True
    for i in range(4):
        a(f"v_add_u32 v{16+i}, {i*(165888-1024)}, v3")
    def wdma():
        a(f"""
        s_mul_i32 s50, s{sH}, {4*165888}
        s_mul_i32 s49, s{sCw}, 9216
        s_add_u32 s50, s50, s49
        s_lshl_b32 s49, s{sH}, 12
        s_add_u32 s49, s49, s{sSl}
        s_add_u32 m0, s49, {LDS_W}
        s_add_u32 s{sSl}, s{sSl}, {WSLOT}
        s_cmp_eq_u32 s{sSl}, {3*WSLOT}
        s_cselect_b32 s{sSl}, 0, s{sSl}
        """)
        next_mod(a, sCw, 9)
        for i in range(4):
            if "nodma" in OPT and wdma.n > 0:
                a(f"buffer_load_dword v112, v0, s[{sD}:{sD+3}], 0 offen")
            else:
                a(f"buffer_load_dwordx4 v{16+i}, s[{sW}:{sW+3}], s50 offen offset:{i*1024} lds")
        wdma.n += 1
    wdma.n = 0
    PL = 176
    a(f"s_mov_b32 s{sCw}, 2\ns_mov_b32 s{sSl}, {2*WSLOT}")
    a(f"""
    v_bfe_u32 v24, v0, 1, 3
    v_lshlrev_b32 v24, 2, v24
    v_and_b32 v25, 1, v0
    v_add_u32 v24, v24, v25
    v_lshrrev_b32 v25, 5, v0
    v_lshl_add_u32 v24, v25, 1, v24
    v_mul_u32_u24 v{vSx}, 288, v24
    v_bfe_u32 v24, v0, 4, 1
    v_lshl_add_u32 v{vSx}, v24, 4, v{vSx}
    s_mul_i32 s48, s{sH}, 9216
    v_add_u32 v{vSx}, s48, v{vSx}
    v_and_b32 v24, 15, v0
    v_lshlrev_b32 v24, 5, v24
    v_bfe_u32 v26, v0, 2, 1
    v_xor_b32 v26, v26, v25
    v_lshl_add_u32 v24, v26, 4, v24
    v_bfe_u32 v26, v0, 4, 1
    v_lshl_add_u32 v24, v26, 3, v24
    s_lshl_b32 s48, s{sH}, 9
    s_add_u32 s48, s48, {LDS_S}
    v_add_u32 v{vSw}, s48, v24
    v_sub_u32 v{vLo}, 1, v25
    v_bfe_u32 v24, v0, 4, 1
    v_mul_u32_u24 v{vPat}, 544, v24
    v_bfe_u32 v24, v0, 2, 2
    v_lshl_add_u32 v{vPat}, v24, 6, v{vPat}
    v_and_b32 v24, 3, v0
    v_lshl_add_u32 v{vPat}, v24, 3, v{vPat}
    """)
    a(f"""
    v_lshrrev_b32 v24, 3, v0
    v_lshrrev_b32 v26, 4, v0
    v_xor_b32 v24, v24, v26
    v_and_b32 v24, 1, v24
    v_and_b32 v26, 1, v0
    v_lshlrev_b32 v26, 4, v26
    v_mov_b32 v27, 0x3f80
    v_lshlrev_b32 v27, v26, v27
    v_lshlrev_b32 v28, 15, v25
    v_lshlrev_b32 v28, v26, v28
    v_or_b32 v28, v28, v27
    v_bfe_u32 v26, v0, 1, 2
    v_lshl_or_b32 v26, v24, 2, v26
    """)
    for r in range(4):
        a(f"v_cmp_eq_u32 vcc, {r}, v26\ns_nop 1\nv_cndmask_b32 v{ID+r}, 0, v27, vcc\nv_cndmask_b32 v{IJ+r}, 0, v28, vcc")
    srd(a, sF, 14, 15, FL_OFF + FL_SIZE)
    def s_reads():
        if "nos" in OPT and s_compute.n > 0:
            a("v_lshlrev_b32 v113, 2, v0\nds_read_b32 v114, v113\nds_read_b32 v114, v113\nds_read_b32 v114, v113"); return
        a(f"""
        s_lshl_b32 s48, s{sCs}, 5
        v_add_u32 v24, s48, v{vSx}
        v_lshrrev_b32 v25, 2, v24
        v_and_b32 v25, 64, v25
        v_xor_b32 v24, v24, v25
        v_add_u32 v25, {8*9216}, v24
        ds_read_b128 v[{SB}:{SB+3}], v24
        ds_read_b128 v[{SB+4}:{SB+7}], v24 offset:{4*9216}
        ds_read_b128 v[{SB+8}:{SB+11}], v25
        """)
    def s_compute(between=None):
        if "nos" in OPT and s_compute.n > 0: return
        a(f"v_add_u32 v26, s{sSs}, v{vSw}")
        a("s_setprio 3")
        for k in range(3):
            a(f"v_mfma_f32_16x16x32_bf16 v[{SD+4*k}:{SD+4*k+3}], v[{ID}:{ID+3}], v[{SB+4*k}:{SB+4*k+3}], 0")
        a("s_setprio 0")
        if between: between()
        else: a("s_nop 7")
        for k in range(3):
            if k == 2: a("s_nop 3")
            a(f"v_cvt_pk_bf16_f32 v{SD+4*k}, v{SD+4*k}, v{SD+4*k+1}\nv_cvt_pk_bf16_f32 v{SD+4*k+1}, v{SD+4*k+2}, v{SD+4*k+3}")
            if k == 2:
                lab = s_compute.n; s_compute.n += 1
                a(f"s_cmp_eq_u32 s{sH}, 3\ns_cbranch_scc1 L_s3_{lab}")
            a(f"ds_write_b64 v26, v[{SD+4*k}:{SD+4*k+1}] offset:{2048*k}")
        a(f"L_s3_{lab}:")
    s_compute.n = 0
    PB, PD, PK = 64, 128, 160
    def prod_stage():
        a(f"""
        s_mul_i32 s57, s{sH}, 5120
        s_add_u32 s57, s57, {LDS_W + 3*WSLOT - 4*5120}
        v_lshlrev_b32 v24, 4, v0
        v_add_u32 v24, s57, v24
        """)
        for k in range(5):
            a(f"ds_write_b128 v24, v[{PL+4*k}:{PL+4*k+3}] offset:{1024*k}")
        a("s_waitcnt lgkmcnt(0)")
        for c, e, o in ((0, 0, 1024), (2, 0, 2048), (1, 3072, 2048), (3, 3072, 4096)):
            a(f"v_mul_u32_u24 v26, {o}, v{vLo}\nv_sub_u32 v27, 1, v{vLo}\nv_mul_u32_u24 v27, {e}, v27\nv_add3_u32 v26, v26, v27, v{vPat}")
            a(f"v_add_u32 v26, s57, v26\nv_xor_b32 v27, 32, v26")
            for nh in range(2):
                b = PB + 8 * c + 4 * nh
                for h in range(2):
                    a(f"ds_read_b64_tr_b16 v[{b+2*h}:{b+2*h+1}], v{26+nh} offset:{h*256}")
        a("s_waitcnt lgkmcnt(0)")
    def production():
        a("s_setprio 3")
        for f in range(8):
            a(f"v_mfma_f32_16x16x32_bf16 v[{PD+4*f}:{PD+4*f+3}], v[{IJ}:{IJ+3}], v[{PB+4*f}:{PB+4*f+3}], 0")
        a("s_setprio 0")
        a(f"""
        s_add_u32 s57, s53, s{sH}
        s_and_b32 s58, s57, 3
        s_lshl_b32 s58, s58, 1
        s_lshr_b32 s57, s57, 2
        s_add_u32 s57, s57, s58
        s_lshl_b32 s58, s{sCP}, 3
        s_add_u32 s57, s57, s58
        s_lshl_b32 s57, s57, 11
        s_mul_i32 s58, s{sNG}, 147456
        s_add_u32 s57, s57, s58
        s_cmp_ge_u32 s{sH}, s54
        s_cselect_b32 s57, 0x7f000000, s57
        s_add_u32 s58, s57, {GF_PROD}
        v_and_b32 v26, 15, v0
        v_lshlrev_b32 v26, 4, v26
        v_lshrrev_b32 v27, 5, v0
        v_lshl_add_u32 v26, v27, 8, v26
        v_bfe_u32 v27, v0, 4, 1
        v_lshl_add_u32 v26, v27, 3, v26
        """)
        for f in range(8):
            c, nh = f >> 1, f & 1
            a(f"v_cvt_pk_bf16_f32 v{PK+2*f}, v{PD+4*f}, v{PD+4*f+1}\nv_cvt_pk_bf16_f32 v{PK+2*f+1}, v{PD+4*f+2}, v{PD+4*f+3}")
            so = "s57" if c < 2 else "s58"
            a(f"buffer_store_dwordx2 v[{PK+2*f}:{PK+2*f+1}], v26, s[{sG}:{sG+3}], {so} offen offset:{nh*1024 + (c & 1)*512} sc1")
    if "xfine" in OPT: stamp(a, 6)
    a("s_waitcnt vmcnt(0)")
    if "xfine" in OPT: stamp(a, 7)
    prod_stage()
    if "xfine" in OPT: stamp(a, 8)
    production()
    if "xfine" in OPT: stamp(a, 9)
    a(f"s_mov_b32 s{sCs}, 0\ns_mov_b32 s{sSs}, 0")
    if "xfine" in OPT: stamp(a, 10)
    a("s_barrier")
    if "xfine" in OPT: stamp(a, 11)
    s_reads()
    a("s_waitcnt lgkmcnt(0)")
    s_compute()
    a(f"v_mov_b32 v26, {NOFF}\nbuffer_load_dword v60, v26, s[{sD}:{sD+3}], 0 offen sc1")
    next_mod(a, sCs, 9)
    s_reads()
    if "xfine" in OPT: stamp(a, 12)
    a("s_waitcnt lgkmcnt(3)")
    if "xfine" in OPT: stamp(a, 13)
    a("s_barrier")
    if "xfine" in OPT: stamp(a, 14); HF_OFF[0] = True
    for r in range(4): a(f"v_mov_b32 v{120+r}, -1")
    def flag_store(kind):
        a(f"""
        s_mul_i32 s49, s{sNG}, 28
        s_add_u32 s49, s49, s{sMT}
        s_lshl_b32 s49, s49, 7
        """)
        if kind == "A":
            a(f"s_lshl_b32 s48, s{sH}, 2\ns_add_u32 s49, s49, s48\ns_add_u32 s49, s49, {FL_OFF}\ns_cmp_lt_u32 s{sH}, 3")
        else:
            a(f"s_add_u32 s49, s49, {FL_OFF + 12}\ns_cmp_eq_u32 s{sH}, 1")
        a(f"""
        s_cselect_b32 s49, s49, 0x7f000000
        v_mov_b32 v26, s49
        v_mov_b32 v27, s{sNonce}
        s_mov_b64 exec, 1
        buffer_store_dword v27, v26, s[{sF}:{sF+3}], 0 offen sc1
        s_mov_b64 exec, -1
        """)
    def poison():
        a(f"""
        s_mul_i32 s56, s{sMT}, {9*2*18*512}
        s_lshl_b32 s57, s{sNG}, 10
        s_add_u32 s56, s56, s57
        v_lshlrev_b32 v26, 4, v0
        v_add_u32 v26, s56, v26
        """)
        for i in range(5):
            a(f"s_add_u32 s57, s{sH}, {4*i}\ns_min_u32 s57, s57, 17\ns_mul_i32 s57, s57, {18*512}")
            a(f"buffer_store_dwordx4 v[120:123], v26, s[{sE}:{sE+3}], s57 offen sc1")
    waits = {0: 4, 1: 5, 2: 4, 3: 4, 4: 9, 5: 9, 6: 4, 7: 0, 8: 0}
    for it in range(9):
        if it == 5 and "hfine" in OPT: stamp(a, 1)
        if it == 7:
            gf_flag_addr(a)
            a(f"s_cmp_lg_u32 s{sH}, 0\ns_cbranch_scc1 L_H_np")
            a(f"buffer_load_dwordx3 v[124:126], v63, s[{sF}:{sF+3}], 0 offen sc1")
            a("L_H_np:")
        if it <= 6:
            a(f"s_cmp_ge_u32 s{sH}, 2\ns_cbranch_scc1 L_H_d1_{it}")
            wdma()
            a(f"L_H_d1_{it}:")
        if it <= 7:
            a("s_waitcnt lgkmcnt(0)")
            a(f"s_xor_b32 s{sSs}, s{sSs}, {SSLOT}")
            s_compute()
        if it <= 6:
            a(f"s_cmp_lt_u32 s{sH}, 2\ns_cbranch_scc1 L_H_d2_{it}")
            wdma()
            a(f"L_H_d2_{it}:")
        if it == 4: poison()
        if it <= 6:
            next_mod(a, sCs, 9)
            s_reads()
        if it == 5 and "hfine" in OPT: stamp(a, 3)
        a(f"s_waitcnt vmcnt({waits[it]}) lgkmcnt({3 if it <= 6 else 0})")
        if it == 5 and "hfine" in OPT: stamp(a, 4)
        if it == 0:
            a(f"""
            s_mov_b32 s{sSpin}, 0
            L_H_nspin:
            v_readfirstlane_b32 s{sNonce}, v60
            s_add_u32 s{sSpin}, s{sSpin}, 1
            s_cmp_lg_u32 s{sNonce}, 0
            s_cbranch_scc1 L_H_n0
            s_cmp_ge_u32 s{sSpin}, {SPIN_MAX}
            s_cbranch_scc1 L_H_n0
            v_mov_b32 v26, {NOFF}
            buffer_load_dword v60, v26, s[{sD}:{sD+3}], 0 offen sc1
            s_waitcnt vmcnt(0)
            s_branch L_H_nspin
            L_H_n0:
            """)
            flag_store("A")
        if it == 7:
            a(f"""
            s_cmp_lg_u32 s{sH}, 0
            s_cbranch_scc1 L_H_f4
            s_mov_b32 s{sSpin}, 0
            L_H_fspin:
            v_cmp_ne_u32 vcc, s{sNonce}, v124
            v_cmp_ne_u32 s[56:57], s{sNonce}, v125
            v_cmp_ne_u32 s[58:59], s{sNonce}, v126
            s_add_u32 s{sSpin}, s{sSpin}, 1
            s_or_b64 vcc, vcc, s[56:57]
            s_or_b64 vcc, vcc, s[58:59]
            s_cmp_ge_u32 s{sSpin}, {SPIN_MAX}
            s_cbranch_scc1 L_H_f4
            s_cbranch_vccz L_H_f4
            buffer_load_dwordx3 v[124:126], v63, s[{sF}:{sF+3}], 0 offen sc1
            s_waitcnt vmcnt(0)
            s_branch L_H_fspin
            L_H_f4:
            """)
        a("s_barrier")
        if it == 5 and "hfine" in OPT: stamp(a, 5)
        if it == 6 and "hfine" in OPT: stamp(a, 6)
    if "hfine" not in OPT: stamp(a, 1)
    if "hfine" in OPT: HF_OFF[0] = True
    flag_store("B")
    a(f"v_lshlrev_b32 v24, 4, v0\ns_mov_b32 s50, s{sH}")
    a(f"""
    L_wo:
    s_lshl_b32 s51, s50, 10
    s_add_u32 m0, s51, {LDS_W}
    s_add_u32 s50, s50, 4
    buffer_load_dwordx4 v24, s[{sWo}:{sWo+3}], s51 offen lds
    s_sleep 2
    s_cmp_lt_u32 s50, 41
    s_cbranch_scc1 L_wo
    s_barrier
    """)
    a(f"s_mul_i32 s48, s{sB}, {XB_SIZE}\ns_add_u32 s10, s10, s48\ns_addc_u32 s11, s11, 0")
    srd(a, sO, 10, 11, XB_SIZE)
    a(f"""
    v_mul_u32_u24 v62, 28, v0
    v_add_u32 v62, s{sMT}, v62
    v_lshlrev_b32 v62, 7, v62
    v_add_u32 v62, {FL_OFF + 12}, v62
    s_mov_b32 s{sSpin}, 0
    s_mov_b64 exec, 0x1ff
    L_fb:
    buffer_load_dword v61, v62, s[{sF}:{sF+3}], 0 offen sc1
    s_add_u32 s{sSpin}, s{sSpin}, 1
    s_waitcnt vmcnt(0)
    v_cmp_ne_u32 vcc, s{sNonce}, v61
    s_cmp_ge_u32 s{sSpin}, {SPIN_MAX}
    s_cbranch_scc1 L_fbd
    s_cbranch_vccz L_fbd
    s_sleep 4
    s_branch L_fb
    L_fbd:
    s_mov_b64 exec, -1
    s_barrier
    """)
    a(f"""
    v_lshrrev_b32 v24, 2, v0
    v_mul_u32_u24 v24, 288, v24
    v_and_b32 v25, 3, v0
    v_lshlrev_b32 v25, 3, v25
    v_add_u32 v24, v24, v25
    s_lshl_b32 s48, s{sH}, 5
    s_add_u32 s48, s48, {LDS_W}
    v_add_u32 v24, s48, v24
    v_add_u32 v25, {8*32}, v24
    """)
    for d, (va, off) in enumerate(((24, 0), (24, 128), (25, 0))):
        base = WO + 18 * d
        for P in range(4):
            a(f"ds_read_b64_tr_b16 v[{base+4*P}:{base+4*P+1}], v{va} offset:{off + 32*P*288}")
            a(f"ds_read_b64_tr_b16 v[{base+4*P+2}:{base+4*P+3}], v{va} offset:{off + (32*P+16)*288}")
        a(f"ds_read_b64_tr_b16 v[{base+16}:{base+17}], v{va} offset:{off + 128*288}")
        a("s_waitcnt lgkmcnt(0)")
    a(f"""
    v_and_b32 v41, 15, v0
    v_lshrrev_b32 v42, 1, v41
    v_lshlrev_b32 v42, 2, v42
    v_and_b32 v41, 1, v41
    v_add_u32 v41, v41, v42
    s_mul_i32 s48, s{sMTL}, 288
    s_lshl_b32 s49, s{sNG}, 5
    s_add_u32 s48, s48, s49
    v_add_u32 v41, s48, v41
    v_mul_u32_u24 v41, 288, v41
    v_lshrrev_b32 v42, 4, v0
    v_lshlrev_b32 v42, 3, v42
    v_add_u32 v41, v41, v42
    s_lshl_b32 s48, s{sH}, 5
    v_add_u32 v41, s48, v41
    """)
    a(f"s_and_b32 s76, s{sH}, 1\ns_lshr_b32 s77, s{sH}, 1")
    act_consts(a, "s76", 78, 79, 43)
    a(f"""
    s_mul_i32 s49, s{sMT}, {9*2*18*512}
    s_lshl_b32 s48, s48, 9
    s_add_u32 s48, s48, s49
    s_mul_i32 s49, s77, {2*18*512}
    s_add_u32 s48, s48, s49
    v_lshlrev_b32 v44, 3, v0
    v_add_u32 v44, s48, v44
    s_mul_i32 s48, s76, 9216
    s_lshl_b32 s49, s77, 10
    s_add_u32 s48, s48, s49
    s_add_u32 s48, s48, {LDS_Y0}
    v_lshlrev_b32 v45, 4, v0
    v_add_u32 v45, s48, v45
    """)
    a(f"v_mov_b32 v24, {LDS_CNT}\nv_mov_b32 v25, 0\nds_write_b32 v24, v25\ns_waitcnt lgkmcnt(0)")
    a("s_barrier")
    stamp(a, 2)
    a("s_barrier")
    for i in range(5):
        a(f"ds_read_b128 v[{128+4*i}:{131+4*i}], v45 offset:{i*2048}")
        a(f"ds_read_b128 v[{148+4*i}:{151+4*i}], v45 offset:{i*2048 + 2*9216}")
    for i in range(5):
        a(f"s_waitcnt lgkmcnt({8-2*i})")
        for r in range(4): a(f"v_add_f32 v{128+4*i+r}, v{128+4*i+r}, v{148+4*i+r}")
    activation(a, list(range(128, 148)), 78, 79, 43, 20)
    for i in range(5):
        if i == 4: a("s_cmp_eq_u32 s77, 1\ns_cbranch_scc1 L_y0_done")
        a(f"s_mov_b32 s49, {i*2*2*18*512}")
        a(f"buffer_store_dwordx2 v[{20+2*i}:{21+2*i}], v44, s[{sE}:{sE+3}], s49 offen sc1")
    a("L_y0_done:")
    stamp(a, 3)
    z_unit_setup(a, 0)
    a(f"s_add_u32 s60, s{sH}, 4\ns_cmp_eq_u32 s{sH}, 0\ns_cselect_b32 s61, 8, s{sH}\ns_sleep 12")
    z_units(a, [sH, 60, 61], "q0", 4)
    if "qfine" in OPT: stamp(a, 9)
    a(f"""
    s_waitcnt lgkmcnt(0)
    v_mov_b32 v24, {LDS_CNT}
    v_mov_b32 v25, 1
    s_mov_b64 exec, 1
    ds_add_u32 v24, v25
    s_mov_b64 exec, -1
    s_mov_b32 s{sSpin}, 0
    L_q0c:
    ds_read_b32 v25, v24
    s_add_u32 s{sSpin}, s{sSpin}, 1
    s_waitcnt lgkmcnt(0)
    v_readfirstlane_b32 s48, v25
    s_cmp_ge_u32 s{sSpin}, {SPIN_MAX}
    s_cbranch_scc1 L_q0cd
    s_cmp_lt_u32 s48, 4
    s_cbranch_scc0 L_q0cd
    s_sleep 1
    s_branch L_q0c
    L_q0cd:
    """)
    if "qfine" in OPT: stamp(a, 10)
    ZR = 160
    for P in range(4):
        a(f"ds_read_b128 v[{ZR+4*P}:{ZR+4*P+3}], v15 offset:{P*1024}")
    a(f"ds_read_b64 v[{ZR+16}:{ZR+17}], v15 offset:4096")
    a("s_waitcnt lgkmcnt(0)")
    def proj(zr, qoff, lbl):
        a("s_setprio 3")
        for P in range(4):
            for d in range(3):
                base = WO + 18 * d; acc = 20 + 4 * d
                c = "0" if P == 0 else f"v[{acc}:{acc+3}]"
                a(f"v_mfma_f32_16x16x32_bf16 v[{acc}:{acc+3}], v[{base+4*P}:{base+4*P+3}], v[{zr+4*P}:{zr+4*P+3}], {c}")
        a("s_nop 7")
        for d in range(3):
            base = WO + 18 * d; acc = 20 + 4 * d
            a(f"v_mfma_f32_16x16x16_bf16 v[{acc}:{acc+3}], v[{base+16}:{base+17}], v[{zr+16}:{zr+17}], v[{acc}:{acc+3}]")
        a("s_setprio 0\ns_nop 7")
        for d in range(3):
            acc = 20 + 4 * d
            if d == 2: a(f"s_cmp_lg_u32 s{sH}, 0\ns_cbranch_scc1 L_pj_{lbl}")
            a(f"v_cvt_pk_bf16_f32 v{32+2*d}, v{acc}, v{acc+1}\nv_cvt_pk_bf16_f32 v{33+2*d}, v{acc+2}, v{acc+3}")
            a(f"buffer_store_dwordx2 v[{32+2*d}:{33+2*d}], v41, s[{sO}:{sO+3}], 0 offen offset:{qoff + 128*d}")
        a(f"L_pj_{lbl}:")
    if "qfine" in OPT: stamp(a, 11)
    proj(ZR, 0, "q0")
    stamp(a, 4)
    a("s_barrier")
    z_unit_setup(a, 1)
    a(f"s_add_u32 s60, s{sH}, 4\ns_cmp_eq_u32 s{sH}, 0\ns_cselect_b32 s61, 8, s60")
    z_units(a, [60, 61], "h", 0)
    a("s_waitcnt lgkmcnt(0)\ns_barrier")
    stamp(a, 5)
    a(f"v_lshlrev_b32 v15, 4, v0\nv_add_u32 v15, {LDS_Z}, v15")
    for P in range(4):
        a(f"ds_read_b128 v[{ZR+4*P}:{ZR+4*P+3}], v15 offset:{P*1024}")
    a(f"ds_read_b64 v[{ZR+16}:{ZR+17}], v15 offset:4096")
    a("s_waitcnt lgkmcnt(0)")
    proj(ZR, 576, "q1")
    stamp(a, 6)
    a("s_waitcnt vmcnt(0)")
    if "dur" in OPT:
        a(f"""
        s_memrealtime s[100:101]
        s_waitcnt lgkmcnt(0)
        s_cmp_lg_u32 s{sH}, 0
        s_cbranch_scc1 L_nodur
        s_mov_b32 s48, -1
        s_cmp_eq_u32 s2, 0
        s_cselect_b32 s48, 8, s48
        s_cmp_eq_u32 s2, 100
        s_cselect_b32 s48, 16, s48
        s_cmp_eq_u32 s2, 251
        s_cselect_b32 s48, 24, s48
        v_mov_b32 v4, s98
        v_mov_b32 v5, s100
        v_mov_b32 v6, s48
        s_mov_b64 exec, 1
        buffer_store_dwordx2 v[4:5], v6, s[{sD}:{sD+3}], 0 offen
        s_waitcnt vmcnt(0)
        s_mov_b64 exec, -1
        L_nodur:
        """)
    stamp(a, 7)
    stamp(a, 8)
    HF_OFF[0] = False
    stamp_flush(a)
    a("s_endpgm")
def gf_flag_addr(a):
    a(f"""
    v_min_u32 v63, 27, v0
    s_mul_i32 s48, s{sNG}, 28
    v_add_u32 v63, s48, v63
    v_lshlrev_b32 v63, 7, v63
    v_add_u32 v63, {FL_OFF}, v63
    """)
sys.stdout.write(gen())
```

```python
import sys
from asmlib import *
OPT = set(sys.argv[1].split(",")) if len(sys.argv) > 1 else set()
STAMP = "stamp" in OPT
NAME = "standalone__autoregressive_conv_wavenet__speech_kernel"
XROWS = 352
LDS_W = XROWS * 288
WSLOT = 16384
LDS_S = LDS_W + 3 * WSLOT
SSLOT = 176 * 32
LDS_TOTAL = 163840
LDS_Y0 = LDS_W
LDS_Y1 = LDS_W + 36864
LDS_Z = LDS_W + 57344
LDS_CNT = LDS_Y1 + 4096
GF_PROD = 9 * 72 * 2048
GF_SIZE = 2 * GF_PROD
E_OFF = 0x400000
E_SIZE = 28 * 9 * 2 * 18 * 512
FL_OFF = 0x900000
FL_SIZE = 256 * 128
W_SIZE = 31 * 144 * 288 * 2
XB_SIZE = 4000 * 288
STAMP_OFF = 0x1000000
SPIN_MAX = 200000
NOFF = 128 if 'dur' in OPT else 0
sX, sW, sG, sE, sO, sWo, sD, sF = 16, 20, 24, 28, 32, 36, 84, 88
sNG, sMT, sMTL, sB, sC0, sWV = 42, 43, 44, 45, 46, 47
sIt = 63
sT = 68
sNonce = 80
sSpin = 81
sCP = 82
ST0 = 92
def srd(a, d, lo, hi, size):
    a(f"s_mov_b32 s{d}, s{lo}\ns_and_b32 s{d+1}, s{hi}, 0xffff\ns_mov_b32 s{d+2}, {size}\ns_mov_b32 s{d+3}, 0x20000")
HF_OFF = [False]
def stamp(a, idx):
    if not STAMP or HF_OFF[0]: return
    import inspect
    if "xfine" in OPT and idx != 0 and 'xfine' not in inspect.stack()[1].code_context[0]: return
    a(f"s_memtime s[{ST0}:{ST0+1}]\ns_memrealtime s[{ST0+2}:{ST0+3}]\ns_waitcnt lgkmcnt(0)")
    a(f"v_writelane_b32 v253, s{ST0}, {2*idx}\nv_writelane_b32 v253, s{ST0+2}, {2*idx+1}")
def stamp_dyn(a, base, sreg):
    if not STAMP or HF_OFF[0]: return
    a(f"s_memtime s[{ST0}:{ST0+1}]\ns_memrealtime s[{ST0+2}:{ST0+3}]\ns_waitcnt lgkmcnt(0)")
    a(f"s_lshl_b32 s96, s{sreg}, 1\ns_add_u32 m0, s96, {2*base}\ns_nop 3")
    a(f"v_writelane_b32 v253, s{ST0}, m0\ns_add_u32 m0, m0, 1\ns_nop 3\nv_writelane_b32 v253, s{ST0+2}, m0")
def stamp_dyn2(a, base, sreg, k):
    if not STAMP or HF_OFF[0]: return
    a(f"s_memtime s[{ST0}:{ST0+1}]\ns_memrealtime s[{ST0+2}:{ST0+3}]\ns_waitcnt lgkmcnt(0)")
    a(f"s_lshl_b32 s96, s{sreg}, 2\ns_add_u32 m0, s96, {2*(base+k)}\ns_nop 3")
    a(f"v_writelane_b32 v253, s{ST0}, m0\ns_add_u32 m0, m0, 1\ns_nop 3\nv_writelane_b32 v253, s{ST0+2}, m0")
def stamp_flush(a):
    if not STAMP: return
    a(f"""
    s_mov_b32 s{ST0}, s14
    s_and_b32 s{ST0+1}, s15, 0xffff
    s_mov_b32 s{ST0+2}, 0x2000000
    s_mov_b32 s{ST0+3}, 0x20000
    s_lshl_b32 s48, s2, 3
    s_add_u32 s48, s48, s{sWV}
    s_lshl_b32 s48, s48, 7
    s_add_u32 s48, s48, {STAMP_OFF}
    v_lshlrev_b32 v252, 2, v0
    v_add_u32 v252, s48, v252
    s_mov_b64 exec, 0xffffffff
    buffer_store_dword v253, v252, s[{ST0}:{ST0+3}], 0 offen
    s_waitcnt vmcnt(0)
    s_mov_b64 exec, -1
    """)
def bf16_op(a, op, dst, xa, xb, t):
    a(f"v_lshlrev_b32 v{t}, 16, v{xa}")
    a(f"v_lshlrev_b32 v{t+1}, 16, v{xb}")
    a(f"v_and_b32 v{t+2}, 0xffff0000, v{xa}")
    a(f"v_and_b32 v{t+3}, 0xffff0000, v{xb}")
    a(f"{op} v{t}, v{t}, v{t+1}")
    a(f"{op} v{t+2}, v{t+2}, v{t+3}")
    a(f"v_cvt_pk_bf16_f32 v{dst}, v{t}, v{t+2}")
def next_mod(a, s, n):
    a(f"s_add_u32 s{s}, s{s}, 1\ns_cmp_eq_u32 s{s}, {n}\ns_cselect_b32 s{s}, 0, s{s}")
def tr_lane(a, vd, vt, vt2):
    a(f"""
    v_lshrrev_b32 v{vd}, 5, v0
    v_lshlrev_b32 v{vd}, 10, v{vd}
    v_bfe_u32 v{vt}, v0, 4, 1
    v_mul_u32_u24 v{vt}, 544, v{vt}
    v_add_u32 v{vd}, v{vd}, v{vt}
    v_bfe_u32 v{vt}, v0, 2, 2
    v_lshlrev_b32 v{vt}, 6, v{vt}
    v_add_u32 v{vd}, v{vd}, v{vt}
    v_and_b32 v{vt}, 3, v0
    v_lshlrev_b32 v{vt}, 3, v{vt}
    v_add_u32 v{vd}, v{vd}, v{vt}
    """)
def activation(a, regs, sA, sS1, vS0, dst):
    for r in regs: a(f"v_mul_f32 v{r}, s{sA}, v{r}")
    for r in regs: a(f"v_exp_f32 v{r}, v{r}")
    for r in regs: a(f"v_add_f32 v{r}, 1.0, v{r}")
    for r in regs: a(f"v_rcp_f32 v{r}, v{r}")
    a("s_nop 0")
    for r in regs: a(f"v_fma_f32 v{r}, v{r}, s{sS1}, v{vS0}")
    for k in range(len(regs) // 2):
        a(f"v_cvt_pk_bf16_f32 v{dst+k}, v{regs[2*k]}, v{regs[2*k+1]}")
    for k in range(len(regs) // 2):
        a(f"v_min_u32 v{dst+k}, 0xfffffffe, v{dst+k}")
def activation_pk(a, pairs, sA, sS1, sOne, vS0, dst):
    for r in pairs: a(f"v_pk_mul_f32 v[{r}:{r+1}], v[{r}:{r+1}], s[{sA}:{sA+1}]")
    for r in pairs: a(f"v_exp_f32 v{r}, v{r}\nv_exp_f32 v{r+1}, v{r+1}")
    for r in pairs: a(f"v_pk_add_f32 v[{r}:{r+1}], v[{r}:{r+1}], s[{sOne}:{sOne+1}]")
    for r in pairs: a(f"v_rcp_f32 v{r}, v{r}\nv_rcp_f32 v{r+1}, v{r+1}")
    for r in pairs: a(f"v_pk_fma_f32 v[{r}:{r+1}], v[{r}:{r+1}], s[{sS1}:{sS1+1}], v[{vS0}:{vS0+1}]")
    for k, r in enumerate(pairs): a(f"v_cvt_pk_bf16_f32 v{dst+k}, v{r}, v{r+1}")
    for k in range(len(pairs)): a(f"v_min_u32 v{dst+k}, 0xfffffffe, v{dst+k}")

def act_consts(a, nh_s, sA, sS1, vS0):
    a(f"""
    s_lshl_b32 s48, s{sNG}, 1
    s_add_u32 s48, s48, {nh_s}
    s_cmp_lt_u32 s48, 9
    s_mov_b32 s{sA}, 0xbfb8aa3b
    s_cselect_b32 s{sA}, 0xc038aa3b, s{sA}
    s_cselect_b32 s{sS1}, 2.0, 1.0
    s_cselect_b32 s49, -1.0, 0
    v_mov_b32 v{vS0}, s49
    """)
def z_mul(a, dst, f, g, t):
    bf16_op(a, "v_mul_f32", dst, f, g, t)
def gen():
    a = Asm()
    a(f"; @launch grid=(252,1,1) block=(512,1,1) lds={LDS_TOTAL}")
    a('.amdgcn_target "amdgcn-amd-amdhsa--gfx950"')
    a(".text")
    a(f".globl {NAME}")
    kernel_header(a, NAME)
    a("s_cmp_ge_u32 s2, 252\ns_cbranch_scc1 L_end")
    a("""
    s_load_dwordx4 s[4:7], s[0:1], 0
    s_load_dwordx4 s[8:11], s[0:1], 16
    s_load_dwordx4 s[12:15], s[0:1], 32
    s_getpc_b64 s[40:41]
    L_pc:
    v_lshlrev_b32 v1, 7, v0
    v_min_u32 v1, L_code_end-L_pc-4, v1
    global_load_dword v254, v1, s[40:41]
    """)
    if STAMP: a("v_mov_b32 v253, 0")
    if "dur" in OPT: a("s_memrealtime s[98:99]")
    stamp(a, 0)
    a(f"""
    v_lshrrev_b32 v1, 6, v0
    v_and_b32 v0, 63, v0
    v_readfirstlane_b32 s{sWV}, v1
    s_and_b32 s48, s2, 7
    s_lshr_b32 s49, s2, 3
    s_and_b32 s50, s48, 3
    s_lshr_b32 s48, s48, 2
    s_lshl_b32 s48, s48, 5
    s_add_u32 s48, s48, s49
    s_mul_i32 s51, s48, 7282
    s_lshr_b32 s51, s51, 16
    s_mul_i32 s49, s51, 9
    s_sub_u32 s{sNG}, s48, s49
    s_mul_i32 s{sMT}, s50, 7
    s_add_u32 s{sMT}, s{sMT}, s51
    s_lshr_b32 s{sB}, s50, 1
    s_and_b32 s50, s50, 1
    s_mul_i32 s50, s50, 7
    s_add_u32 s{sMTL}, s50, s51
    s_mul_i32 s52, s{sMT}, 7282
    s_lshr_b32 s52, s52, 16
    s_mul_i32 s49, s52, 9
    s_sub_u32 s{sCP}, s{sMT}, s49
    s_mov_b32 s{sC0}, 0
    """)
    a(f"""
    s_cmp_eq_u32 s{sCP}, 0
    s_cselect_b32 s55, 2, 3
    s_mul_i32 s53, s52, s55
    s_sub_u32 s54, 8, s53
    s_min_u32 s54, s54, s55
    """)
    a(f"""
    v_lshrrev_b32 v3, 2, v0
    v_mul_u32_u24 v3, 576, v3
    v_lshrrev_b32 v4, 5, v0
    v_lshlrev_b32 v4, 1, v4
    v_xor_b32 v4, v4, v0
    v_and_b32 v4, 3, v4
    v_lshlrev_b32 v4, 4, v4
    s_lshl_b32 s48, s{sNG}, 6
    v_add3_u32 v3, v3, v4, s48
    """)
    a("""
    v_lshrrev_b32 v12, 2, v0
    v_and_b32 v12, 4, v12
    v_xor_b32 v12, v12, v0
    v_lshlrev_b32 v12, 4, v12
    """)
    a("s_waitcnt lgkmcnt(0)")
    if "pfine" in OPT or "xfine" in OPT: stamp(a, 1)
    a(f"s_mul_i32 s48, s{sB}, {XB_SIZE}\ns_add_u32 s4, s4, s48\ns_addc_u32 s5, s5, 0")
    srd(a, sX, 4, 5, XB_SIZE)
    srd(a, sW, 6, 7, W_SIZE)
    srd(a, sD, 12, 13, 256)
    a(f"""
    s_lshl_b32 s48, s2, 3
    s_add_u32 s48, s48, s{sWV}
    s_cmp_lg_u32 s48, 4
    s_cbranch_scc1 L_nononce
    s_memrealtime s[56:57]
    s_waitcnt lgkmcnt(0)
    s_or_b32 s56, s56, 1
    v_mov_b32 v4, s56
    v_mov_b32 v5, {NOFF}
    s_mov_b64 exec, 1
    buffer_store_dword v4, v5, s[{sD}:{sD+3}], 0 offen sc1
    s_mov_b64 exec, -1
    L_nononce:
    """)
    PL = 176
    def w_share(dst):
        a(f"""
        s_lshr_b32 s48, s2, 3
        s_and_b32 s50, s48, 1
        s_mul_i32 s50, s50, 36
        v_add_u32 v10, s50, v0
        v_lshlrev_b32 v10, 7, v10
        s_lshr_b32 s48, s48, 1
        s_mul_i32 s48, s48, 165888
        s_mul_i32 s50, s{sWV}, 9216
        s_add_u32 s48, s48, s50
        s_mov_b32 exec_hi, 0xf
        buffer_load_dword v{dst}, v10, s[{sW}:{sW+3}], s48 offen
        s_mov_b32 exec_hi, -1
        """)
    def x_loop(lbl, end_s):
        a(f"""
        {lbl}:
        s_cmp_ge_u32 s50, 99
        s_cselect_b32 s51, 99, 0
        s_sub_u32 s50, s50, s51
        s_lshl_b32 s51, s50, 10
        s_mov_b32 m0, s51
        s_add_i32 s51, s51, s49
        s_cmp_lt_i32 s51, 0
        s_cselect_b32 s58, 0x7fff0000, 0
        v_or_b32 v11, s58, v12
        s_max_i32 s51, s51, 0
        s_add_u32 s50, s50, 4
        s_add_u32 s59, s59, 4
        buffer_load_dwordx4 v11, s[{sX}:{sX+3}], s51 offen lds
        s_cmp_lt_u32 s59, {end_s}
        s_cbranch_scc1 {lbl}
        """)
    a(f"""
    s_mul_i32 s49, s{sMTL}, {288*288}
    s_sub_i32 s49, s49, {64*288}
    s_cmp_ge_u32 s{sWV}, 4
    s_cbranch_scc1 L_hfirst
    s_cmp_ge_u32 s{sWV}, 2
    s_cbranch_scc1 L_nopf0
    """)
    w_share(251)
    a(f"""
    L_nopf0:
    s_mov_b32 s59, s{sWV}
    s_mul_i32 s60, s{sNG}, 11
    s_add_u32 s60, s60, s59
    s_mov_b32 s50, s60
    """)
    x_loop("L_xl0", 12)
    if "xfine" in OPT: stamp(a, 2)
    a(f"s_cmp_lt_u32 s{sWV}, 2\ns_cbranch_scc1 L_nopf1\ns_mov_b32 s62, s50")
    w_share(251)
    a("s_mov_b32 s50, s62\nL_nopf1:")
    x_loop("L_xl1", 99)
    if "xfine" in OPT: stamp(a, 3)
    a("s_branch L_xdone\nL_hfirst:")
    a(f"""
    s_sub_u32 s61, s{sWV}, 4
    s_lshl_b32 s56, s54, 2
    s_add_u32 s56, s56, 1
    s_lshl_b32 s57, s56, 1
    s_mul_i32 s58, s{sNG}, s56
    s_lshl_b32 s58, s58, 3
    s_mul_i32 s59, s61, s57
    s_add_u32 s58, s58, s59
    v_add_u32 v10, s58, v0
    v_mul_u32_u24 v11, 911, v10
    v_lshrrev_b32 v11, 16, v11
    v_mul_u32_u24 v13, 72, v11
    v_sub_u32 v10, v10, v13
    v_lshlrev_b32 v10, 7, v10
    s_lshl_b32 s58, s53, 2
    s_sub_u32 s58, s58, 1
    v_add_u32 v11, s58, v11
    s_mov_b32 s58, 82944
    v_mul_lo_u32 v11, v11, s58
    v_add_u32 v10, v10, v11
    s_mul_i32 s58, s{sCP}, 9216
    v_add_u32 v10, s58, v10
    v_cmp_gt_u32 vcc, s57, v0
    s_nop 1
    s_mov_b64 exec, vcc
    buffer_load_dword v251, v10, s[{sW}:{sW+3}], 0 offen
    s_mov_b64 exec, -1
    """)
    if "xfine" in OPT: stamp(a, 2)
    a(f"""
    s_add_u32 s56, s53, s61
    s_lshl_b32 s56, s56, 1
    s_mul_i32 s57, s56, 165888
    s_mul_i32 s58, s{sCP}, 9216
    s_add_u32 s57, s57, s58
    s_sub_u32 s58, s57, 82944
    s_cmp_eq_u32 s56, 0
    s_cselect_b32 s58, 0, s58
    s_cselect_b32 s59, 0x7fff0000, 0
    s_cmp_ge_u32 s61, s54
    s_cselect_b32 s60, 0x7fff0000, 0
    s_or_b32 s59, s59, s60
    v_or_b32 v24, s59, v3
    v_or_b32 v25, s60, v3
    s_waitcnt vmcnt(0)
    """)
    if "xfine" in OPT: stamp(a, 3)
    a(f"""
    buffer_load_dwordx4 v[{PL}:{PL+3}], v25, s[{sW}:{sW+3}], s57 offen
    buffer_load_dwordx4 v[{PL+4}:{PL+7}], v24, s[{sW}:{sW+3}], s58 offen
    s_add_u32 s58, s57, 82944
    buffer_load_dwordx4 v[{PL+8}:{PL+11}], v25, s[{sW}:{sW+3}], s58 offen
    s_add_u32 s58, s57, 165888
    buffer_load_dwordx4 v[{PL+12}:{PL+15}], v25, s[{sW}:{sW+3}], s58 offen
    s_add_u32 s58, s57, 248832
    buffer_load_dwordx4 v[{PL+16}:{PL+19}], v25, s[{sW}:{sW+3}], s58 offen
    v_mov_b32 v26, {NOFF}
    buffer_load_dword v60, v26, s[{sD}:{sD+3}], 0 offen sc1
    """)
    a("L_xdone:")
    if "pfine" in OPT: stamp(a, 2)
    srd(a, sWo, 8, 9, 144 * 288)
    srd(a, sG, 14, 15, GF_SIZE)
    a(f"s_add_u32 s48, s14, {E_OFF}\ns_addc_u32 s49, s15, 0")
    srd(a, sE, 48, 49, E_SIZE)
    a(f"s_cmp_ge_u32 s{sWV}, 4\ns_cbranch_scc1 L_helper")
    gen_mfma(a)
    a("L_helper:")
    gen_helper(a)
    a("L_end:\ns_endpgm\nL_code_end:")
    a('.section .rodata,"a"')
    a(".p2align 6")
    kernel_desc(a, NAME, 256)
    return a.text()
M_, Y_ = 16, 52
XF = 88
GR = 136
WA, WB = 184, GR + 32
vS0, vS1r, vW, vG, vX, vXn, vXb, vWb, vPt = 2, 3, 4, 5, 6, 7, 8, 9, 13
vW0 = 14
sSlotW = 61
sGo0, sGo1, sD = 66, 67, 76
class Sched:
    def __init__(self, a):
        self.a = a; self.lds = []; self.vm = []
    def lds_issue(self, tag): self.lds.append(tag)
    def vm_issue(self, tag): self.vm.append(tag)
    def need(self, ltags=(), vtags=()):
        parts = []
        li = max((i for i, t in enumerate(self.lds) if t in ltags), default=-1)
        if li >= 0:
            n = min(len(self.lds) - 1 - li, 15)
            parts.append(f"lgkmcnt({n})")
            self.lds = self.lds[len(self.lds) - n:] if n > 0 else []
        vi = max((i for i, t in enumerate(self.vm) if t in vtags), default=-1)
        if vi >= 0:
            n = len(self.vm) - 1 - vi
            parts.append(f"vmcnt({n})")
            self.vm = self.vm[len(self.vm) - n:] if n > 0 else []
        if parts:
            self.a("s_waitcnt " + " ".join(parts))
def chunk_order():
    return [(sp, i - 3 + sp, i) for i in range(12) for sp in range(4) if 0 <= i - 3 + sp <= 8]
LAST_USE = {}
for n_, (s_, T_, i_) in enumerate(chunk_order()): LAST_USE[i_] = n_

def emit_chunk(a, sc, acc, wreg, wtags, fillers, pre=None, lookahead=5):
    order = chunk_order()
    for n, (s, T, i) in enumerate(order):
        if pre is not None:
            for f in pre[n]: f()
        pend_l = set(sc.lds); pend_v = set(sc.vm)
        now_l = ({f"x{i}"} | set(wtags[s][0])) & pend_l
        now_v = set(wtags[s][1]) & pend_v
        if now_l or now_v:
            lt = set()
            for (s2, T2, i2) in order[n:n + lookahead]:
                lt |= {f"x{i2}"} | set(wtags[s2][0])
            lt &= pend_l
            sc.need(lt if now_l else (), now_v)
        d = acc + 4 * T
        a(f"v_mfma_f32_16x16x32_bf16 v[{d}:{d+3}], v[{wreg+4*s}:{wreg+4*s+3}], v[{XF+4*i}:{XF+4*i+3}], v[{d}:{d+3}]")
        for f in fillers[n]: f()

def place(items, start, step=1, ngaps=36):
    g = [[] for _ in range(ngaps)]
    for k, it in enumerate(items):
        g[start + k * step].append(it)
    return g
def merge(*gs):
    return [sum((g[n] for g in gs), []) for n in range(len(gs[0]))]
def gen_mfma(a):
    ins = lambda t: (lambda: a(t))
    a(f"v_mov_b32 v{vW0}, v3")
    for i in range(1, 4):
        a(f"v_add_u32 v{16+i}, {i*(165888-1024)}, v3")
    a(f"""
    s_mul_i32 s48, s{sWV}, {4*165888}
    s_lshl_b32 s49, s{sWV}, 12
    s_add_u32 m0, s49, {LDS_W}
    s_nop 0
    buffer_load_dwordx4 v3, s[{sW}:{sW+3}], s48 offen lds
    """)
    for i in range(1, 4):
        a(f"buffer_load_dwordx4 v{16+i}, s[{sW}:{sW+3}], s48 offen offset:{i*1024} lds")
    a(f"""
    s_add_u32 s48, s48, 9216
    s_add_u32 m0, s49, {LDS_W + WSLOT}
    s_nop 0
    buffer_load_dwordx4 v3, s[{sW}:{sW+3}], s48 offen lds
    """)
    for i in range(1, 4):
        a(f"buffer_load_dwordx4 v{16+i}, s[{sW}:{sW+3}], s48 offen offset:{i*1024} lds")
    if "pfine" in OPT: stamp(a, 3)
    a("s_setprio 1")
    a(f"s_lshr_b32 s{sT}, s{sWV}, 1\ns_and_b32 s{sT+1}, s{sWV}, 1")
    a(f"""
    v_bfe_u32 v10, v0, 1, 2
    v_bfe_u32 v11, v0, 3, 1
    v_mul_u32_u24 v11, 36, v11
    v_add_u32 v10, v10, v11
    v_lshrrev_b32 v11, 5, v0
    v_sub_u32 v10, v10, v11
    s_lshl_b32 s{sT+2}, s{sT}, 1
    s_sub_u32 s{sT+2}, 4, s{sT+2}
    v_add_u32 v10, s{sT+2}, v10
    v_and_b32 v11, 1, v0
    v_bfe_u32 v12, v0, 4, 1
    v_lshlrev_b32 v12, 4, v12
    v_lshl_add_u32 v15, v10, 2, v11
    v_mul_u32_u24 v{vXb}, 288, v15
    v_add_u32 v{vXb}, v{vXb}, v12
    v_lshl_add_u32 v15, v10, 1, v11
    v_bfe_u32 v10, v15, 2, 1
    v_lshlrev_b32 v10, 4, v10
    v_xor_b32 v10, v10, v12
    v_lshl_add_u32 v{vS0}, v15, 5, v10
    v_add_u32 v{vS0}, {LDS_S}, v{vS0}
    v_add_u32 v{vS1r}, {SSLOT}, v{vS0}
    """)
    tr_lane(a, vWb, 10, 11)
    a(f"""
    s_lshl_b32 s{sT+2}, s{sT+1}, 5
    v_xor_b32 v{vWb}, s{sT+2}, v{vWb}
    s_lshl_b32 s{sT+2}, s{sT}, 11
    s_add_u32 s{sT+2}, s{sT+2}, {LDS_W}
    v_add_u32 v{vWb}, s{sT+2}, v{vWb}
    s_mul_i32 s{sT+2}, s{sNG}, 147456
    s_lshl_b32 s{sT+3}, s{sT}, 13
    s_add_u32 s{sT+2}, s{sT+2}, s{sT+3}
    s_lshl_b32 s{sT+3}, s{sT+1}, 10
    s_add_u32 s{sT+2}, s{sT+2}, s{sT+3}
    v_lshlrev_b32 v{vG}, 4, v0
    v_add_u32 v{vG}, s{sT+2}, v{vG}
    """)
    for r in range(M_, Y_ + 36):
        a(f"v_mov_b32 v{r}, 0")
    a(f"""
    s_mov_b32 s{sSlotW}, 0
    s_mov_b32 s{sIt}, 0
    v_mov_b32 v{vW}, v{vWb}
    """)
    PF = "pfine" in OPT
    stamp(a, 4 if PF else 1)
    a("s_waitcnt vmcnt(8)\ns_barrier")
    stamp(a, 5 if PF else 2)
    a(f"""
    s_mul_i32 s48, s{sWV}, 45
    v_add_u32 v124, s48, v0
    v_mul_u32_u24 v125, 1821, v124
    v_lshrrev_b32 v125, 16, v125
    v_mul_u32_u24 v126, 36, v125
    v_sub_u32 v124, v124, v126
    s_lshr_b32 s48, s2, 3
    s_and_b32 s49, s48, 1
    s_mul_i32 s49, s49, 36
    v_add_u32 v124, s49, v124
    v_lshlrev_b32 v124, 7, v124
    v_mul_u32_u24 v125, 9216, v125
    v_add_u32 v124, v124, v125
    s_lshr_b32 s48, s48, 1
    s_mul_i32 s48, s48, 165888
    s_add_u32 s48, s48, {4*9216}
    s_mov_b32 exec_hi, 0x1fff
    buffer_load_dword v251, v124, s[{sW}:{sW+3}], s48 offen
    s_mov_b32 exec_hi, -1
    s_lshr_b32 s48, s2, 3
    s_mul_i32 s48, s48, 12
    s_mul_i32 s49, s{sWV}, 3
    s_add_u32 s48, s48, s49
    v_add_u32 v124, s48, v0
    v_lshlrev_b32 v124, 7, v124
    s_mov_b64 exec, 7
    buffer_load_dword v250, v124, s[{sWo}:{sWo+3}], 0 offen
    s_mov_b64 exec, -1
    """)
    a("s_waitcnt vmcnt(6)\ns_barrier")
    stamp(a, 6 if PF else 3)
    sc = Sched(a)
    def rd_x(i, vaddr, imm):
        def f():
            a(f"ds_read_b128 v[{XF+4*i}:{XF+4*i+3}], v{vaddr} offset:{imm}")
            sc.lds_issue(f"x{i}")
        return f
    def rd_w(wreg, s_, h):
        def f():
            a(f"ds_read_b64_tr_b16 v[{wreg+4*s_+2*h}:{wreg+4*s_+2*h+1}], v{vW} offset:{4096*s_ + 256*h}")
            sc.lds_issue(f"w{wreg}_{s_}")
        return f
    def gload(setidx, s_):
        reg = GR + 16 * setidx + 4 * s_
        so = sGo0 if s_ < 2 else sGo1
        def f():
            a(f"buffer_load_dwordx4 v[{reg}:{reg+3}], v{vG}, s[{sG}:{sG+3}], s{so} offen offset:{(s_ & 1)*2048} sc1")
            sc.vm_issue(f"g{setidx}_{s_}")
        return f
    def at(pairs):
        g = [[] for _ in range(36)]
        for n, f in pairs: g[n].append(f)
        return g
    def swz_items(dst):
        return [ins(f"v_add_u32 v{dst}, s{sD}, v{vXb}"), ins(f"v_lshrrev_b32 v{vPt}, 2, v{dst}"),
                ins(f"v_and_b32 v{vPt}, 64, v{vPt}"), ins(f"v_xor_b32 v{dst}, v{dst}, v{vPt}")]
    def barrier_drain(vm=False):
        def f():
            sc.need(set(sc.lds), ())
            a("s_waitcnt vmcnt(2)\ns_barrier" if vm else "s_barrier")
        return f
    wtags_a = lambda wreg: [([f"w{wreg}_{s_}"], []) for s_ in range(4)]
    wtags_b = lambda u: [([], [f"g{u}_{s_}"]) for s_ in range(4)]
    BAR = 6
    def reload_gaps_after_bar():
        g, n = {}, BAR + 1
        for i in range(12):
            n = max(n, LAST_USE[i]); g[i] = n; n += 1
            n = min(n, 35)
        return g
    RG_A = reload_gaps_after_bar()
    free_a = [n for n in range(BAR + 1, 34) if n not in RG_A.values()]

    init = [(RG_A[i], rd_x(i, vS0, 256 * i)) for i in range(12)]
    init += list(zip(free_a[:8], [rd_w(WA, s_, h) for s_ in (3, 2, 1, 0) for h in range(2)]))
    for row in at(init):
        for f in row: f()

    def a_chunk(it_par, kind, vm):
        wcur, wnxt = (WA, WB) if it_par == 0 else (WB, WA)
        vsn = vS1r if it_par == 0 else vS0
        items = [(BAR, barrier_drain(vm))]
        if kind != "B":
            items += [(0, ins(f"s_add_u32 s{sSlotW}, s{sSlotW}, {WSLOT}\ns_cmp_eq_u32 s{sSlotW}, {3*WSLOT}")),
                      (1, ins(f"s_cselect_b32 s{sSlotW}, 0, s{sSlotW}")),
                      (2, ins(f"v_add_u32 v{vW}, s{sSlotW}, v{vWb}"))]
            items += [(RG_A[i], rd_x(i, vsn, 256 * i)) for i in range(12)]
            ws = [rd_w(wnxt, s_, h) for s_ in (3, 2, 1, 0) for h in range(2)]
            items += list(zip(free_a[:8], ws))
        else:
            items += [(0, ins(f"s_mov_b32 s{sD}, 576"))] + list(zip((1, 2, 3, 4), swz_items(vX)))
            items += [(RG_A[i], rd_x(i, vX, 4608 * i)) for i in range(12)]
            items += [(free_a[0], ins(f"s_mov_b32 s{sD}, {576 + 32}"))] + list(zip(free_a[1:5], swz_items(vXn)))
            items += [(35, ins(f"v_mov_b32 v{vX}, v{vXn}"))]
        if kind in ("G0", "B"):
            gs = 0 if kind == "G0" else 1
            items += [(3, ins(f"s_mov_b32 s{sGo0}, {gs*16384}\ns_mov_b32 s{sGo1}, {gs*16384 + 4096}"))]
            items += list(zip(free_a[8:12] if kind == "G0" else free_a[5:9], [gload(gs, s_) for s_ in range(4)]))
        emit_chunk(a, sc, M_, wcur, wtags_a(wcur), at(items))

    a("L_A:")
    st = list(sc.lds)
    a_chunk(0, "A", True)
    if PF: stamp_dyn2(a, 7, sIt, 0)
    a_chunk(1, "A", True)
    assert sc.lds == st, (sc.lds, st)
    if PF: stamp_dyn2(a, 7, sIt, 1)
    if "aavg" in OPT:
        a(f"s_cmp_eq_u32 s{sIt}, 1\ns_cbranch_scc1 L_aavg_no")
        stamp_dyn(a, 5, sIt)
        a("L_aavg_no:")
    a(f"s_add_u32 s{sIt}, s{sIt}, 1\ns_cmp_lt_u32 s{sIt}, 3\ns_cbranch_scc1 L_A")
    a_chunk(0, "A", False)
    if PF: stamp(a, 13)
    a_chunk(1, "G0", False)
    if PF: stamp(a, 14)
    a_chunk(0, "B", False)
    stamp(a, 15 if PF else 4)
    if PF or "aavg" in OPT: HF_OFF[0] = True

    sTrip = sT + 4
    a(f"s_mov_b32 s{sD}, {576 + 32}\ns_mov_b32 s{sGo0}, 16384")
    def b_chunk(acc, u, switch=False, extra=(), pre=None):
        items = [(LAST_USE[i], rd_x(i, vX, 4608 * i)) for i in range(12)]
        if switch:
            items += [(1, ins(f"s_add_u32 s{sD}, s{sD}, 32\ns_add_u32 s{sGo0}, s{sGo0}, 16384\ns_cmp_eq_u32 s{sTrip}, 2")),
                      (3, ins(f"s_cselect_b32 s{sD}, 0, s{sD}\ns_cselect_b32 s{sGo0}, {GF_PROD}, s{sGo0}"))]
        else:
            items += [(1, ins(f"s_add_u32 s{sD}, s{sD}, 32\ns_add_u32 s{sGo0}, s{sGo0}, 16384"))]
        items += [(4, ins(f"s_add_u32 s{sGo1}, s{sGo0}, 4096"))]
        items += list(zip((6, 7, 8, 10), swz_items(vXn)))
        items += list(zip((11, 12, 14, 15), [gload((u + 2) % 3, s_) for s_ in range(4)]))
        items += [(35, ins(f"v_mov_b32 v{vX}, v{vXn}"))]
        items += list(extra)
        emit_chunk(a, sc, acc, GR + 16 * u, wtags_b(u), at(items), pre)
    a(f"s_mov_b32 s{sTrip}, 0")
    a("L_B1:")
    st_l, st_v = list(sc.lds), list(sc.vm)
    for u in range(3):
        b_chunk(Y_, u, switch=(u == 1))
    stamp_dyn(a, 5, sTrip) if "pre" in OPT else None
    a("s_barrier")
    stamp_dyn(a, 5, sTrip) if "pre" not in OPT else None
    a(f"s_add_u32 s{sTrip}, s{sTrip}, 1\ns_cmp_lt_u32 s{sTrip}, 3\ns_cbranch_scc1 L_B1")
    assert sc.lds == st_l and sc.vm == st_v
    a(f"""
    s_mul_i32 s{sT+1}, s{sWV}, 9216
    s_add_u32 s{sT+1}, s{sT+1}, {LDS_Y0}
    v_lshlrev_b32 v10, 4, v0
    v_add_u32 v10, s{sT+1}, v10
    """)
    first = {}
    for n, (s_, T, i) in enumerate(chunk_order()): first.setdefault(T, n)
    pre = [[] for _ in range(36)]
    prev = 0
    for T in range(9):
        slots = list(range(prev, first[T] + 1)) if T > 0 else [0]
        adds = [ins(f"v_add_f32 v{Y_+4*T+r}, v{M_+4*T+r}, v{Y_+4*T+r}") for r in range(4)]
        slots = [0] if T == 0 else list(range(prev + 1, first[T] + 1))
        for k, f in enumerate(adds): pre[slots[(k * len(slots)) // 4]].append(f)
        prev = first[T]
    def ywrite(T):
        def f():
            a(f"ds_write_b128 v10, v[{Y_+4*T}:{Y_+4*T+3}] offset:{T*1024}")
            sc.lds_issue(f"yw{T}")
        return f
    wgaps = [3, 7, 11, 15, 19, 23, 27, 31, 33]
    b_chunk(M_, 0, extra=[(wgaps[T], ywrite(T)) for T in range(9)], pre=pre)
    def bar_y0():
        sc.need({f"yw{T}" for T in range(9)}, ())
        a("s_barrier")
    b_chunk(M_, 1, extra=[(16, bar_y0)])
    b_chunk(M_, 2)
    stamp(a, 8)
    a(f"s_mov_b32 s{sTrip}, 1")
    a("L_B2:")
    assert sc.lds == st_l and sc.vm == st_v, (sc.lds, st_l, sc.vm, st_v)
    for u in range(3):
        b_chunk(M_, u)
    stamp_dyn(a, 8, sTrip)
    a(f"s_add_u32 s{sTrip}, s{sTrip}, 1\ns_cmp_lt_u32 s{sTrip}, 3\ns_cbranch_scc1 L_B2")

    a("s_setprio 0")
    a(f"""
    s_lshr_b32 s{sT}, s{sWV}, 1
    s_and_b32 s{sT+1}, s{sWV}, 1
    s_mul_i32 s{sT+2}, s{sWV}, 5120
    s_add_u32 s{sT+2}, s{sT+2}, {LDS_Y1}
    v_lshlrev_b32 v9, 4, v0
    v_add_u32 v10, s{sT+2}, v9
    s_xor_b32 s{sT+2}, s{sWV}, 2
    s_mul_i32 s{sT+2}, s{sT+2}, 5120
    s_add_u32 s{sT+2}, s{sT+2}, {LDS_Y1}
    v_add_u32 v11, s{sT+2}, v9
    """)
    act_consts(a, f"s{sT+1}", sT + 5, sT + 6, 12)
    a(f"""
    s_mov_b32 s56, s{sT+5}
    s_mov_b32 s57, s{sT+5}
    s_mov_b32 s58, s{sT+6}
    s_mov_b32 s59, s{sT+6}
    s_mov_b32 s60, 1.0
    s_mov_b32 s61, 1.0
    v_mov_b32 v14, v12
    v_mov_b32 v15, v12
    """)
    a(f"""
    s_mul_i32 s49, s{sMT}, {9*2*18*512}
    s_lshl_b32 s48, s48, 9
    s_add_u32 s48, s48, s49
    s_add_u32 s48, s48, {18*512}
    s_mul_i32 s49, s{sT}, {2*18*512}
    s_add_u32 s48, s48, s49
    v_lshlrev_b32 v13, 3, v0
    v_add_u32 v13, s48, v13
    s_waitcnt lgkmcnt(0)
    s_cmp_eq_u32 s{sT}, 0
    s_cbranch_scc0 L_t_k1
    """)
    K = XF
    def tail(keep, send, lbl):
        for i, T in enumerate(send):
            a(f"ds_write_b128 v10, v[{M_+4*T}:{M_+4*T+3}] offset:{i*1024}")
        a("s_waitcnt lgkmcnt(0)\ns_barrier")
        for i, T in enumerate(keep):
            a(f"ds_read_b128 v[{K+4*i}:{K+4*i+3}], v11 offset:{i*1024}")
        for i, T in enumerate(keep):
            a(f"s_waitcnt lgkmcnt({len(keep)-1-i})")
            for r in (0, 2):
                a(f"v_pk_add_f32 v[{M_+4*T+r}:{M_+4*T+r+1}], v[{M_+4*T+r}:{M_+4*T+r+1}], v[{K+4*i+r}:{K+4*i+r+1}]")
        activation_pk(a, [M_ + 4*T + r for T in keep for r in (0, 2)], 56, 58, 60, 14, Y_)
        for i, T in enumerate(keep):
            a(f"s_mov_b32 s49, {i*2*2*18*512}")
            a(f"buffer_store_dwordx2 v[{Y_+2*i}:{Y_+2*i+1}], v13, s[{sE}:{sE+3}], s49 offen sc1")
    a("s_nop 7")
    tail([0, 2, 4, 6, 8], [1, 3, 5, 7], "k0")
    a("s_branch L_t_j\nL_t_k1:\ns_nop 7")
    tail([1, 3, 5, 7], [0, 2, 4, 6, 8], "k1")
    a("L_t_j:")
    stamp(a, 11)
    z_unit_setup(a, 1)
    z_units(a, [sWV], "m", 0)
    a("s_waitcnt lgkmcnt(0)\ns_barrier")
    stamp(a, 12)
    HF_OFF[0] = False
    stamp_flush(a)
    a("s_endpgm")
def z_unit_setup(a, q):
    a(f"""
    s_mul_i32 s48, s{sMT}, {9*2*18*512}
    s_mul_i32 s49, s{sNG}, {2*18*512}
    s_add_u32 s48, s48, s49
    s_add_u32 s48, s48, {q*18*512}
    v_lshlrev_b32 v14, 3, v0
    v_add_u32 v14, s48, v14
    v_lshlrev_b32 v15, 4, v0
    v_add_u32 v15, {LDS_Z}, v15
    """)
def z_units(a, cts, lbl, nap):
    ZL, ZZ, ZT, ZM = 128, 140, 146, 150
    for u, c in enumerate(cts):
        a(f"s_lshl_b32 s{50+2*u}, s{c}, 9\ns_add_u32 s{51+2*u}, s{50+2*u}, 4608")
    a(f"s_mov_b32 s{sSpin}, 0\nL_zp_{lbl}:")
    for u in range(len(cts)):
        a(f"buffer_load_dwordx2 v[{ZL+4*u}:{ZL+4*u+1}], v14, s[{sE}:{sE+3}], s{50+2*u} offen sc1")
        a(f"buffer_load_dwordx2 v[{ZL+4*u+2}:{ZL+4*u+3}], v14, s[{sE}:{sE+3}], s{51+2*u} offen sc1")
    a(f"s_add_u32 s{sSpin}, s{sSpin}, 1\ns_waitcnt vmcnt(0)")
    a(f"v_max_u32 v{ZM}, v{ZL}, v{ZL+1}\nv_max3_u32 v{ZM}, v{ZM}, v{ZL+2}, v{ZL+3}")
    for u in range(1, len(cts)):
        a(f"v_max3_u32 v{ZM}, v{ZM}, v{ZL+4*u}, v{ZL+4*u+1}\nv_max3_u32 v{ZM}, v{ZM}, v{ZL+4*u+2}, v{ZL+4*u+3}")
    a(f"""
    v_cmp_eq_u32 vcc, -1, v{ZM}
    s_cmp_ge_u32 s{sSpin}, {SPIN_MAX}
    s_cbranch_scc1 L_zd_{lbl}
    s_cbranch_vccz L_zd_{lbl}
    """)
    if nap: a(f"s_sleep {nap}")
    a(f"s_branch L_zp_{lbl}\nL_zd_{lbl}:")
    for u, c in enumerate(cts):
        z_mul(a, ZZ + 2*u, ZL + 4*u, ZL + 4*u + 2, ZT)
        z_mul(a, ZZ + 2*u + 1, ZL + 4*u + 1, ZL + 4*u + 3, ZT)
        a(f"""
        s_lshr_b32 s48, s{c}, 1
        s_lshl_b32 s48, s48, 10
        s_and_b32 s49, s{c}, 1
        s_lshl_b32 s49, s49, 3
        s_add_u32 s48, s48, s49
        v_add_u32 v{ZM}, s48, v15
        ds_write_b64 v{ZM}, v[{ZZ+2*u}:{ZZ+2*u+1}]
        """)
WO = 64
def gen_helper(a):
    sH = sT
    sCw, sSl, sCs, sSs = 72, 73, 74, 75
    vSx, vSw, vPat, vLo = 20, 21, 22, 23
    SB, SD, ID, IJ = 28, 40, 52, 56
    a(f"s_sub_u32 s{sH}, s{sWV}, 4")
    if "pfine" in OPT: HF_OFF[0] = True
    for i in range(4):
        a(f"v_add_u32 v{16+i}, {i*(165888-1024)}, v3")
    a(f"s_mul_i32 s{sCw}, s{sH}, {4*165888}\ns_lshl_b32 s{sSl}, s{sH}, 12\ns_add_u32 s{sSl}, s{sSl}, {LDS_W}")
    def wdma(k):
        a(f"s_add_u32 m0, s{sSl}, {(k % 3) * WSLOT}\ns_add_u32 s50, s{sCw}, {k * 9216}")
        for i in range(4):
            if "nodma" not in OPT:
                a(f"buffer_load_dwordx4 v{16+i}, s[{sW}:{sW+3}], s50 offen offset:{i*1024} lds")
    PL = 176
    a(f"""
    v_bfe_u32 v24, v0, 1, 3
    v_lshlrev_b32 v24, 2, v24
    v_and_b32 v25, 1, v0
    v_add_u32 v24, v24, v25
    v_lshrrev_b32 v25, 5, v0
    v_lshl_add_u32 v24, v25, 1, v24
    v_mul_u32_u24 v{vSx}, 288, v24
    v_bfe_u32 v24, v0, 4, 1
    v_lshl_add_u32 v{vSx}, v24, 4, v{vSx}
    s_mul_i32 s48, s{sH}, 9216
    v_add_u32 v{vSx}, s48, v{vSx}
    v_and_b32 v24, 15, v0
    v_lshlrev_b32 v24, 5, v24
    v_bfe_u32 v26, v0, 2, 1
    v_xor_b32 v26, v26, v25
    v_lshl_add_u32 v24, v26, 4, v24
    v_bfe_u32 v26, v0, 4, 1
    v_lshl_add_u32 v24, v26, 3, v24
    s_lshl_b32 s48, s{sH}, 9
    s_add_u32 s48, s48, {LDS_S}
    v_add_u32 v{vSw}, s48, v24
    v_sub_u32 v{vLo}, 1, v25
    v_bfe_u32 v24, v0, 4, 1
    v_mul_u32_u24 v{vPat}, 544, v24
    v_bfe_u32 v24, v0, 2, 2
    v_lshl_add_u32 v{vPat}, v24, 6, v{vPat}
    v_and_b32 v24, 3, v0
    v_lshl_add_u32 v{vPat}, v24, 3, v{vPat}
    """)
    a(f"""
    v_lshrrev_b32 v24, 3, v0
    v_lshrrev_b32 v26, 4, v0
    v_xor_b32 v24, v24, v26
    v_and_b32 v24, 1, v24
    v_and_b32 v26, 1, v0
    v_lshlrev_b32 v26, 4, v26
    v_mov_b32 v27, 0x3f80
    v_lshlrev_b32 v27, v26, v27
    v_lshlrev_b32 v28, 15, v25
    v_lshlrev_b32 v28, v26, v28
    v_or_b32 v28, v28, v27
    v_bfe_u32 v26, v0, 1, 2
    v_lshl_or_b32 v26, v24, 2, v26
    """)
    for r in range(4):
        a(f"v_cmp_eq_u32 vcc, {r}, v26\ns_nop 1\nv_cndmask_b32 v{ID+r}, 0, v27, vcc\nv_cndmask_b32 v{IJ+r}, 0, v28, vcc")
    srd(a, sF, 14, 15, FL_OFF + FL_SIZE)
    SX, SW0 = 196, 205
    for c in range(9):
        a(f"v_add_u32 v24, {32*c}, v{vSx}\nv_lshrrev_b32 v25, 2, v24\nv_and_b32 v25, 64, v25\nv_xor_b32 v{SX+c}, v24, v25")
    a(f"v_mov_b32 v{SW0}, v{vSw}\nv_add_u32 v{SW0+1}, {SSLOT}, v{vSw}")
    def s_reads(c):
        if "nos" in OPT and c > 0: return
        a(f"""
        ds_read_b128 v[{SB}:{SB+3}], v{SX+c}
        ds_read_b128 v[{SB+4}:{SB+7}], v{SX+c} offset:{4*9216}
        v_add_u32 v25, {8*9216}, v{SX+c}
        ds_read_b128 v[{SB+8}:{SB+11}], v25
        """)
    def s_compute(c, between=None):
        if "nos" in OPT and c > 0:
            if between: between()
            return
        vw = SW0 + (c & 1)
        a("s_setprio 3")
        for k in range(3):
            a(f"v_mfma_f32_16x16x32_bf16 v[{SD+4*k}:{SD+4*k+3}], v[{ID}:{ID+3}], v[{SB+4*k}:{SB+4*k+3}], 0")
        if "hiwr" not in OPT: a("s_setprio 0")
        if between: between()
        a("s_nop 7")
        for k in range(3):
            a(f"v_cvt_pk_bf16_f32 v{SD+4*k}, v{SD+4*k}, v{SD+4*k+1}\nv_cvt_pk_bf16_f32 v{SD+4*k+1}, v{SD+4*k+2}, v{SD+4*k+3}")
            if k == 2: a(f"s_cmp_eq_u32 s{sH}, 3\ns_cbranch_scc1 L_s3_{c}")
            a(f"ds_write_b64 v{vw}, v[{SD+4*k}:{SD+4*k+1}] offset:{2048*k}")
        a(f"L_s3_{c}:")
        if "hiwr" in OPT: a("s_setprio 0")
    PB, PD, PK = 64, 128, 160
    def prod_stage():
        a(f"""
        s_mul_i32 s57, s{sH}, 5120
        s_add_u32 s57, s57, {LDS_W + 2*WSLOT}
        v_lshlrev_b32 v24, 4, v0
        v_add_u32 v24, s57, v24
        """)
        for k in range(5):
            a(f"ds_write_b128 v24, v[{PL+4*k}:{PL+4*k+3}] offset:{1024*k}")
        a("s_waitcnt lgkmcnt(0)")
        for c, e, o in ((0, 0, 1024), (2, 0, 2048), (1, 3072, 2048), (3, 3072, 4096)):
            a(f"v_mul_u32_u24 v26, {o}, v{vLo}\nv_sub_u32 v27, 1, v{vLo}\nv_mul_u32_u24 v27, {e}, v27\nv_add3_u32 v26, v26, v27, v{vPat}")
            a(f"v_add_u32 v26, s57, v26\nv_xor_b32 v27, 32, v26")
            for nh in range(2):
                b = PB + 8 * c + 4 * nh
                for h in range(2):
                    a(f"ds_read_b64_tr_b16 v[{b+2*h}:{b+2*h+1}], v{26+nh} offset:{h*256}")
        a("s_waitcnt lgkmcnt(0)")
    def production():
        a("s_setprio 3")
        for f in range(8):
            a(f"v_mfma_f32_16x16x32_bf16 v[{PD+4*f}:{PD+4*f+3}], v[{IJ}:{IJ+3}], v[{PB+4*f}:{PB+4*f+3}], 0")
        a("s_setprio 0")
        a(f"""
        s_add_u32 s57, s53, s{sH}
        s_and_b32 s58, s57, 1
        s_lshl_b32 s58, s58, 2
        s_lshr_b32 s57, s57, 1
        s_add_u32 s57, s57, s58
        s_lshl_b32 s58, s{sCP}, 3
        s_add_u32 s57, s57, s58
        s_lshl_b32 s57, s57, 11
        s_mul_i32 s58, s{sNG}, 147456
        s_add_u32 s57, s57, s58
        s_cmp_ge_u32 s{sH}, s54
        s_cselect_b32 s57, 0x7f000000, s57
        s_add_u32 s58, s57, {GF_PROD}
        v_and_b32 v26, 15, v0
        v_lshlrev_b32 v26, 4, v26
        v_lshrrev_b32 v27, 5, v0
        v_lshl_add_u32 v26, v27, 8, v26
        v_bfe_u32 v27, v0, 4, 1
        v_lshl_add_u32 v26, v27, 3, v26
        """)
        a("v_mov_b32 v61, v26\ns_mov_b32 s62, s57\ns_mov_b32 s63, s58")
        for f in range(8):
            a(f"v_cvt_pk_bf16_f32 v{PK+2*f}, v{PD+4*f}, v{PD+4*f+1}\nv_cvt_pk_bf16_f32 v{PK+2*f+1}, v{PD+4*f+2}, v{PD+4*f+3}")
    def gf_stores():
        for f in range(8):
            c, nh = f >> 1, f & 1
            so = "s62" if c < 2 else "s63"
            a(f"buffer_store_dwordx2 v[{PK+2*f}:{PK+2*f+1}], v61, s[{sG}:{sG+3}], {so} offen offset:{nh*1024 + (c & 1)*512} sc1")
    if "xfine" in OPT: stamp(a, 6)
    a("s_waitcnt vmcnt(0)")
    if "xfine" in OPT: stamp(a, 7)
    prod_stage()
    if "xfine" in OPT: stamp(a, 8)
    production()
    if "xfine" in OPT: stamp(a, 9)
    a(f"""
    s_mov_b32 s{sSpin}, 0
    L_H_nspin:
    v_readfirstlane_b32 s{sNonce}, v60
    s_add_u32 s{sSpin}, s{sSpin}, 1
    s_cmp_lg_u32 s{sNonce}, 0
    s_cbranch_scc1 L_H_n0
    s_cmp_ge_u32 s{sSpin}, {SPIN_MAX}
    s_cbranch_scc1 L_H_n0
    v_mov_b32 v26, {NOFF}
    buffer_load_dword v60, v26, s[{sD}:{sD+3}], 0 offen sc1
    s_waitcnt vmcnt(0)
    s_branch L_H_nspin
    L_H_n0:
    """)
    if "xfine" in OPT: stamp(a, 10)
    a("s_barrier")
    if "xfine" in OPT: stamp(a, 11)
    s_reads(0)
    a("s_waitcnt lgkmcnt(0)")
    s_compute(0)
    s_reads(1)
    a("s_waitcnt lgkmcnt(0)")
    s_compute(1)
    s_reads(2)
    a("s_waitcnt lgkmcnt(3)")
    if "xfine" in OPT: stamp(a, 12)
    if "xfine" in OPT: stamp(a, 13)
    a("s_barrier")
    if "xfine" in OPT: stamp(a, 14); HF_OFF[0] = True
    for r in range(4): a(f"v_mov_b32 v{120+r}, -1")
    def flag_store(kind):
        a(f"""
        s_mul_i32 s49, s{sNG}, 28
        s_add_u32 s49, s49, s{sMT}
        s_lshl_b32 s49, s49, 7
        """)
        if kind == "A":
            a(f"s_lshl_b32 s48, s{sH}, 2\ns_add_u32 s49, s49, s48\ns_add_u32 s49, s49, {FL_OFF}\ns_cmp_lt_u32 s{sH}, 3")
        else:
            a(f"s_add_u32 s49, s49, {FL_OFF + 12}\ns_cmp_eq_u32 s{sH}, 1")
        a(f"""
        s_cselect_b32 s49, s49, 0x7f000000
        v_mov_b32 v26, s49
        v_mov_b32 v27, s{sNonce}
        s_mov_b64 exec, 1
        buffer_store_dword v27, v26, s[{sF}:{sF+3}], 0 offen sc1
        s_mov_b64 exec, -1
        """)
    def poison():
        a(f"""
        s_mul_i32 s56, s{sMT}, {9*2*18*512}
        s_lshl_b32 s57, s{sNG}, 10
        s_add_u32 s56, s56, s57
        v_lshlrev_b32 v26, 4, v0
        v_add_u32 v26, s56, v26
        """)
        for i in range(5):
            a(f"s_add_u32 s57, s{sH}, {4*i}\ns_min_u32 s57, s57, 17\ns_mul_i32 s57, s57, {18*512}")
            a(f"buffer_store_dwordx4 v[120:123], v26, s[{sE}:{sE+3}], s57 offen sc1")
    waits = {1: 12, 2: 4, 3: 5, 4: 9, 5: 9, 6: 5, 7: 0}
    for it in range(9):
        if it == 5 and "hfine" in OPT: stamp(a, 1)
        if it == 0:
            wdma(2)
            gf_stores()
        if 1 <= it <= 7:
            a("s_waitcnt lgkmcnt(0)")
            s_compute(it + 1, (lambda k=it+2: wdma(k)) if it <= 6 else None)
        if it == 5 and "hfine" in OPT: stamp(a, 7)
        if 1 <= it <= 6: s_reads(it + 2)
        if it == 4: poison()
        if it == 6:
            gf_flag_addr(a)
            a(f"buffer_load_dwordx3 v[124:126], v63, s[{sF}:{sF+3}], 0 offen sc1")
        if it == 5 and "hfine" in OPT: stamp(a, 3)
        if it in waits: a(f"s_waitcnt vmcnt({waits[it]}) lgkmcnt({3 if it <= 6 else 0})")
        if it == 5 and "hfine" in OPT: stamp(a, 4)
        if it == 2: flag_store("A")
        if it == 7:
            a(f"""
            s_mov_b32 s{sSpin}, 0
            L_H_fspin:
            v_cmp_ne_u32 vcc, s{sNonce}, v124
            v_cmp_ne_u32 s[56:57], s{sNonce}, v125
            v_cmp_ne_u32 s[58:59], s{sNonce}, v126
            s_add_u32 s{sSpin}, s{sSpin}, 1
            s_or_b64 vcc, vcc, s[56:57]
            s_or_b64 vcc, vcc, s[58:59]
            s_cmp_ge_u32 s{sSpin}, {SPIN_MAX}
            s_cbranch_scc1 L_H_f4
            s_cbranch_vccz L_H_f4
            buffer_load_dwordx3 v[124:126], v63, s[{sF}:{sF+3}], 0 offen sc1
            s_waitcnt vmcnt(0)
            s_branch L_H_fspin
            L_H_f4:
            """)
        a("s_barrier")
        if it == 5 and "hfine" in OPT: stamp(a, 5)
        if it == 6 and "hfine" in OPT: stamp(a, 6)
    if "hfine" not in OPT: stamp(a, 1)
    if "hfine" in OPT: HF_OFF[0] = True
    flag_store("B")
    a(f"v_lshlrev_b32 v24, 4, v0\ns_mov_b32 s50, s{sH}")
    a(f"""
    L_wo:
    s_lshl_b32 s51, s50, 10
    s_add_u32 m0, s51, {LDS_W}
    s_add_u32 s50, s50, 4
    buffer_load_dwordx4 v24, s[{sWo}:{sWo+3}], s51 offen lds
    s_sleep 2
    s_cmp_lt_u32 s50, 41
    s_cbranch_scc1 L_wo
    s_barrier
    """)
    a(f"s_mul_i32 s48, s{sB}, {XB_SIZE}\ns_add_u32 s10, s10, s48\ns_addc_u32 s11, s11, 0")
    srd(a, sO, 10, 11, XB_SIZE)
    a(f"""
    v_mul_u32_u24 v62, 28, v0
    v_add_u32 v62, s{sMT}, v62
    v_lshlrev_b32 v62, 7, v62
    v_add_u32 v62, {FL_OFF + 12}, v62
    s_mov_b32 s{sSpin}, 0
    s_mov_b64 exec, 0x1ff
    L_fb:
    buffer_load_dword v61, v62, s[{sF}:{sF+3}], 0 offen sc1
    s_add_u32 s{sSpin}, s{sSpin}, 1
    s_waitcnt vmcnt(0)
    v_cmp_ne_u32 vcc, s{sNonce}, v61
    s_cmp_ge_u32 s{sSpin}, {SPIN_MAX}
    s_cbranch_scc1 L_fbd
    s_cbranch_vccz L_fbd
    s_sleep 4
    s_branch L_fb
    L_fbd:
    s_mov_b64 exec, -1
    s_barrier
    """)
    a(f"""
    v_lshrrev_b32 v24, 2, v0
    v_mul_u32_u24 v24, 288, v24
    v_and_b32 v25, 3, v0
    v_lshlrev_b32 v25, 3, v25
    v_add_u32 v24, v24, v25
    s_lshl_b32 s48, s{sH}, 5
    s_add_u32 s48, s48, {LDS_W}
    v_add_u32 v24, s48, v24
    v_add_u32 v25, {8*32}, v24
    """)
    for d, (va, off) in enumerate(((24, 0), (24, 128), (25, 0))):
        base = WO + 18 * d
        for P in range(4):
            a(f"ds_read_b64_tr_b16 v[{base+4*P}:{base+4*P+1}], v{va} offset:{off + 32*P*288}")
            a(f"ds_read_b64_tr_b16 v[{base+4*P+2}:{base+4*P+3}], v{va} offset:{off + (32*P+16)*288}")
        a(f"ds_read_b64_tr_b16 v[{base+16}:{base+17}], v{va} offset:{off + 128*288}")
        a("s_waitcnt lgkmcnt(0)")
    a(f"""
    v_bfe_u32 v41, v0, 1, 2
    v_lshlrev_b32 v41, 2, v41
    v_and_b32 v42, 1, v0
    v_add_u32 v41, v41, v42
    v_bfe_u32 v42, v0, 3, 1
    v_mul_u32_u24 v42, 144, v42
    v_add_u32 v41, v41, v42
    s_mul_i32 s48, s{sMTL}, 288
    s_lshl_b32 s49, s{sNG}, 4
    s_add_u32 s48, s48, s49
    v_add_u32 v41, s48, v41
    v_mul_u32_u24 v41, 288, v41
    v_lshrrev_b32 v42, 4, v0
    v_lshlrev_b32 v42, 3, v42
    v_add_u32 v41, v41, v42
    s_lshl_b32 s48, s{sH}, 5
    v_add_u32 v41, s48, v41
    """)
    a(f"s_and_b32 s76, s{sH}, 1\ns_lshr_b32 s77, s{sH}, 1")
    act_consts(a, "s76", 78, 79, 43)
    a(f"""
    s_mul_i32 s49, s{sMT}, {9*2*18*512}
    s_lshl_b32 s48, s48, 9
    s_add_u32 s48, s48, s49
    s_mul_i32 s49, s77, {2*18*512}
    s_add_u32 s48, s48, s49
    v_lshlrev_b32 v44, 3, v0
    v_add_u32 v44, s48, v44
    s_mul_i32 s48, s76, 9216
    s_lshl_b32 s49, s77, 10
    s_add_u32 s48, s48, s49
    s_add_u32 s48, s48, {LDS_Y0}
    v_lshlrev_b32 v45, 4, v0
    v_add_u32 v45, s48, v45
    """)
    a(f"v_mov_b32 v24, {LDS_CNT}\nv_mov_b32 v25, 0\nds_write_b32 v24, v25\ns_waitcnt lgkmcnt(0)")
    a("s_barrier")
    stamp(a, 2)
    a("s_barrier")
    for i in range(5):
        a(f"ds_read_b128 v[{128+4*i}:{131+4*i}], v45 offset:{i*2048}")
        a(f"ds_read_b128 v[{148+4*i}:{151+4*i}], v45 offset:{i*2048 + 2*9216}")
    for i in range(5):
        a(f"s_waitcnt lgkmcnt({8-2*i})")
        for r in range(4): a(f"v_add_f32 v{128+4*i+r}, v{128+4*i+r}, v{148+4*i+r}")
    activation(a, list(range(128, 148)), 78, 79, 43, 20)
    for i in range(5):
        if i == 4: a("s_cmp_eq_u32 s77, 1\ns_cbranch_scc1 L_y0_done")
        a(f"s_mov_b32 s49, {i*2*2*18*512}")
        a(f"buffer_store_dwordx2 v[{20+2*i}:{21+2*i}], v44, s[{sE}:{sE+3}], s49 offen sc1")
    a("L_y0_done:")
    stamp(a, 3)
    z_unit_setup(a, 0)
    a(f"s_add_u32 s60, s{sH}, 4\ns_cmp_eq_u32 s{sH}, 0\ns_cselect_b32 s61, 8, s{sH}\ns_sleep 12")
    z_units(a, [sH, 60, 61], "q0", 4)
    if "qfine" in OPT: stamp(a, 9)
    a(f"""
    s_waitcnt lgkmcnt(0)
    v_mov_b32 v24, {LDS_CNT}
    v_mov_b32 v25, 1
    s_mov_b64 exec, 1
    ds_add_u32 v24, v25
    s_mov_b64 exec, -1
    s_mov_b32 s{sSpin}, 0
    L_q0c:
    ds_read_b32 v25, v24
    s_add_u32 s{sSpin}, s{sSpin}, 1
    s_waitcnt lgkmcnt(0)
    v_readfirstlane_b32 s48, v25
    s_cmp_ge_u32 s{sSpin}, {SPIN_MAX}
    s_cbranch_scc1 L_q0cd
    s_cmp_lt_u32 s48, 4
    s_cbranch_scc0 L_q0cd
    s_sleep 1
    s_branch L_q0c
    L_q0cd:
    """)
    if "qfine" in OPT: stamp(a, 10)
    ZR = 160
    for P in range(4):
        a(f"ds_read_b128 v[{ZR+4*P}:{ZR+4*P+3}], v15 offset:{P*1024}")
    a(f"ds_read_b64 v[{ZR+16}:{ZR+17}], v15 offset:4096")
    a("s_waitcnt lgkmcnt(0)")
    def proj(zr, qoff, lbl):
        a("s_setprio 3")
        for P in range(4):
            for d in range(3):
                base = WO + 18 * d; acc = 20 + 4 * d
                c = "0" if P == 0 else f"v[{acc}:{acc+3}]"
                a(f"v_mfma_f32_16x16x32_bf16 v[{acc}:{acc+3}], v[{base+4*P}:{base+4*P+3}], v[{zr+4*P}:{zr+4*P+3}], {c}")
        a("s_nop 7")
        for d in range(3):
            base = WO + 18 * d; acc = 20 + 4 * d
            a(f"v_mfma_f32_16x16x16_bf16 v[{acc}:{acc+3}], v[{base+16}:{base+17}], v[{zr+16}:{zr+17}], v[{acc}:{acc+3}]")
        a("s_setprio 0\ns_nop 7")
        for d in range(3):
            acc = 20 + 4 * d
            if d == 2: a(f"s_cmp_lg_u32 s{sH}, 0\ns_cbranch_scc1 L_pj_{lbl}")
            a(f"v_cvt_pk_bf16_f32 v{32+2*d}, v{acc}, v{acc+1}\nv_cvt_pk_bf16_f32 v{33+2*d}, v{acc+2}, v{acc+3}")
            a(f"buffer_store_dwordx2 v[{32+2*d}:{33+2*d}], v41, s[{sO}:{sO+3}], 0 offen offset:{qoff + 128*d}")
        a(f"L_pj_{lbl}:")
    if "qfine" in OPT: stamp(a, 11)
    proj(ZR, 0, "q0")
    stamp(a, 4)
    a("s_barrier")
    z_unit_setup(a, 1)
    a(f"s_add_u32 s60, s{sH}, 4\ns_cmp_eq_u32 s{sH}, 0\ns_cselect_b32 s61, 8, s60")
    z_units(a, [60, 61], "h", 0)
    a("s_waitcnt lgkmcnt(0)\ns_barrier")
    stamp(a, 5)
    a(f"v_lshlrev_b32 v15, 4, v0\nv_add_u32 v15, {LDS_Z}, v15")
    for P in range(4):
        a(f"ds_read_b128 v[{ZR+4*P}:{ZR+4*P+3}], v15 offset:{P*1024}")
    a(f"ds_read_b64 v[{ZR+16}:{ZR+17}], v15 offset:4096")
    a("s_waitcnt lgkmcnt(0)")
    proj(ZR, 576, "q1")
    stamp(a, 6)
    a("s_waitcnt vmcnt(0)")
    if "dur" in OPT:
        a(f"""
        s_memrealtime s[100:101]
        s_waitcnt lgkmcnt(0)
        s_cmp_lg_u32 s{sH}, 0
        s_cbranch_scc1 L_nodur
        s_mov_b32 s48, -1
        s_cmp_eq_u32 s2, 0
        s_cselect_b32 s48, 8, s48
        s_cmp_eq_u32 s2, 100
        s_cselect_b32 s48, 16, s48
        s_cmp_eq_u32 s2, 251
        s_cselect_b32 s48, 24, s48
        v_mov_b32 v4, s98
        v_mov_b32 v5, s100
        v_mov_b32 v6, s48
        s_mov_b64 exec, 1
        buffer_store_dwordx2 v[4:5], v6, s[{sD}:{sD+3}], 0 offen
        s_waitcnt vmcnt(0)
        s_mov_b64 exec, -1
        L_nodur:
        """)
    stamp(a, 7)
    stamp(a, 8)
    HF_OFF[0] = False
    stamp_flush(a)
    a("s_endpgm")
def gf_flag_addr(a):
    a(f"""
    v_min_u32 v63, 27, v0
    s_mul_i32 s48, s{sNG}, 28
    v_add_u32 v63, s48, v63
    v_lshlrev_b32 v63, 7, v63
    v_add_u32 v63, {FL_OFF}, v63
    """)
sys.stdout.write(gen())
```

```python
import sys
from asmlib import *
OPT = set(sys.argv[1].split(",")) if len(sys.argv) > 1 else set()
STAMP = "stamp" in OPT
NAME = "standalone__autoregressive_conv_wavenet__speech_kernel"
XROWS = 352
LDS_W = XROWS * 288
WSLOT = 16384
LDS_S = LDS_W + 3 * WSLOT
SSLOT = 176 * 32
LDS_TOTAL = 163840
LDS_Y0 = LDS_W
LDS_Y1 = LDS_W + 36864
LDS_Z = LDS_W + 57344
LDS_SP = LDS_S + 2 * SSLOT
LDS_CNT = LDS_Y1 + 4096
GF_PROD = 9 * 72 * 2048
GF_SIZE = 2 * GF_PROD
E_OFF = 0x400000
E_SIZE = 28 * 9 * 2 * 18 * 512
FL_OFF = 0x900000
FL_SIZE = 256 * 128
W_SIZE = 31 * 144 * 288 * 2
XB_SIZE = 4000 * 288
STAMP_OFF = 0x1000000
SPIN_MAX = 200000
NOFF = 128 if 'dur' in OPT else 0
sX, sW, sG, sE, sO, sWo, sD, sF = 16, 20, 24, 28, 32, 36, 84, 88
sNG, sMT, sMTL, sB, sC0, sWV = 42, 43, 44, 45, 46, 47
sIt = 63
sT = 68
sNonce = 80
sSpin = 81
sCP = 82
ST0 = 92
def srd(a, d, lo, hi, size):
    a(f"s_mov_b32 s{d}, s{lo}\ns_and_b32 s{d+1}, s{hi}, 0xffff\ns_mov_b32 s{d+2}, {size}\ns_mov_b32 s{d+3}, 0x20000")
HF_OFF = [False]
def stamp(a, idx):
    if not STAMP or HF_OFF[0]: return
    import inspect
    if "xfine" in OPT and idx != 0 and 'xfine' not in inspect.stack()[1].code_context[0]: return
    a(f"s_memtime s[{ST0}:{ST0+1}]\ns_memrealtime s[{ST0+2}:{ST0+3}]\ns_waitcnt lgkmcnt(0)")
    a(f"v_writelane_b32 v253, s{ST0}, {2*idx}\nv_writelane_b32 v253, s{ST0+2}, {2*idx+1}")
def stamp_dyn(a, base, sreg):
    if not STAMP or HF_OFF[0] or "lite" in OPT: return
    a(f"s_memtime s[{ST0}:{ST0+1}]\ns_memrealtime s[{ST0+2}:{ST0+3}]\ns_waitcnt lgkmcnt(0)")
    a(f"s_lshl_b32 s96, s{sreg}, 1\ns_add_u32 m0, s96, {2*base}\ns_nop 3")
    a(f"v_writelane_b32 v253, s{ST0}, m0\ns_add_u32 m0, m0, 1\ns_nop 3\nv_writelane_b32 v253, s{ST0+2}, m0")
def stamp_dyn2(a, base, sreg, k):
    if not STAMP or HF_OFF[0]: return
    a(f"s_memtime s[{ST0}:{ST0+1}]\ns_memrealtime s[{ST0+2}:{ST0+3}]\ns_waitcnt lgkmcnt(0)")
    a(f"s_lshl_b32 s96, s{sreg}, 2\ns_add_u32 m0, s96, {2*(base+k)}\ns_nop 3")
    a(f"v_writelane_b32 v253, s{ST0}, m0\ns_add_u32 m0, m0, 1\ns_nop 3\nv_writelane_b32 v253, s{ST0+2}, m0")
def stamp_flush(a):
    if not STAMP: return
    a(f"""
    s_mov_b32 s{ST0}, s14
    s_and_b32 s{ST0+1}, s15, 0xffff
    s_mov_b32 s{ST0+2}, 0x2000000
    s_mov_b32 s{ST0+3}, 0x20000
    s_lshl_b32 s48, s2, 3
    s_add_u32 s48, s48, s{sWV}
    s_lshl_b32 s48, s48, 7
    s_add_u32 s48, s48, {STAMP_OFF}
    v_lshlrev_b32 v252, 2, v0
    v_add_u32 v252, s48, v252
    s_mov_b64 exec, 0xffffffff
    buffer_store_dword v253, v252, s[{ST0}:{ST0+3}], 0 offen
    s_waitcnt vmcnt(0)
    s_mov_b64 exec, -1
    """)
def bf16_op(a, op, dst, xa, xb, t):
    a(f"v_lshlrev_b32 v{t}, 16, v{xa}")
    a(f"v_lshlrev_b32 v{t+1}, 16, v{xb}")
    a(f"v_and_b32 v{t+2}, 0xffff0000, v{xa}")
    a(f"v_and_b32 v{t+3}, 0xffff0000, v{xb}")
    a(f"{op} v{t}, v{t}, v{t+1}")
    a(f"{op} v{t+2}, v{t+2}, v{t+3}")
    a(f"v_cvt_pk_bf16_f32 v{dst}, v{t}, v{t+2}")
def next_mod(a, s, n):
    a(f"s_add_u32 s{s}, s{s}, 1\ns_cmp_eq_u32 s{s}, {n}\ns_cselect_b32 s{s}, 0, s{s}")
def tr_lane(a, vd, vt, vt2):
    a(f"""
    v_lshrrev_b32 v{vd}, 5, v0
    v_lshlrev_b32 v{vd}, 10, v{vd}
    v_bfe_u32 v{vt}, v0, 4, 1
    v_mul_u32_u24 v{vt}, 544, v{vt}
    v_add_u32 v{vd}, v{vd}, v{vt}
    v_bfe_u32 v{vt}, v0, 2, 2
    v_lshlrev_b32 v{vt}, 6, v{vt}
    v_add_u32 v{vd}, v{vd}, v{vt}
    v_and_b32 v{vt}, 3, v0
    v_lshlrev_b32 v{vt}, 3, v{vt}
    v_add_u32 v{vd}, v{vd}, v{vt}
    """)
def activation(a, regs, sA, sS1, vS0, dst):
    for r in regs: a(f"v_mul_f32 v{r}, s{sA}, v{r}")
    for r in regs: a(f"v_exp_f32 v{r}, v{r}")
    for r in regs: a(f"v_add_f32 v{r}, 1.0, v{r}")
    for r in regs: a(f"v_rcp_f32 v{r}, v{r}")
    a("s_nop 0")
    for r in regs: a(f"v_fma_f32 v{r}, v{r}, s{sS1}, v{vS0}")
    for k in range(len(regs) // 2):
        a(f"v_cvt_pk_bf16_f32 v{dst+k}, v{regs[2*k]}, v{regs[2*k+1]}")
    for k in range(len(regs) // 2):
        a(f"v_min_u32 v{dst+k}, 0xfffffffe, v{dst+k}")
def activation_pk(a, pairs, sA, sS1, sOne, vS0, dst):
    for r in pairs: a(f"v_pk_mul_f32 v[{r}:{r+1}], v[{r}:{r+1}], s[{sA}:{sA+1}]")
    for r in pairs: a(f"v_exp_f32 v{r}, v{r}\nv_exp_f32 v{r+1}, v{r+1}")
    for r in pairs: a(f"v_pk_add_f32 v[{r}:{r+1}], v[{r}:{r+1}], s[{sOne}:{sOne+1}]")
    for r in pairs: a(f"v_rcp_f32 v{r}, v{r}\nv_rcp_f32 v{r+1}, v{r+1}")
    for r in pairs: a(f"v_pk_fma_f32 v[{r}:{r+1}], v[{r}:{r+1}], s[{sS1}:{sS1+1}], v[{vS0}:{vS0+1}]")
    for k, r in enumerate(pairs): a(f"v_cvt_pk_bf16_f32 v{dst+k}, v{r}, v{r+1}")
    for k in range(len(pairs)): a(f"v_min_u32 v{dst+k}, 0xfffffffe, v{dst+k}")

def act_consts(a, nh_s, sA, sS1, vS0):
    a(f"""
    s_lshl_b32 s48, s{sNG}, 1
    s_add_u32 s48, s48, {nh_s}
    s_cmp_lt_u32 s48, 9
    s_mov_b32 s{sA}, 0xbfb8aa3b
    s_cselect_b32 s{sA}, 0xc038aa3b, s{sA}
    s_cselect_b32 s{sS1}, 2.0, 1.0
    s_cselect_b32 s49, -1.0, 0
    v_mov_b32 v{vS0}, s49
    """)
def z_mul(a, dst, f, g, t):
    bf16_op(a, "v_mul_f32", dst, f, g, t)
def gen():
    a = Asm()
    a(f"; @launch grid=(252,1,1) block=(512,1,1) lds={LDS_TOTAL}")
    a('.amdgcn_target "amdgcn-amd-amdhsa--gfx950"')
    a(".text")
    a(f".globl {NAME}")
    kernel_header(a, NAME)
    a("s_cmp_ge_u32 s2, 252\ns_cbranch_scc1 L_end")
    a("""
    s_load_dwordx4 s[4:7], s[0:1], 0
    s_load_dwordx4 s[8:11], s[0:1], 16
    s_load_dwordx4 s[12:15], s[0:1], 32
    s_getpc_b64 s[40:41]
    L_pc:
    s_lshr_b32 s48, s2, 3
    s_mul_i32 s48, s48, 6
    v_add_u32 v1, s48, v0
    v_lshlrev_b32 v1, 7, v1
    v_min_u32 v1, L_code_end-L_pc-4, v1
    s_mov_b64 exec, 0x3f
    global_load_dword v254, v1, s[40:41]
    s_mov_b64 exec, -1
    """)
    if STAMP: a("v_mov_b32 v253, 0")
    if "dur" in OPT: a("s_memrealtime s[98:99]")
    stamp(a, 0)
    a(f"""
    v_lshrrev_b32 v1, 6, v0
    v_and_b32 v0, 63, v0
    v_readfirstlane_b32 s{sWV}, v1
    s_and_b32 s48, s2, 7
    s_lshr_b32 s49, s2, 3
    s_and_b32 s50, s48, 3
    s_lshr_b32 s48, s48, 2
    s_lshl_b32 s48, s48, 5
    s_add_u32 s48, s48, s49
    s_mul_i32 s51, s48, 7282
    s_lshr_b32 s51, s51, 16
    s_mul_i32 s49, s51, 9
    s_sub_u32 s{sNG}, s48, s49
    s_mul_i32 s{sMT}, s50, 7
    s_add_u32 s{sMT}, s{sMT}, s51
    s_lshr_b32 s{sB}, s50, 1
    s_and_b32 s50, s50, 1
    s_mul_i32 s50, s50, 7
    s_add_u32 s{sMTL}, s50, s51
    s_mul_i32 s52, s{sMT}, 7282
    s_lshr_b32 s52, s52, 16
    s_mul_i32 s49, s52, 9
    s_sub_u32 s{sCP}, s{sMT}, s49
    s_mov_b32 s{sC0}, 0
    """)
    a(f"""
    s_cmp_eq_u32 s{sCP}, 0
    s_cselect_b32 s55, 2, 3
    s_mul_i32 s53, s52, s55
    s_sub_u32 s54, 8, s53
    s_min_u32 s54, s54, s55
    """)
    a(f"""
    v_lshrrev_b32 v3, 2, v0
    v_mul_u32_u24 v3, 576, v3
    v_lshrrev_b32 v4, 5, v0
    v_lshlrev_b32 v4, 1, v4
    v_xor_b32 v4, v4, v0
    v_and_b32 v4, 3, v4
    v_lshlrev_b32 v4, 4, v4
    s_lshl_b32 s48, s{sNG}, 6
    v_add3_u32 v3, v3, v4, s48
    """)
    a("""
    v_lshrrev_b32 v12, 2, v0
    v_and_b32 v12, 4, v12
    v_xor_b32 v12, v12, v0
    v_lshlrev_b32 v12, 4, v12
    """)
    a("s_waitcnt lgkmcnt(0)")
    if "pfine" in OPT or "xfine" in OPT: stamp(a, 1)
    a(f"s_mul_i32 s48, s{sB}, {XB_SIZE}\ns_add_u32 s4, s4, s48\ns_addc_u32 s5, s5, 0")
    srd(a, sX, 4, 5, XB_SIZE)
    srd(a, sW, 6, 7, W_SIZE)
    srd(a, sD, 12, 13, 256)
    a(f"""
    s_lshl_b32 s48, s2, 3
    s_add_u32 s48, s48, s{sWV}
    s_cmp_lg_u32 s48, 4
    s_cbranch_scc1 L_nononce
    s_memrealtime s[56:57]
    s_waitcnt lgkmcnt(0)
    s_or_b32 s56, s56, 1
    v_mov_b32 v4, s56
    v_mov_b32 v5, {NOFF}
    s_mov_b64 exec, 1
    buffer_store_dword v4, v5, s[{sD}:{sD+3}], 0 offen sc1
    s_mov_b64 exec, -1
    L_nononce:
    """)
    PL = 176
    def w_share(dst):
        a(f"""
        s_lshr_b32 s48, s2, 3
        s_and_b32 s50, s48, 1
        s_mul_i32 s50, s50, 36
        v_add_u32 v10, s50, v0
        v_lshlrev_b32 v10, 7, v10
        s_lshr_b32 s48, s48, 1
        s_mul_i32 s48, s48, 165888
        s_mul_i32 s50, s{sWV}, 9216
        s_add_u32 s48, s48, s50
        s_mov_b32 exec_hi, 0xf
        buffer_load_dword v{dst}, v10, s[{sW}:{sW+3}], s48 offen
        s_mov_b32 exec_hi, -1
        """)
    def x_loop(lbl, end_s):
        a(f"""
        {lbl}:
        s_cmp_ge_u32 s50, 99
        s_cselect_b32 s51, 99, 0
        s_sub_u32 s50, s50, s51
        s_lshl_b32 s51, s50, 10
        s_mov_b32 m0, s51
        s_add_i32 s51, s51, s49
        s_cmp_lt_i32 s51, 0
        s_cselect_b32 s58, 0x7fff0000, 0
        v_or_b32 v11, s58, v12
        s_max_i32 s51, s51, 0
        s_add_u32 s50, s50, 4
        s_add_u32 s59, s59, 4
        buffer_load_dwordx4 v11, s[{sX}:{sX+3}], s51 offen lds
        s_cmp_lt_u32 s59, {end_s}
        s_cbranch_scc1 {lbl}
        """)
    a(f"""
    s_mul_i32 s49, s{sMTL}, {288*288}
    s_sub_i32 s49, s49, {64*288}
    s_cmp_ge_u32 s{sWV}, 4
    s_cbranch_scc1 L_hfirst
    s_cmp_ge_u32 s{sWV}, 2
    s_cbranch_scc1 L_nopf0
    """)
    w_share(251)
    a(f"""
    L_nopf0:
    s_mov_b32 s59, s{sWV}
    s_mul_i32 s60, s{sNG}, 11
    s_add_u32 s60, s60, s59
    s_mov_b32 s50, s60
    """)
    x_loop("L_xl0", 12)
    if "xfine" in OPT: stamp(a, 2)
    a(f"s_cmp_lg_u32 s{sWV}, 2\ns_cbranch_scc1 L_nopf1\ns_mov_b32 s62, s50")
    w_share(251)
    a("s_mov_b32 s50, s62\nL_nopf1:")
    x_loop("L_xl1", 99)
    if "xfine" in OPT: stamp(a, 3)
    a("s_branch L_xdone\nL_hfirst:")
    a(f"""
    s_sub_u32 s61, s{sWV}, 4
    s_lshl_b32 s56, s54, 2
    s_add_u32 s56, s56, 1
    s_lshl_b32 s57, s56, 1
    s_mul_i32 s58, s{sNG}, s56
    s_lshl_b32 s58, s58, 3
    s_mul_i32 s59, s61, s57
    s_add_u32 s58, s58, s59
    v_add_u32 v10, s58, v0
    v_mul_u32_u24 v11, 911, v10
    v_lshrrev_b32 v11, 16, v11
    v_mul_u32_u24 v13, 72, v11
    v_sub_u32 v10, v10, v13
    v_lshlrev_b32 v10, 7, v10
    s_lshl_b32 s58, s53, 2
    s_sub_u32 s58, s58, 1
    v_add_u32 v11, s58, v11
    s_mov_b32 s58, 82944
    v_mul_lo_u32 v11, v11, s58
    v_add_u32 v10, v10, v11
    s_mul_i32 s58, s{sCP}, 9216
    v_add_u32 v10, s58, v10
    v_cmp_gt_u32 vcc, s57, v0
    s_nop 1
    s_mov_b64 exec, vcc
    buffer_load_dword v251, v10, s[{sW}:{sW+3}], 0 offen
    s_mov_b64 exec, -1
    """)
    if "xfine" in OPT: stamp(a, 2)
    a(f"""
    s_add_u32 s56, s53, s61
    s_lshl_b32 s56, s56, 1
    s_mul_i32 s57, s56, 165888
    s_mul_i32 s58, s{sCP}, 9216
    s_add_u32 s57, s57, s58
    s_sub_u32 s58, s57, 82944
    s_cmp_eq_u32 s56, 0
    s_cselect_b32 s58, 0, s58
    s_cselect_b32 s59, 0x7fff0000, 0
    s_cmp_ge_u32 s61, s54
    s_cselect_b32 s60, 0x7fff0000, 0
    s_or_b32 s59, s59, s60
    v_or_b32 v24, s59, v3
    v_or_b32 v25, s60, v3
    s_cmp_eq_u32 s61, 3
    s_cbranch_scc1 L_h3first
    s_waitcnt vmcnt(0)
    buffer_load_dwordx4 v[{PL}:{PL+3}], v25, s[{sW}:{sW+3}], s57 offen
    buffer_load_dwordx4 v[{PL+4}:{PL+7}], v24, s[{sW}:{sW+3}], s58 offen
    s_add_u32 s58, s57, 82944
    buffer_load_dwordx4 v[{PL+8}:{PL+11}], v25, s[{sW}:{sW+3}], s58 offen
    s_add_u32 s58, s57, 165888
    buffer_load_dwordx4 v[{PL+12}:{PL+15}], v25, s[{sW}:{sW+3}], s58 offen
    s_add_u32 s58, s57, 248832
    buffer_load_dwordx4 v[{PL+16}:{PL+19}], v25, s[{sW}:{sW+3}], s58 offen
    s_branch L_xdone
    L_h3first:
    """)
    a("L_xdone:")
    if "pfine" in OPT: stamp(a, 2)
    srd(a, sWo, 8, 9, 144 * 288)
    srd(a, sG, 14, 15, GF_SIZE)
    a(f"s_add_u32 s48, s14, {E_OFF}\ns_addc_u32 s49, s15, 0")
    srd(a, sE, 48, 49, E_SIZE)
    a(f"s_cmp_ge_u32 s{sWV}, 4\ns_cbranch_scc1 L_helper")
    gen_mfma(a)
    a("L_helper:")
    gen_helper(a)
    a("L_end:\ns_endpgm\nL_code_end:")
    a('.section .rodata,"a"')
    a(".p2align 6")
    kernel_desc(a, NAME, 256)
    return a.text()
M_, Y_ = 16, 52
XF = 88
GR = 136
WA, WB = 184, GR + 32
vS0, vS1r, vW, vG, vX, vXn, vXb, vWb, vPt = 2, 3, 4, 5, 6, 7, 8, 9, 13
vW0 = 14
sSlotW = 61
TW, TR, TE, TF, TS = 200, 201, 202, 206, 204
sGo0, sGo1, sDx = 66, 67, 76
class Sched:
    def __init__(self, a):
        self.a = a; self.lds = []; self.vm = []
    def lds_issue(self, tag): self.lds.append(tag)
    def vm_issue(self, tag): self.vm.append(tag)
    def need(self, ltags=(), vtags=()):
        parts = []
        li = max((i for i, t in enumerate(self.lds) if t in ltags), default=-1)
        if li >= 0:
            n = min(len(self.lds) - 1 - li, 15)
            parts.append(f"lgkmcnt({n})")
            self.lds = self.lds[len(self.lds) - n:] if n > 0 else []
        vi = max((i for i, t in enumerate(self.vm) if t in vtags), default=-1)
        if vi >= 0:
            n = len(self.vm) - 1 - vi
            parts.append(f"vmcnt({n})")
            self.vm = self.vm[len(self.vm) - n:] if n > 0 else []
        if parts:
            self.a("s_waitcnt " + " ".join(parts))
def chunk_order():
    return [(sp, i - 3 + sp, i) for i in range(12) for sp in range(4) if 0 <= i - 3 + sp <= 8]
LAST_USE = {}
for n_, (s_, T_, i_) in enumerate(chunk_order()): LAST_USE[i_] = n_

def emit_chunk(a, sc, acc, wreg, wtags, fillers, pre=None, lookahead=5):
    order = chunk_order()
    for n, (s, T, i) in enumerate(order):
        if pre is not None:
            for f in pre[n]: f()
        pend_l = set(sc.lds); pend_v = set(sc.vm)
        now_l = ({f"x{i}"} | set(wtags[s][0])) & pend_l
        now_v = set(wtags[s][1]) & pend_v
        if now_l or now_v:
            lt = set()
            for (s2, T2, i2) in order[n:n + lookahead]:
                lt |= {f"x{i2}"} | set(wtags[s2][0])
            lt &= pend_l
            sc.need(lt if now_l else (), now_v)
        d = acc + 4 * T
        a(f"v_mfma_f32_16x16x32_bf16 v[{d}:{d+3}], v[{wreg+4*s}:{wreg+4*s+3}], v[{XF+4*i}:{XF+4*i+3}], v[{d}:{d+3}]")
        for f in fillers[n]: f()

def place(items, start, step=1, ngaps=36):
    g = [[] for _ in range(ngaps)]
    for k, it in enumerate(items):
        g[start + k * step].append(it)
    return g
def merge(*gs):
    return [sum((g[n] for g in gs), []) for n in range(len(gs[0]))]
def gen_mfma(a):
    ins = lambda t: (lambda: a(t))
    a(f"v_mov_b32 v{vW0}, v3")
    for i in range(1, 4):
        a(f"v_add_u32 v{16+i}, {i*(165888-1024)}, v3")
    a(f"""
    s_mul_i32 s48, s{sWV}, {4*165888}
    s_lshl_b32 s49, s{sWV}, 12
    s_add_u32 m0, s49, {LDS_W}
    s_nop 0
    buffer_load_dwordx4 v3, s[{sW}:{sW+3}], s48 offen lds
    """)
    for i in range(1, 4):
        a(f"buffer_load_dwordx4 v{16+i}, s[{sW}:{sW+3}], s48 offen offset:{i*1024} lds")
    if "pfine" in OPT: stamp(a, 3)
    a("s_setprio 1")
    a(f"s_lshr_b32 s{sT}, s{sWV}, 1\ns_and_b32 s{sT+1}, s{sWV}, 1")
    a(f"""
    v_bfe_u32 v10, v0, 1, 2
    v_bfe_u32 v11, v0, 3, 1
    v_mul_u32_u24 v11, 36, v11
    v_add_u32 v10, v10, v11
    v_lshrrev_b32 v11, 5, v0
    v_sub_u32 v10, v10, v11
    s_lshl_b32 s{sT+2}, s{sT}, 1
    s_sub_u32 s{sT+2}, 4, s{sT+2}
    v_add_u32 v10, s{sT+2}, v10
    v_and_b32 v11, 1, v0
    v_bfe_u32 v12, v0, 4, 1
    v_lshlrev_b32 v12, 4, v12
    v_lshl_add_u32 v15, v10, 2, v11
    v_mul_u32_u24 v{vXb}, 288, v15
    v_add_u32 v{vXb}, v{vXb}, v12
    v_lshl_add_u32 v15, v10, 1, v11
    v_bfe_u32 v10, v15, 2, 1
    v_lshlrev_b32 v10, 4, v10
    v_xor_b32 v10, v10, v12
    v_lshl_add_u32 v{vS0}, v15, 5, v10
    v_add_u32 v{vS0}, {LDS_S}, v{vS0}
    v_add_u32 v{vS1r}, {SSLOT}, v{vS0}
    """)
    tr_lane(a, vWb, 10, 11)
    a(f"""
    s_lshl_b32 s{sT+2}, s{sT+1}, 5
    v_xor_b32 v{vWb}, s{sT+2}, v{vWb}
    s_lshl_b32 s{sT+2}, s{sT}, 11
    s_add_u32 s{sT+2}, s{sT+2}, {LDS_W}
    v_add_u32 v{vWb}, s{sT+2}, v{vWb}
    s_mul_i32 s{sT+2}, s{sNG}, 147456
    s_lshl_b32 s{sT+3}, s{sT}, 13
    s_add_u32 s{sT+2}, s{sT+2}, s{sT+3}
    s_lshl_b32 s{sT+3}, s{sT+1}, 10
    s_add_u32 s{sT+2}, s{sT+2}, s{sT+3}
    v_lshlrev_b32 v{vG}, 4, v0
    v_add_u32 v{vG}, s{sT+2}, v{vG}
    """)
    a(f"""
    s_mov_b32 s{sT+5}, s{sT}
    s_mul_i32 s48, s{sWV}, 5120
    s_add_u32 s48, s48, {LDS_Y1}
    v_lshlrev_b32 v10, 4, v0
    v_add_u32 v{TW}, s48, v10
    s_xor_b32 s49, s{sWV}, 2
    s_mul_i32 s48, s49, 5120
    s_add_u32 s48, s48, {LDS_Y1}
    v_add_u32 v{TR}, s48, v10
    s_lshl_b32 s48, s{sWV}, 2
    s_add_u32 s48, s48, {LDS_CNT + 16}
    v_mov_b32 v{TF}, s48
    s_lshl_b32 s48, s49, 2
    s_add_u32 s48, s48, {LDS_CNT + 16}
    v_mov_b32 v{TF+1}, s48
    """)
    act_consts(a, f"s{sT+1}", 84, 86, TS)
    a(f"""
    s_mov_b32 s85, s84
    s_mov_b32 s87, s86
    s_mov_b32 s88, 1.0
    s_mov_b32 s89, 1.0
    v_mov_b32 v{TS+1}, v{TS}
    s_mul_i32 s49, s{sMT}, {9*2*18*512}
    s_lshl_b32 s48, s48, 9
    s_add_u32 s48, s48, s49
    s_add_u32 s48, s48, {18*512}
    s_mul_i32 s49, s{sT}, {2*18*512}
    s_add_u32 s48, s48, s49
    v_lshlrev_b32 v{TE}, 3, v0
    v_add_u32 v{TE}, s48, v{TE}
    """)
    for r in range(M_, Y_ + 36):
        a(f"v_mov_b32 v{r}, 0")
    a(f"""
    s_mov_b32 s{sSlotW}, 0
    s_mov_b32 s{sIt}, 0
    v_mov_b32 v{vW}, v{vWb}
    """)
    PF = "pfine" in OPT
    stamp(a, 4 if PF else 1)
    a("s_waitcnt vmcnt(4)\ns_barrier")
    stamp(a, 5 if PF else 2)
    for i in range(1, 4):
        a(f"v_add_u32 v{123+i}, {i*(165888-1024)}, v{vW0}")
    a(f"""
    s_mul_i32 s48, s{sWV}, {4*165888}
    s_add_u32 s48, s48, 9216
    s_lshl_b32 s49, s{sWV}, 12
    s_add_u32 m0, s49, {LDS_W + WSLOT}
    s_nop 0
    buffer_load_dwordx4 v{vW0}, s[{sW}:{sW+3}], s48 offen lds
    """)
    for i in range(1, 4):
        a(f"buffer_load_dwordx4 v{123+i}, s[{sW}:{sW+3}], s48 offen offset:{i*1024} lds")
    a(f"""
    s_add_u32 s48, s48, 9216
    s_add_u32 m0, s49, {LDS_W + 2*WSLOT}
    s_nop 0
    buffer_load_dwordx4 v{vW0}, s[{sW}:{sW+3}], s48 offen lds
    """)
    for i in range(1, 4):
        a(f"buffer_load_dwordx4 v{123+i}, s[{sW}:{sW+3}], s48 offen offset:{i*1024} lds")
    a(f"""
    s_mul_i32 s48, s{sWV}, 54
    v_add_u32 v124, s48, v0
    v_mul_u32_u24 v125, 1821, v124
    v_lshrrev_b32 v125, 16, v125
    v_mul_u32_u24 v126, 36, v125
    v_sub_u32 v124, v124, v126
    s_lshr_b32 s48, s2, 3
    s_and_b32 s49, s48, 1
    s_mul_i32 s49, s49, 36
    v_add_u32 v124, s49, v124
    v_lshlrev_b32 v124, 7, v124
    v_mul_u32_u24 v125, 9216, v125
    v_add_u32 v124, v124, v125
    s_lshr_b32 s48, s48, 1
    s_mul_i32 s48, s48, 165888
    s_add_u32 s48, s48, {3*9216}
    s_mov_b32 exec_hi, 0x3fffff
    buffer_load_dword v251, v124, s[{sW}:{sW+3}], s48 offen
    s_mov_b32 exec_hi, -1
    s_lshr_b32 s48, s2, 3
    s_mul_i32 s48, s48, 12
    s_mul_i32 s49, s{sWV}, 3
    s_add_u32 s48, s48, s49
    v_add_u32 v124, s48, v0
    v_lshlrev_b32 v124, 7, v124
    s_mov_b64 exec, 7
    buffer_load_dword v250, v124, s[{sWo}:{sWo+3}], 0 offen
    s_mov_b64 exec, -1
    """)
    a("s_waitcnt vmcnt(10)\ns_barrier")
    stamp(a, 6 if PF else 3)
    sc = Sched(a)
    def rd_x(i, vaddr, imm):
        def f():
            a(f"ds_read_b128 v[{XF+4*i}:{XF+4*i+3}], v{vaddr} offset:{imm}")
            sc.lds_issue(f"x{i}")
        return f
    def rd_w(wreg, s_, h):
        def f():
            a(f"ds_read_b64_tr_b16 v[{wreg+4*s_+2*h}:{wreg+4*s_+2*h+1}], v{vW} offset:{4096*s_ + 256*h}")
            sc.lds_issue(f"w{wreg}_{s_}")
        return f
    def gload(setidx, s_):
        reg = GR + 16 * setidx + 4 * s_
        so = sGo0 if s_ < 2 else sGo1
        def f():
            a(f"buffer_load_dwordx4 v[{reg}:{reg+3}], v{vG}, s[{sG}:{sG+3}], s{so} offen offset:{(s_ & 1)*2048} sc1")
            sc.vm_issue(f"g{setidx}_{s_}")
        return f
    def at(pairs):
        g = [[] for _ in range(36)]
        for n, f in pairs: g[n].append(f)
        return g
    def swz_items(dst):
        return [ins(f"v_add_u32 v{dst}, s{sDx}, v{vXb}"), ins(f"v_lshrrev_b32 v{vPt}, 2, v{dst}"),
                ins(f"v_and_b32 v{vPt}, 64, v{vPt}"), ins(f"v_xor_b32 v{dst}, v{dst}, v{vPt}")]
    def barrier_drain(vm=False):
        def f():
            sc.need(set(sc.lds), ())
            a(f"s_waitcnt vmcnt({vm})\ns_barrier" if vm else "s_barrier")
        return f
    wtags_a = lambda wreg: [([f"w{wreg}_{s_}"], []) for s_ in range(4)]
    wtags_b = lambda u: [([], [f"g{u}_{s_}"]) for s_ in range(4)]
    BAR = 6
    def reload_gaps_after_bar():
        g, n = {}, BAR + 1
        for i in range(12):
            n = max(n, LAST_USE[i]); g[i] = n; n += 1
            n = min(n, 35)
        return g
    RG_A = reload_gaps_after_bar()
    free_a = [n for n in range(BAR + 1, 34) if n not in RG_A.values()]

    init = [(RG_A[i], rd_x(i, vS0, 256 * i)) for i in range(12)]
    init += list(zip(free_a[:8], [rd_w(WA, s_, h) for s_ in (3, 2, 1, 0) for h in range(2)]))
    for row in at(init):
        for f in row: f()

    def a_chunk(it_par, kind, vm):
        wcur, wnxt = (WA, WB) if it_par == 0 else (WB, WA)
        vsn = vS1r if it_par == 0 else vS0
        items = [(BAR, barrier_drain(vm))]
        if kind != "B":
            items += [(0, ins(f"s_add_u32 s{sSlotW}, s{sSlotW}, {WSLOT}\ns_cmp_eq_u32 s{sSlotW}, {3*WSLOT}")),
                      (1, ins(f"s_cselect_b32 s{sSlotW}, 0, s{sSlotW}")),
                      (2, ins(f"v_add_u32 v{vW}, s{sSlotW}, v{vWb}"))]
            items += [(RG_A[i], rd_x(i, vsn, 256 * i)) for i in range(12)]
            ws = [rd_w(wnxt, s_, h) for s_ in (3, 2, 1, 0) for h in range(2)]
            items += list(zip(free_a[:8], ws))
        else:
            items += [(0, ins(f"s_mov_b32 s{sDx}, 576"))] + list(zip((1, 2, 3, 4), swz_items(vX)))
            items += [(RG_A[i], rd_x(i, vX, 4608 * i)) for i in range(12)]
            items += [(free_a[0], ins(f"s_mov_b32 s{sDx}, {576 + 32}"))] + list(zip(free_a[1:5], swz_items(vXn)))
            items += [(35, ins(f"v_mov_b32 v{vX}, v{vXn}"))]
        if kind in ("G0", "B"):
            gs = 0 if kind == "G0" else 1
            items += [(3, ins(f"s_mov_b32 s{sGo0}, {gs*16384}\ns_mov_b32 s{sGo1}, {gs*16384 + 4096}"))]
            items += list(zip(free_a[8:12] if kind == "G0" else free_a[5:9], [gload(gs, s_) for s_ in range(4)]))
        emit_chunk(a, sc, M_, wcur, wtags_a(wcur), at(items))

    a("L_A:")
    st = list(sc.lds)
    a_chunk(0, "A", 6)
    if PF: stamp_dyn2(a, 7, sIt, 0)
    a_chunk(1, "A", 2)
    assert sc.lds == st, (sc.lds, st)
    if PF: stamp_dyn2(a, 7, sIt, 1)
    if "aavg" in OPT:
        a(f"s_cmp_eq_u32 s{sIt}, 1\ns_cbranch_scc1 L_aavg_no")
        stamp_dyn(a, 5, sIt)
        a("L_aavg_no:")
    a(f"s_add_u32 s{sIt}, s{sIt}, 1\ns_cmp_lt_u32 s{sIt}, 3\ns_cbranch_scc1 L_A")
    a_chunk(0, "A", False)
    if PF: stamp(a, 13)
    a_chunk(1, "G0", False)
    if PF: stamp(a, 14)
    a_chunk(0, "B", False)
    stamp(a, 15 if PF else 4)
    if PF or "aavg" in OPT: HF_OFF[0] = True

    sTrip = sT + 4
    a(f"s_mov_b32 s{sDx}, {576 + 32}\ns_mov_b32 s{sGo0}, 16384")
    def b_chunk(acc, u, switch=False, extra=(), pre=None):
        items = [(LAST_USE[i], rd_x(i, vX, 4608 * i)) for i in range(12)] if "b_nox" not in OPT else []
        if switch:
            items += [(1, ins(f"s_add_u32 s{sDx}, s{sDx}, 32\ns_add_u32 s{sGo0}, s{sGo0}, 16384\ns_cmp_eq_u32 s{sTrip}, 2")),
                      (3, ins(f"s_cselect_b32 s{sDx}, 0, s{sDx}\ns_cselect_b32 s{sGo0}, {GF_PROD}, s{sGo0}"))]
        else:
            items += [(1, ins(f"s_add_u32 s{sDx}, s{sDx}, 32\ns_add_u32 s{sGo0}, s{sGo0}, 16384"))]
        items += [(4, ins(f"s_add_u32 s{sGo1}, s{sGo0}, 4096"))]
        if "b_nov" not in OPT: items += list(zip((6, 7, 8, 10), swz_items(vXn)))
        if "b_nog" not in OPT: items += list(zip((11, 15, 19, 23), [gload((u + 2) % 3, s_) for s_ in range(4)]))
        items += [(35, ins(f"v_mov_b32 v{vX}, v{vXn}"))]
        items += list(extra)
        emit_chunk(a, sc, acc, GR + 16 * u, wtags_b(u), at(items), pre)
    a(f"s_mov_b32 s{sTrip}, 0")
    a("L_B1:")
    st_l, st_v = list(sc.lds), list(sc.vm)
    for u in range(3):
        b_chunk(Y_, u, switch=(u == 1))
    stamp_dyn(a, 5, sTrip) if "pre" in OPT else None
    a("s_barrier")
    stamp_dyn(a, 5, sTrip) if "pre" not in OPT else None
    a(f"s_add_u32 s{sTrip}, s{sTrip}, 1\ns_cmp_lt_u32 s{sTrip}, 3\ns_cbranch_scc1 L_B1")
    assert "b_nog" in OPT or "b_nox" in OPT or (sc.lds == st_l and sc.vm == st_v)
    if "lite" in OPT: stamp(a, 5)
    a(f"""
    s_mul_i32 s{sT+1}, s{sWV}, 9216
    s_add_u32 s{sT+1}, s{sT+1}, {LDS_Y0}
    v_lshlrev_b32 v10, 4, v0
    v_add_u32 v10, s{sT+1}, v10
    """)
    first = {}
    for n, (s_, T, i) in enumerate(chunk_order()): first.setdefault(T, n)
    pre = [[] for _ in range(36)]
    prev = 0
    for T in range(9):
        slots = list(range(prev, first[T] + 1)) if T > 0 else [0]
        adds = [ins(f"v_add_f32 v{Y_+4*T+r}, v{M_+4*T+r}, v{Y_+4*T+r}") for r in range(4)]
        slots = [0] if T == 0 else list(range(prev + 1, first[T] + 1))
        for k, f in enumerate(adds): pre[slots[(k * len(slots)) // 4]].append(f)
        prev = first[T]
    def ywrite(T):
        def f():
            a(f"ds_write_b128 v10, v[{Y_+4*T}:{Y_+4*T+3}] offset:{T*1024}")
            sc.lds_issue(f"yw{T}")
        return f
    wgaps = [3, 7, 11, 15, 19, 23, 27, 31, 33]
    b_chunk(M_, 0, extra=[(wgaps[T], ywrite(T)) for T in range(9)], pre=pre)
    def bar_y0():
        sc.need({f"yw{T}" for T in range(9)}, ())
        a("s_barrier")
    b_chunk(M_, 1, extra=[(16, bar_y0)])
    b_chunk(M_, 2)
    if "lite" not in OPT: stamp(a, 8)
    a(f"s_mov_b32 s{sTrip}, 1")
    a("L_B2:")
    assert "b_nog" in OPT or "b_nox" in OPT or (sc.lds == st_l and sc.vm == st_v)
    for u in range(3):
        b_chunk(M_, u)
    stamp_dyn(a, 8, sTrip)
    a(f"s_add_u32 s{sTrip}, s{sTrip}, 1\ns_cmp_lt_u32 s{sTrip}, 3\ns_cbranch_scc1 L_B2")

    if "lite" in OPT: stamp(a, 6)
    a("s_setprio 0")
    K = XF
    def tail(keep, send, lbl):
        for i, T in enumerate(send):
            a(f"ds_write_b128 v{TW}, v[{M_+4*T}:{M_+4*T+3}] offset:{i*1024}")
        a(f"""
        v_mov_b32 v10, 1
        s_waitcnt lgkmcnt(0)
        ds_write_b32 v{TF}, v10
        s_mov_b32 s{sSpin}, 0
        L_tp_{lbl}:
        ds_read_b32 v11, v{TF+1}
        s_add_u32 s{sSpin}, s{sSpin}, 1
        s_waitcnt lgkmcnt(0)
        v_readfirstlane_b32 s48, v11
        s_cmp_ge_u32 s{sSpin}, {SPIN_MAX}
        s_cbranch_scc1 L_td_{lbl}
        s_cmp_eq_u32 s48, 0
        s_cbranch_scc1 L_tp_{lbl}
        L_td_{lbl}:
        """)
        for i, T in enumerate(keep):
            a(f"ds_read_b128 v[{K+4*i}:{K+4*i+3}], v{TR} offset:{i*1024}")
        for i, T in enumerate(keep):
            a(f"s_waitcnt lgkmcnt({len(keep)-1-i})")
            for r in (0, 2):
                a(f"v_pk_add_f32 v[{M_+4*T+r}:{M_+4*T+r+1}], v[{M_+4*T+r}:{M_+4*T+r+1}], v[{K+4*i+r}:{K+4*i+r+1}]")
        activation_pk(a, [M_ + 4*T + r for T in keep for r in (0, 2)], 84, 86, 88, TS, Y_)
        for i, T in enumerate(keep):
            a(f"s_mov_b32 s49, {i*2*2*18*512}")
            a(f"buffer_store_dwordx2 v[{Y_+2*i}:{Y_+2*i+1}], v{TE}, s[{sE}:{sE+3}], s49 offen sc1")
    a(f"s_waitcnt lgkmcnt(0)\ns_cmp_eq_u32 s{sT+5}, 0\ns_cbranch_scc0 L_t_k1\ns_nop 5")
    tail([0, 2, 4, 6, 8], [1, 3, 5, 7], "k0")
    a("s_branch L_t_j\nL_t_k1:\ns_nop 5")
    tail([1, 3, 5, 7], [0, 2, 4, 6, 8], "k1")
    a("L_t_j:")
    stamp(a, 7 if "lite" in OPT else 11)
    if "lite" not in OPT: stamp(a, 12)
    HF_OFF[0] = False
    stamp_flush(a)
    a("s_endpgm")
def z_unit_setup(a, q, zbase):
    a(f"""
    s_mul_i32 s48, s{sMT}, {9*2*18*512}
    s_mul_i32 s49, s{sNG}, {2*18*512}
    s_add_u32 s48, s48, s49
    s_add_u32 s48, s48, {q*18*512}
    v_lshlrev_b32 v14, 3, v0
    v_add_u32 v14, s48, v14
    v_lshlrev_b32 v15, 4, v0
    v_add_u32 v15, {zbase}, v15
    """)
def z_units(a, cts, lbl, nap):
    ZL, ZZ, ZT, ZM = 128, 140, 146, 150
    for u, c in enumerate(cts):
        a(f"s_lshl_b32 s{50+2*u}, s{c}, 9\ns_add_u32 s{51+2*u}, s{50+2*u}, 4608")
    a(f"s_mov_b32 s{sSpin}, 0\nL_zp_{lbl}:")
    for u in range(len(cts)):
        a(f"buffer_load_dwordx2 v[{ZL+4*u}:{ZL+4*u+1}], v14, s[{sE}:{sE+3}], s{50+2*u} offen sc1")
        a(f"buffer_load_dwordx2 v[{ZL+4*u+2}:{ZL+4*u+3}], v14, s[{sE}:{sE+3}], s{51+2*u} offen sc1")
    a(f"s_add_u32 s{sSpin}, s{sSpin}, 1\ns_waitcnt vmcnt(0)")
    a(f"v_max_u32 v{ZM}, v{ZL}, v{ZL+1}\nv_max3_u32 v{ZM}, v{ZM}, v{ZL+2}, v{ZL+3}")
    for u in range(1, len(cts)):
        a(f"v_max3_u32 v{ZM}, v{ZM}, v{ZL+4*u}, v{ZL+4*u+1}\nv_max3_u32 v{ZM}, v{ZM}, v{ZL+4*u+2}, v{ZL+4*u+3}")
    a(f"""
    v_cmp_eq_u32 vcc, -1, v{ZM}
    s_cmp_ge_u32 s{sSpin}, {SPIN_MAX}
    s_cbranch_scc1 L_zd_{lbl}
    s_cbranch_vccz L_zd_{lbl}
    """)
    if nap: a(f"s_sleep {nap}")
    a(f"s_branch L_zp_{lbl}\nL_zd_{lbl}:")
    for u, c in enumerate(cts):
        z_mul(a, ZZ + 2*u, ZL + 4*u, ZL + 4*u + 2, ZT)
        z_mul(a, ZZ + 2*u + 1, ZL + 4*u + 1, ZL + 4*u + 3, ZT)
        a(f"""
        s_lshr_b32 s48, s{c}, 1
        s_lshl_b32 s48, s48, 10
        s_and_b32 s49, s{c}, 1
        s_lshl_b32 s49, s49, 3
        s_add_u32 s48, s48, s49
        v_add_u32 v{ZM}, s48, v15
        ds_write_b64 v{ZM}, v[{ZZ+2*u}:{ZZ+2*u+1}]
        """)
WO = 64
def gen_helper(a):
    sH = sT
    sCw, sSl, sCs, sSs = 72, 73, 74, 75
    vSx, vSw, vPat, vLo = 20, 21, 22, 23
    SB, SD, ID, IJ = 28, 40, 52, 56
    a(f"s_sub_u32 s{sH}, s{sWV}, 4")
    if "pfine" in OPT: HF_OFF[0] = True
    for i in range(4):
        a(f"v_add_u32 v{16+i}, {i*(165888-1024)}, v3")
    a(f"s_mul_i32 s{sCw}, s{sH}, {4*165888}\ns_lshl_b32 s{sSl}, s{sH}, 12\ns_add_u32 s{sSl}, s{sSl}, {LDS_W}")
    def wdma(k):
        a(f"s_add_u32 m0, s{sSl}, {(k % 3) * WSLOT}\ns_add_u32 s50, s{sCw}, {k * 9216}")
        for i in range(4):
            if "nodma" not in OPT:
                a(f"buffer_load_dwordx4 v{16+i}, s[{sW}:{sW+3}], s50 offen offset:{i*1024} lds")
    PL = 176
    a(f"""
    v_bfe_u32 v24, v0, 1, 3
    v_lshlrev_b32 v24, 2, v24
    v_and_b32 v25, 1, v0
    v_add_u32 v24, v24, v25
    v_lshrrev_b32 v25, 5, v0
    v_lshl_add_u32 v24, v25, 1, v24
    v_mul_u32_u24 v{vSx}, 288, v24
    v_bfe_u32 v24, v0, 4, 1
    v_lshl_add_u32 v{vSx}, v24, 4, v{vSx}
    s_mul_i32 s48, s{sH}, 9216
    v_add_u32 v{vSx}, s48, v{vSx}
    v_and_b32 v24, 15, v0
    v_lshlrev_b32 v24, 5, v24
    v_bfe_u32 v26, v0, 2, 1
    v_xor_b32 v26, v26, v25
    v_lshl_add_u32 v24, v26, 4, v24
    v_bfe_u32 v26, v0, 4, 1
    v_lshl_add_u32 v24, v26, 3, v24
    s_lshl_b32 s48, s{sH}, 9
    s_add_u32 s48, s48, {LDS_S}
    v_add_u32 v{vSw}, s48, v24
    v_sub_u32 v{vLo}, 1, v25
    v_bfe_u32 v24, v0, 4, 1
    v_mul_u32_u24 v{vPat}, 544, v24
    v_bfe_u32 v24, v0, 2, 2
    v_lshl_add_u32 v{vPat}, v24, 6, v{vPat}
    v_and_b32 v24, 3, v0
    v_lshl_add_u32 v{vPat}, v24, 3, v{vPat}
    """)
    a(f"""
    v_lshrrev_b32 v24, 3, v0
    v_lshrrev_b32 v26, 4, v0
    v_xor_b32 v24, v24, v26
    v_and_b32 v24, 1, v24
    v_and_b32 v26, 1, v0
    v_lshlrev_b32 v26, 4, v26
    v_mov_b32 v27, 0x3f80
    v_lshlrev_b32 v27, v26, v27
    v_lshlrev_b32 v28, 15, v25
    v_lshlrev_b32 v28, v26, v28
    v_or_b32 v28, v28, v27
    v_bfe_u32 v26, v0, 1, 2
    v_lshl_or_b32 v26, v24, 2, v26
    """)
    for r in range(4):
        a(f"v_cmp_eq_u32 vcc, {r}, v26\ns_nop 1\nv_cndmask_b32 v{ID+r}, 0, v27, vcc\nv_cndmask_b32 v{IJ+r}, 0, v28, vcc")
    srd(a, sF, 14, 15, FL_OFF + FL_SIZE)
    SX, SW0 = 196, 205
    for c in range(9):
        a(f"v_add_u32 v24, {32*c}, v{vSx}\nv_lshrrev_b32 v25, 2, v24\nv_and_b32 v25, 64, v25\nv_xor_b32 v{SX+c}, v24, v25")
    a(f"v_mov_b32 v{SW0}, v{vSw}\nv_add_u32 v{SW0+1}, {SSLOT}, v{vSw}")
    def s_reads(c):
        if "nos" in OPT and c > 0: return
        a(f"""
        ds_read_b128 v[{SB}:{SB+3}], v{SX+c}
        ds_read_b128 v[{SB+4}:{SB+7}], v{SX+c} offset:{4*9216}
        v_add_u32 v25, {8*9216}, v{SX+c}
        ds_read_b128 v[{SB+8}:{SB+11}], v25
        """)
    def s_compute(c, between=None):
        if "nos" in OPT and c > 0:
            if between: between()
            return
        vw = SW0 + (c & 1)
        a("s_setprio 3")
        for k in range(3):
            a(f"v_mfma_f32_16x16x32_bf16 v[{SD+4*k}:{SD+4*k+3}], v[{ID}:{ID+3}], v[{SB+4*k}:{SB+4*k+3}], 0")
        if "hiwr" not in OPT: a("s_setprio 0")
        if between: between()
        a("s_nop 7")
        for k in range(3):
            a(f"v_cvt_pk_bf16_f32 v{SD+4*k}, v{SD+4*k}, v{SD+4*k+1}\nv_cvt_pk_bf16_f32 v{SD+4*k+1}, v{SD+4*k+2}, v{SD+4*k+3}")
            if k == 2: a(f"s_cmp_eq_u32 s{sH}, 3\ns_cbranch_scc1 L_s3_{c}")
            a(f"ds_write_b64 v{vw}, v[{SD+4*k}:{SD+4*k+1}] offset:{2048*k}")
        a(f"L_s3_{c}:")
        if "hiwr" in OPT: a("s_setprio 0")
    PB, PD, PK = 64, 128, 160
    def prod_stage():
        a(f"""
        s_mul_i32 s57, s{sH}, 5120
        s_add_u32 s57, s57, {LDS_W + 2*WSLOT}
        v_lshlrev_b32 v24, 4, v0
        v_add_u32 v24, s57, v24
        """)
        for k in range(5):
            a(f"ds_write_b128 v24, v[{PL+4*k}:{PL+4*k+3}] offset:{1024*k}")
        a("s_waitcnt lgkmcnt(0)")
        for c, e, o in ((0, 0, 1024), (2, 0, 2048), (1, 3072, 2048), (3, 3072, 4096)):
            a(f"v_mul_u32_u24 v26, {o}, v{vLo}\nv_sub_u32 v27, 1, v{vLo}\nv_mul_u32_u24 v27, {e}, v27\nv_add3_u32 v26, v26, v27, v{vPat}")
            a(f"v_add_u32 v26, s57, v26\nv_xor_b32 v27, 32, v26")
            for nh in range(2):
                b = PB + 8 * c + 4 * nh
                for h in range(2):
                    a(f"ds_read_b64_tr_b16 v[{b+2*h}:{b+2*h+1}], v{26+nh} offset:{h*256}")
        a("s_waitcnt lgkmcnt(0)")
    def production():
        a("s_setprio 3")
        for f in range(8):
            a(f"v_mfma_f32_16x16x32_bf16 v[{PD+4*f}:{PD+4*f+3}], v[{IJ}:{IJ+3}], v[{PB+4*f}:{PB+4*f+3}], 0")
        a("s_setprio 0")
        a(f"""
        s_add_u32 s57, s53, s{sH}
        s_and_b32 s58, s57, 1
        s_lshl_b32 s58, s58, 2
        s_lshr_b32 s57, s57, 1
        s_add_u32 s57, s57, s58
        s_lshl_b32 s58, s{sCP}, 3
        s_add_u32 s57, s57, s58
        s_lshl_b32 s57, s57, 11
        s_mul_i32 s58, s{sNG}, 147456
        s_add_u32 s57, s57, s58
        s_cmp_ge_u32 s{sH}, s54
        s_cselect_b32 s57, 0x7f000000, s57
        s_add_u32 s58, s57, {GF_PROD}
        v_and_b32 v26, 15, v0
        v_lshlrev_b32 v26, 4, v26
        v_lshrrev_b32 v27, 5, v0
        v_lshl_add_u32 v26, v27, 8, v26
        v_bfe_u32 v27, v0, 4, 1
        v_lshl_add_u32 v26, v27, 3, v26
        """)
        a("v_mov_b32 v61, v26\ns_mov_b32 s62, s57\ns_mov_b32 s63, s58")
        for f in range(8):
            a(f"v_cvt_pk_bf16_f32 v{PK+2*f}, v{PD+4*f}, v{PD+4*f+1}\nv_cvt_pk_bf16_f32 v{PK+2*f+1}, v{PD+4*f+2}, v{PD+4*f+3}")
    def gf_stores():
        for f in range(8):
            c, nh = f >> 1, f & 1
            so = "s62" if c < 2 else "s63"
            a(f"buffer_store_dwordx2 v[{PK+2*f}:{PK+2*f+1}], v61, s[{sG}:{sG+3}], {so} offen offset:{nh*1024 + (c & 1)*512} sc1")
    a(f"s_cmp_eq_u32 s{sH}, 3\ns_cbranch_scc1 L_noprod")
    if "xfine" in OPT: stamp(a, 6)
    a("s_waitcnt vmcnt(0)")
    if "xfine" in OPT: stamp(a, 7)
    prod_stage()
    if "xfine" in OPT: stamp(a, 8)
    production()
    gf_stores()
    if "xfine" in OPT: stamp(a, 9)
    a("L_noprod:")
    if "xfine" in OPT: stamp(a, 10)
    a("s_barrier")
    if "xfine" in OPT: stamp(a, 11)
    a(f"v_mov_b32 v26, {NOFF}\ns_cmp_lg_u32 s{sH}, 3\ns_cbranch_scc1 L_H_n2\nbuffer_load_dword v60, v26, s[{sD}:{sD+3}], 0 offen sc1\nL_H_n2:")
    s_reads(0)
    a("s_waitcnt lgkmcnt(0)")
    s_compute(0)
    s_reads(1)
    a("s_waitcnt lgkmcnt(0)")
    s_compute(1)
    s_reads(2)
    a("s_waitcnt lgkmcnt(3)")
    if "xfine" in OPT: stamp(a, 12)
    if "xfine" in OPT: stamp(a, 13)
    a("s_barrier")
    if "xfine" in OPT: stamp(a, 14); HF_OFF[0] = True
    for r in range(4): a(f"v_mov_b32 v{120+r}, -1")
    def flag_store(kind):
        a(f"""
        s_mul_i32 s49, s{sNG}, 28
        s_add_u32 s49, s49, s{sMT}
        s_lshl_b32 s49, s49, 7
        """)
        a(f"s_add_u32 s49, s49, {FL_OFF + (0 if kind == 'A' else 12)}\ns_cmp_eq_u32 s{sH}, 3")
        a(f"""
        s_cselect_b32 s49, s49, 0x7f000000
        v_mov_b32 v26, s49
        v_mov_b32 v27, s{sNonce}
        s_mov_b64 exec, 1
        buffer_store_dword v27, v26, s[{sF}:{sF+3}], 0 offen sc1
        s_mov_b64 exec, -1
        """)
    def poison():
        a(f"""
        s_mul_i32 s56, s{sMT}, {9*2*18*512}
        s_lshl_b32 s57, s{sNG}, 10
        s_add_u32 s56, s56, s57
        v_lshlrev_b32 v26, 4, v0
        v_add_u32 v26, s56, v26
        """)
        for i in range(5):
            a(f"s_add_u32 s57, s{sH}, {4*i}\ns_min_u32 s57, s57, 17\ns_mul_i32 s57, s57, {18*512}")
            a(f"buffer_store_dwordx4 v[120:123], v26, s[{sE}:{sE+3}], s57 offen sc1")
    waits = {2: 4, 3: 4, 4: 9, 5: 9, 6: 4, 7: 0}
    for it in range(9):
        if it == 5 and "hfine" in OPT: stamp(a, 1)
        if it == 0:
            a(f"""
            s_waitcnt vmcnt(0)
            s_cmp_lg_u32 s{sH}, 3
            s_cbranch_scc1 L_H_n0
            s_mov_b32 s{sSpin}, 0
            L_H_nspin:
            v_readfirstlane_b32 s{sNonce}, v60
            s_add_u32 s{sSpin}, s{sSpin}, 1
            s_cmp_lg_u32 s{sNonce}, 0
            s_cbranch_scc1 L_H_n0
            s_cmp_ge_u32 s{sSpin}, {SPIN_MAX}
            s_cbranch_scc1 L_H_n0
            s_sleep 4
            v_mov_b32 v26, {NOFF}
            buffer_load_dword v60, v26, s[{sD}:{sD+3}], 0 offen sc1
            s_waitcnt vmcnt(0)
            s_branch L_H_nspin
            L_H_n0:
            """)
        if it == 1: flag_store("A")
        if it == 6:
            gf_flag_addr(a)
            a(f"s_cmp_lg_u32 s{sH}, 3\ns_cbranch_scc1 L_H_np")
            a(f"buffer_load_dword v124, v63, s[{sF}:{sF+3}], 0 offen sc1\nL_H_np:")
        if 1 <= it <= 7:
            a("s_waitcnt lgkmcnt(0)")
            s_compute(it + 1, (lambda k=it+2: wdma(k)) if it <= 6 else None)
        if it == 5 and "hfine" in OPT: stamp(a, 7)
        if 1 <= it <= 6: s_reads(it + 2)
        if it == 4: poison()
        if it == 5 and "hfine" in OPT: stamp(a, 3)
        if it in waits: a(f"s_waitcnt vmcnt({waits[it]}) lgkmcnt({3 if it <= 6 else 0})")
        elif it == 1: a("s_waitcnt lgkmcnt(3)")
        if it == 5 and "hfine" in OPT: stamp(a, 4)
        if it == 7:
            a(f"""
            s_cmp_lg_u32 s{sH}, 3
            s_cbranch_scc1 L_H_f4
            s_mov_b32 s{sSpin}, 0
            L_H_fspin:
            v_cmp_ne_u32 vcc, s{sNonce}, v124
            s_add_u32 s{sSpin}, s{sSpin}, 1
            s_cmp_ge_u32 s{sSpin}, {SPIN_MAX}
            s_cbranch_scc1 L_H_f4
            s_cbranch_vccz L_H_f4
            s_sleep 2
            buffer_load_dword v124, v63, s[{sF}:{sF+3}], 0 offen sc1
            s_waitcnt vmcnt(0)
            s_branch L_H_fspin
            L_H_f4:
            """)
        a("s_barrier")
        if it == 5 and "hfine" in OPT: stamp(a, 5)
        if it == 6 and "hfine" in OPT: stamp(a, 6)
    if "hfine" not in OPT: stamp(a, 1)
    if "hfine" in OPT: HF_OFF[0] = True
    flag_store("B")
    a(f"v_lshlrev_b32 v24, 4, v0\ns_mov_b32 s50, s{sH}")
    a(f"""
    L_wo:
    s_lshl_b32 s51, s50, 10
    s_add_u32 m0, s51, {LDS_W}
    s_add_u32 s50, s50, 4
    {"" if "b_nowo" in OPT else f"buffer_load_dwordx4 v24, s[{sWo}:{sWo+3}], s51 offen lds"}
    s_sleep 2
    s_cmp_lt_u32 s50, 41
    s_cbranch_scc1 L_wo
    s_barrier
    """)
    a(f"s_mul_i32 s48, s{sB}, {XB_SIZE}\ns_add_u32 s10, s10, s48\ns_addc_u32 s11, s11, 0")
    srd(a, sO, 10, 11, XB_SIZE)
    a(f"""
    v_mul_u32_u24 v62, 28, v0
    v_add_u32 v62, s{sMT}, v62
    v_lshlrev_b32 v62, 7, v62
    v_add_u32 v62, {FL_OFF + 12}, v62
    s_cmp_lg_u32 s{sH}, 3
    s_cbranch_scc1 L_fbs
    s_mov_b32 s{sSpin}, 0
    s_mov_b64 exec, 0x1ff
    L_fb:
    buffer_load_dword v61, v62, s[{sF}:{sF+3}], 0 offen sc1
    s_add_u32 s{sSpin}, s{sSpin}, 1
    s_waitcnt vmcnt(0)
    v_cmp_ne_u32 vcc, s{sNonce}, v61
    s_cmp_ge_u32 s{sSpin}, {SPIN_MAX}
    s_cbranch_scc1 L_fbd
    s_cbranch_vccz L_fbd
    s_sleep 4
    s_branch L_fb
    L_fbd:
    s_mov_b64 exec, -1
    L_fbs:
    s_waitcnt vmcnt(0)
    s_barrier
    """)
    a(f"""
    v_lshrrev_b32 v24, 2, v0
    v_mul_u32_u24 v24, 288, v24
    v_and_b32 v25, 3, v0
    v_lshlrev_b32 v25, 3, v25
    v_add_u32 v24, v24, v25
    s_lshl_b32 s48, s{sH}, 5
    s_add_u32 s48, s48, {LDS_W}
    v_add_u32 v24, s48, v24
    v_add_u32 v25, {8*32}, v24
    """)
    for d, (va, off) in enumerate(((24, 0), (24, 128), (25, 0))):
        base = WO + 18 * d
        for P in range(4):
            a(f"ds_read_b64_tr_b16 v[{base+4*P}:{base+4*P+1}], v{va} offset:{off + 32*P*288}")
            a(f"ds_read_b64_tr_b16 v[{base+4*P+2}:{base+4*P+3}], v{va} offset:{off + (32*P+16)*288}")
        a(f"ds_read_b64_tr_b16 v[{base+16}:{base+17}], v{va} offset:{off + 128*288}")
        a("s_waitcnt lgkmcnt(0)")
    a(f"""
    v_bfe_u32 v41, v0, 1, 2
    v_lshlrev_b32 v41, 2, v41
    v_and_b32 v42, 1, v0
    v_add_u32 v41, v41, v42
    v_bfe_u32 v42, v0, 3, 1
    v_mul_u32_u24 v42, 144, v42
    v_add_u32 v41, v41, v42
    s_mul_i32 s48, s{sMTL}, 288
    s_lshl_b32 s49, s{sNG}, 4
    s_add_u32 s48, s48, s49
    v_add_u32 v41, s48, v41
    v_mul_u32_u24 v41, 288, v41
    v_lshrrev_b32 v42, 4, v0
    v_lshlrev_b32 v42, 3, v42
    v_add_u32 v41, v41, v42
    s_lshl_b32 s48, s{sH}, 5
    v_add_u32 v41, s48, v41
    """)
    a(f"s_and_b32 s76, s{sH}, 1\ns_lshr_b32 s77, s{sH}, 1")
    act_consts(a, "s76", 78, 79, 43)
    a(f"""
    s_mul_i32 s49, s{sMT}, {9*2*18*512}
    s_lshl_b32 s48, s48, 9
    s_add_u32 s48, s48, s49
    s_mul_i32 s49, s77, {2*18*512}
    s_add_u32 s48, s48, s49
    v_lshlrev_b32 v44, 3, v0
    v_add_u32 v44, s48, v44
    s_mul_i32 s48, s76, 9216
    s_lshl_b32 s49, s77, 10
    s_add_u32 s48, s48, s49
    s_add_u32 s48, s48, {LDS_Y0}
    v_lshlrev_b32 v45, 4, v0
    v_add_u32 v45, s48, v45
    """)
    a(f"v_and_b32 v24, 7, v0\nv_lshlrev_b32 v24, 2, v24\nv_add_u32 v24, {LDS_CNT}, v24\nv_mov_b32 v25, 0\nds_write_b32 v24, v25\ns_waitcnt lgkmcnt(0)")
    a("s_barrier")
    stamp(a, 2)
    a("s_barrier")
    for i in range(5):
        a(f"ds_read_b128 v[{128+4*i}:{131+4*i}], v45 offset:{i*2048}")
        a(f"ds_read_b128 v[{148+4*i}:{151+4*i}], v45 offset:{i*2048 + 2*9216}")
    for i in range(5):
        a(f"s_waitcnt lgkmcnt({8-2*i})")
        for r in range(4): a(f"v_add_f32 v{128+4*i+r}, v{128+4*i+r}, v{148+4*i+r}")
    activation(a, list(range(128, 148)), 78, 79, 43, 20)
    for i in range(5):
        if i == 4: a("s_cmp_eq_u32 s77, 1\ns_cbranch_scc1 L_y0_done")
        a(f"s_mov_b32 s49, {i*2*2*18*512}")
        a(f"buffer_store_dwordx2 v[{20+2*i}:{21+2*i}], v44, s[{sE}:{sE+3}], s49 offen sc1")
    a("L_y0_done:")
    stamp(a, 3)
    z_unit_setup(a, 0, LDS_Z)
    a(f"s_add_u32 s60, s{sH}, 4\ns_cmp_eq_u32 s{sH}, 0\ns_cselect_b32 s61, 8, s{sH}\ns_sleep 20")
    z_units(a, [sH, 60, 61], "q0", 12)
    if "qfine" in OPT: stamp(a, 9)
    def meet(word, lbl):
        a(f"""
        s_waitcnt lgkmcnt(0)
        v_mov_b32 v24, {LDS_CNT + 4*word}
        v_mov_b32 v25, 1
        s_mov_b64 exec, 1
        ds_add_u32 v24, v25
        s_mov_b64 exec, -1
        s_mov_b32 s{sSpin}, 0
        L_{lbl}c:
        ds_read_b32 v25, v24
        s_add_u32 s{sSpin}, s{sSpin}, 1
        s_waitcnt lgkmcnt(0)
        v_readfirstlane_b32 s48, v25
        s_cmp_ge_u32 s{sSpin}, {SPIN_MAX}
        s_cbranch_scc1 L_{lbl}cd
        s_cmp_lt_u32 s48, 4
        s_cbranch_scc1 L_{lbl}c
        L_{lbl}cd:
        """)
    meet(0, "q0")
    if "qfine" in OPT: stamp(a, 10)
    ZR = 160
    for P in range(4):
        a(f"ds_read_b128 v[{ZR+4*P}:{ZR+4*P+3}], v15 offset:{P*1024}")
    a(f"ds_read_b64 v[{ZR+16}:{ZR+17}], v15 offset:4096")
    a("s_waitcnt lgkmcnt(0)")
    def proj(zr, qoff, lbl):
        a("s_setprio 3")
        for P in range(4):
            for d in range(3):
                base = WO + 18 * d; acc = 20 + 4 * d
                c = "0" if P == 0 else f"v[{acc}:{acc+3}]"
                a(f"v_mfma_f32_16x16x32_bf16 v[{acc}:{acc+3}], v[{base+4*P}:{base+4*P+3}], v[{zr+4*P}:{zr+4*P+3}], {c}")
        a("s_nop 7")
        for d in range(3):
            base = WO + 18 * d; acc = 20 + 4 * d
            a(f"v_mfma_f32_16x16x16_bf16 v[{acc}:{acc+3}], v[{base+16}:{base+17}], v[{zr+16}:{zr+17}], v[{acc}:{acc+3}]")
        a("s_setprio 0\ns_nop 7")
        for d in range(3):
            acc = 20 + 4 * d
            if d == 2: a(f"s_cmp_lg_u32 s{sH}, 0\ns_cbranch_scc1 L_pj_{lbl}")
            a(f"v_cvt_pk_bf16_f32 v{32+2*d}, v{acc}, v{acc+1}\nv_cvt_pk_bf16_f32 v{33+2*d}, v{acc+2}, v{acc+3}")
            a(f"buffer_store_dwordx2 v[{32+2*d}:{33+2*d}], v41, s[{sO}:{sO+3}], 0 offen offset:{qoff + 128*d}")
        a(f"L_pj_{lbl}:")
    if "qfine" in OPT: stamp(a, 11)
    proj(ZR, 0, "q0")
    stamp(a, 4)
    z_unit_setup(a, 1, LDS_Y0)
    a(f"s_add_u32 s60, s{sH}, 4\ns_cmp_eq_u32 s{sH}, 0\ns_cselect_b32 s61, 8, s{sH}")
    z_units(a, [sH, 60, 61], "q1", 2)
    meet(1, "q1")
    stamp(a, 5)
    for P in range(4):
        a(f"ds_read_b128 v[{ZR+4*P}:{ZR+4*P+3}], v15 offset:{P*1024}")
    a(f"ds_read_b64 v[{ZR+16}:{ZR+17}], v15 offset:4096")
    a("s_waitcnt lgkmcnt(0)")
    proj(ZR, 576, "q1")
    stamp(a, 6)
    a("s_waitcnt vmcnt(0)")
    if "dur" in OPT:
        a(f"""
        s_memrealtime s[100:101]
        s_waitcnt lgkmcnt(0)
        s_cmp_lg_u32 s{sH}, 0
        s_cbranch_scc1 L_nodur
        s_mov_b32 s48, -1
        s_cmp_eq_u32 s2, 0
        s_cselect_b32 s48, 8, s48
        s_cmp_eq_u32 s2, 100
        s_cselect_b32 s48, 16, s48
        s_cmp_eq_u32 s2, 251
        s_cselect_b32 s48, 24, s48
        v_mov_b32 v4, s98
        v_mov_b32 v5, s100
        v_mov_b32 v6, s48
        s_mov_b64 exec, 1
        buffer_store_dwordx2 v[4:5], v6, s[{sD}:{sD+3}], 0 offen
        s_waitcnt vmcnt(0)
        s_mov_b64 exec, -1
        L_nodur:
        """)
    stamp(a, 7)
    stamp(a, 8)
    HF_OFF[0] = False
    stamp_flush(a)
    a("s_endpgm")
def gf_flag_addr(a):
    a(f"""
    v_min_u32 v63, 27, v0
    s_mul_i32 s48, s{sNG}, 28
    v_add_u32 v63, s48, v63
    v_lshlrev_b32 v63, 7, v63
    v_add_u32 v63, {FL_OFF}, v63
    """)
sys.stdout.write(gen())
```

```python
import sys
from asmlib import *
OPT = set(sys.argv[1].split(",")) if len(sys.argv) > 1 else set()
STAMP = "stamp" in OPT
NAME = "standalone__autoregressive_conv_wavenet__speech_kernel"
XROWS = 352
LDS_W = XROWS * 288
WSLOT = 16384
LDS_S = LDS_W + 3 * WSLOT
SSLOT = 176 * 32
LDS_TOTAL = 163840
LDS_Y0 = LDS_W
LDS_Y1 = LDS_W + 36864
LDS_Z = LDS_W + 57344
LDS_SP = LDS_S + 2 * SSLOT
LDS_CNT = LDS_Y1 + 4096
GF_PROD = 9 * 72 * 2048
GF_SIZE = 2 * GF_PROD
E_OFF = 0x400000
E_SIZE = 28 * 9 * 2 * 18 * 512
FL_OFF = 0x900000
FL_SIZE = 256 * 128
W_SIZE = 31 * 144 * 288 * 2
XB_SIZE = 4000 * 288
STAMP_OFF = 0x1000000
SPIN_MAX = 200000
NOFF = 128 if 'dur' in OPT else 0
sX, sW, sG, sE, sO, sWo, sD, sF = 16, 20, 24, 28, 32, 36, 84, 88
sNG, sMT, sMTL, sB, sC0, sWV = 42, 43, 44, 45, 46, 47
sIt = 63
sT = 68
sNonce = 80
sSpin = 81
sCP = 82
ST0 = 92
def srd(a, d, lo, hi, size):
    a(f"s_mov_b32 s{d}, s{lo}\ns_and_b32 s{d+1}, s{hi}, 0xffff\ns_mov_b32 s{d+2}, {size}\ns_mov_b32 s{d+3}, 0x20000")
HF_OFF = [False]
def stamp(a, idx):
    if not STAMP or HF_OFF[0]: return
    import inspect
    if "xfine" in OPT and idx != 0 and 'xfine' not in inspect.stack()[1].code_context[0]: return
    a(f"s_memtime s[{ST0}:{ST0+1}]\ns_memrealtime s[{ST0+2}:{ST0+3}]\ns_waitcnt lgkmcnt(0)")
    a(f"v_writelane_b32 v253, s{ST0}, {2*idx}\nv_writelane_b32 v253, s{ST0+2}, {2*idx+1}")
def stamp_dyn(a, base, sreg):
    if not STAMP or HF_OFF[0] or "lite" in OPT: return
    a(f"s_memtime s[{ST0}:{ST0+1}]\ns_memrealtime s[{ST0+2}:{ST0+3}]\ns_waitcnt lgkmcnt(0)")
    a(f"s_lshl_b32 s96, s{sreg}, 1\ns_add_u32 m0, s96, {2*base}\ns_nop 3")
    a(f"v_writelane_b32 v253, s{ST0}, m0\ns_add_u32 m0, m0, 1\ns_nop 3\nv_writelane_b32 v253, s{ST0+2}, m0")
def stamp_dyn2(a, base, sreg, k):
    if not STAMP or HF_OFF[0]: return
    a(f"s_memtime s[{ST0}:{ST0+1}]\ns_memrealtime s[{ST0+2}:{ST0+3}]\ns_waitcnt lgkmcnt(0)")
    a(f"s_lshl_b32 s96, s{sreg}, 2\ns_add_u32 m0, s96, {2*(base+k)}\ns_nop 3")
    a(f"v_writelane_b32 v253, s{ST0}, m0\ns_add_u32 m0, m0, 1\ns_nop 3\nv_writelane_b32 v253, s{ST0+2}, m0")
def stamp_flush(a):
    if not STAMP: return
    a(f"""
    s_mov_b32 s{ST0}, s14
    s_and_b32 s{ST0+1}, s15, 0xffff
    s_mov_b32 s{ST0+2}, 0x2000000
    s_mov_b32 s{ST0+3}, 0x20000
    s_lshl_b32 s48, s2, 3
    s_add_u32 s48, s48, s{sWV}
    s_lshl_b32 s48, s48, 7
    s_add_u32 s48, s48, {STAMP_OFF}
    v_lshlrev_b32 v252, 2, v0
    v_add_u32 v252, s48, v252
    s_mov_b64 exec, 0xffffffff
    buffer_store_dword v253, v252, s[{ST0}:{ST0+3}], 0 offen
    s_waitcnt vmcnt(0)
    s_mov_b64 exec, -1
    """)
def bf16_op(a, op, dst, xa, xb, t):
    a(f"v_lshlrev_b32 v{t}, 16, v{xa}")
    a(f"v_lshlrev_b32 v{t+1}, 16, v{xb}")
    a(f"v_and_b32 v{t+2}, 0xffff0000, v{xa}")
    a(f"v_and_b32 v{t+3}, 0xffff0000, v{xb}")
    a(f"{op} v{t}, v{t}, v{t+1}")
    a(f"{op} v{t+2}, v{t+2}, v{t+3}")
    a(f"v_cvt_pk_bf16_f32 v{dst}, v{t}, v{t+2}")
def next_mod(a, s, n):
    a(f"s_add_u32 s{s}, s{s}, 1\ns_cmp_eq_u32 s{s}, {n}\ns_cselect_b32 s{s}, 0, s{s}")
def tr_lane(a, vd, vt, vt2):
    a(f"""
    v_lshrrev_b32 v{vd}, 5, v0
    v_lshlrev_b32 v{vd}, 10, v{vd}
    v_bfe_u32 v{vt}, v0, 4, 1
    v_mul_u32_u24 v{vt}, 544, v{vt}
    v_add_u32 v{vd}, v{vd}, v{vt}
    v_bfe_u32 v{vt}, v0, 2, 2
    v_lshlrev_b32 v{vt}, 6, v{vt}
    v_add_u32 v{vd}, v{vd}, v{vt}
    v_and_b32 v{vt}, 3, v0
    v_lshlrev_b32 v{vt}, 3, v{vt}
    v_add_u32 v{vd}, v{vd}, v{vt}
    """)
def activation(a, regs, sA, sS1, vS0, dst):
    for r in regs: a(f"v_mul_f32 v{r}, s{sA}, v{r}")
    for r in regs: a(f"v_exp_f32 v{r}, v{r}")
    for r in regs: a(f"v_add_f32 v{r}, 1.0, v{r}")
    for r in regs: a(f"v_rcp_f32 v{r}, v{r}")
    a("s_nop 0")
    for r in regs: a(f"v_fma_f32 v{r}, v{r}, s{sS1}, v{vS0}")
    for k in range(len(regs) // 2):
        a(f"v_cvt_pk_bf16_f32 v{dst+k}, v{regs[2*k]}, v{regs[2*k+1]}")
    for k in range(len(regs) // 2):
        a(f"v_min_u32 v{dst+k}, 0xfffffffe, v{dst+k}")
def activation_pk(a, pairs, sA, sS1, sOne, vS0, dst):
    for r in pairs: a(f"v_pk_mul_f32 v[{r}:{r+1}], v[{r}:{r+1}], s[{sA}:{sA+1}]")
    for r in pairs: a(f"v_exp_f32 v{r}, v{r}\nv_exp_f32 v{r+1}, v{r+1}")
    for r in pairs: a(f"v_pk_add_f32 v[{r}:{r+1}], v[{r}:{r+1}], s[{sOne}:{sOne+1}]")
    for r in pairs: a(f"v_rcp_f32 v{r}, v{r}\nv_rcp_f32 v{r+1}, v{r+1}")
    for r in pairs: a(f"v_pk_fma_f32 v[{r}:{r+1}], v[{r}:{r+1}], s[{sS1}:{sS1+1}], v[{vS0}:{vS0+1}]")
    for k, r in enumerate(pairs): a(f"v_cvt_pk_bf16_f32 v{dst+k}, v{r}, v{r+1}")
    for k in range(len(pairs)): a(f"v_min_u32 v{dst+k}, 0xfffffffe, v{dst+k}")

def act_consts(a, nh_s, sA, sS1, vS0):
    a(f"""
    s_lshl_b32 s48, s{sNG}, 1
    s_add_u32 s48, s48, {nh_s}
    s_cmp_lt_u32 s48, 9
    s_mov_b32 s{sA}, 0xbfb8aa3b
    s_cselect_b32 s{sA}, 0xc038aa3b, s{sA}
    s_cselect_b32 s{sS1}, 2.0, 1.0
    s_cselect_b32 s49, -1.0, 0
    v_mov_b32 v{vS0}, s49
    """)
def z_mul(a, dst, f, g, t):
    bf16_op(a, "v_mul_f32", dst, f, g, t)
def gen():
    a = Asm()
    a(f"; @launch grid=(252,1,1) block=(512,1,1) lds={LDS_TOTAL}")
    a('.amdgcn_target "amdgcn-amd-amdhsa--gfx950"')
    a(".text")
    a(f".globl {NAME}")
    kernel_header(a, NAME)
    a("s_cmp_ge_u32 s2, 252\ns_cbranch_scc1 L_end")
    a("""
    s_load_dwordx4 s[4:7], s[0:1], 0
    s_load_dwordx4 s[8:11], s[0:1], 16
    s_load_dwordx4 s[12:15], s[0:1], 32
    s_getpc_b64 s[40:41]
    L_pc:
    s_lshr_b32 s48, s2, 3
    s_mul_i32 s48, s48, 6
    v_add_u32 v1, s48, v0
    v_lshlrev_b32 v1, 7, v1
    v_min_u32 v1, L_code_end-L_pc-4, v1
    s_mov_b64 exec, 0x3f
    global_load_dword v254, v1, s[40:41]
    s_mov_b64 exec, -1
    """)
    if STAMP: a("v_mov_b32 v253, 0")
    if "dur" in OPT: a("s_memrealtime s[98:99]")
    stamp(a, 0)
    a(f"""
    v_lshrrev_b32 v1, 6, v0
    v_and_b32 v0, 63, v0
    v_readfirstlane_b32 s{sWV}, v1
    s_and_b32 s48, s2, 7
    s_lshr_b32 s49, s2, 3
    s_and_b32 s50, s48, 3
    s_lshr_b32 s48, s48, 2
    s_lshl_b32 s48, s48, 5
    s_add_u32 s48, s48, s49
    s_mul_i32 s51, s48, 7282
    s_lshr_b32 s51, s51, 16
    s_mul_i32 s49, s51, 9
    s_sub_u32 s{sNG}, s48, s49
    s_mul_i32 s{sMT}, s50, 7
    s_add_u32 s{sMT}, s{sMT}, s51
    s_lshr_b32 s{sB}, s50, 1
    s_and_b32 s50, s50, 1
    s_mul_i32 s50, s50, 7
    s_add_u32 s{sMTL}, s50, s51
    s_mul_i32 s52, s{sMT}, 7282
    s_lshr_b32 s52, s52, 16
    s_mul_i32 s49, s52, 9
    s_sub_u32 s{sCP}, s{sMT}, s49
    s_mov_b32 s{sC0}, 0
    """)
    a(f"""
    s_cmp_eq_u32 s{sCP}, 0
    s_cselect_b32 s55, 2, 3
    s_mul_i32 s53, s52, s55
    s_sub_u32 s54, 8, s53
    s_min_u32 s54, s54, s55
    """)
    a(f"""
    v_lshrrev_b32 v3, 2, v0
    v_mul_u32_u24 v3, 576, v3
    v_lshrrev_b32 v4, 5, v0
    v_lshlrev_b32 v4, 1, v4
    v_xor_b32 v4, v4, v0
    v_and_b32 v4, 3, v4
    v_lshlrev_b32 v4, 4, v4
    s_lshl_b32 s48, s{sNG}, 6
    v_add3_u32 v3, v3, v4, s48
    """)
    a("""
    v_lshrrev_b32 v12, 2, v0
    v_and_b32 v12, 4, v12
    v_xor_b32 v12, v12, v0
    v_lshlrev_b32 v12, 4, v12
    """)
    a("s_waitcnt lgkmcnt(0)")
    if "pfine" in OPT or "xfine" in OPT: stamp(a, 1)
    a(f"s_mul_i32 s48, s{sB}, {XB_SIZE}\ns_add_u32 s4, s4, s48\ns_addc_u32 s5, s5, 0")
    srd(a, sX, 4, 5, XB_SIZE)
    srd(a, sW, 6, 7, W_SIZE)
    srd(a, sD, 12, 13, 256)
    a(f"""
    s_lshl_b32 s48, s2, 3
    s_add_u32 s48, s48, s{sWV}
    s_cmp_lg_u32 s48, 4
    s_cbranch_scc1 L_nononce
    s_memrealtime s[56:57]
    s_waitcnt lgkmcnt(0)
    s_or_b32 s56, s56, 1
    v_mov_b32 v4, s56
    v_mov_b32 v5, {NOFF}
    s_mov_b64 exec, 1
    buffer_store_dword v4, v5, s[{sD}:{sD+3}], 0 offen sc1
    s_mov_b64 exec, -1
    L_nononce:
    """)
    PL = 176
    def w_share(dst):
        a(f"""
        s_lshr_b32 s48, s2, 3
        s_and_b32 s50, s48, 1
        s_mul_i32 s50, s50, 36
        v_add_u32 v10, s50, v0
        v_lshlrev_b32 v10, 7, v10
        s_lshr_b32 s48, s48, 1
        s_mul_i32 s48, s48, 165888
        s_mul_i32 s50, s{sWV}, 9216
        s_add_u32 s48, s48, s50
        s_mov_b32 exec_hi, 0xf
        {"" if "nowshare" in OPT else f"buffer_load_dword v{dst}, v10, s[{sW}:{sW+3}], s48 offen"}
        s_mov_b32 exec_hi, -1
        """)
    def x_loop(lbl, end_s):
        a(f"""
        {lbl}:
        s_cmp_ge_u32 s50, 99
        s_cselect_b32 s51, 99, 0
        s_sub_u32 s50, s50, s51
        s_lshl_b32 s51, s50, 10
        s_mov_b32 m0, s51
        s_add_i32 s51, s51, s49
        s_cmp_lt_i32 s51, 0
        s_cselect_b32 s58, 0x7fff0000, 0
        v_or_b32 v11, s58, v12
        s_max_i32 s51, s51, 0
        s_add_u32 s50, s50, 4
        s_add_u32 s59, s59, 4
        buffer_load_dwordx4 v11, s[{sX}:{sX+3}], s51 offen lds
        s_cmp_lt_u32 s59, {end_s}
        s_cbranch_scc1 {lbl}
        """)
    a(f"""
    s_mul_i32 s49, s{sMTL}, {288*288}
    s_sub_i32 s49, s49, {64*288}
    s_cmp_ge_u32 s{sWV}, 4
    s_cbranch_scc1 L_hfirst
    s_cmp_ge_u32 s{sWV}, 2
    s_cbranch_scc1 L_nopf0
    """)
    w_share(251)
    a(f"""
    L_nopf0:
    s_mov_b32 s59, s{sWV}
    s_mul_i32 s60, s{sNG}, 11
    s_add_u32 s60, s60, s59
    s_mov_b32 s50, s60
    """)
    x_loop("L_xl0", 12)
    if "xfine" in OPT: stamp(a, 2)
    a(f"s_cmp_lg_u32 s{sWV}, 2\ns_cbranch_scc1 L_nopf1\ns_mov_b32 s62, s50")
    w_share(251)
    a("s_mov_b32 s50, s62\nL_nopf1:")
    x_loop("L_xl1", 99)
    if "xfine" in OPT: stamp(a, 3)
    a("s_branch L_xdone\nL_hfirst:")
    a(f"""
    s_sub_u32 s61, s{sWV}, 4
    s_lshl_b32 s56, s54, 2
    s_add_u32 s56, s56, 1
    s_lshl_b32 s57, s56, 1
    s_mul_i32 s58, s{sNG}, s56
    s_lshl_b32 s58, s58, 3
    s_mul_i32 s59, s61, s57
    s_add_u32 s58, s58, s59
    v_add_u32 v10, s58, v0
    v_mul_u32_u24 v11, 911, v10
    v_lshrrev_b32 v11, 16, v11
    v_mul_u32_u24 v13, 72, v11
    v_sub_u32 v10, v10, v13
    v_lshlrev_b32 v10, 7, v10
    s_lshl_b32 s58, s53, 2
    s_sub_u32 s58, s58, 1
    v_add_u32 v11, s58, v11
    s_mov_b32 s58, 82944
    v_mul_lo_u32 v11, v11, s58
    v_add_u32 v10, v10, v11
    s_mul_i32 s58, s{sCP}, 9216
    v_add_u32 v10, s58, v10
    v_cmp_gt_u32 vcc, s57, v0
    s_nop 1
    s_mov_b64 exec, vcc
    {"" if "noprodpf" in OPT else f"buffer_load_dword v251, v10, s[{sW}:{sW+3}], 0 offen"}
    s_mov_b64 exec, -1
    """)
    if "xfine" in OPT: stamp(a, 2)
    a(f"""
    s_add_u32 s56, s53, s61
    s_lshl_b32 s56, s56, 1
    s_mul_i32 s57, s56, 165888
    s_mul_i32 s58, s{sCP}, 9216
    s_add_u32 s57, s57, s58
    s_sub_u32 s58, s57, 82944
    s_cmp_eq_u32 s56, 0
    s_cselect_b32 s58, 0, s58
    s_cselect_b32 s59, 0x7fff0000, 0
    s_cmp_ge_u32 s61, s54
    s_cselect_b32 s60, 0x7fff0000, 0
    s_or_b32 s59, s59, s60
    v_or_b32 v24, s59, v3
    v_or_b32 v25, s60, v3
    s_cmp_eq_u32 s61, 3
    s_cbranch_scc1 L_h3first
    {"" if "noprodpf" in OPT else "s_waitcnt vmcnt(0)"}
    buffer_load_dwordx4 v[{PL}:{PL+3}], v25, s[{sW}:{sW+3}], s57 offen
    buffer_load_dwordx4 v[{PL+4}:{PL+7}], v24, s[{sW}:{sW+3}], s58 offen
    s_add_u32 s58, s57, 82944
    buffer_load_dwordx4 v[{PL+8}:{PL+11}], v25, s[{sW}:{sW+3}], s58 offen
    s_add_u32 s58, s57, 165888
    buffer_load_dwordx4 v[{PL+12}:{PL+15}], v25, s[{sW}:{sW+3}], s58 offen
    s_add_u32 s58, s57, 248832
    buffer_load_dwordx4 v[{PL+16}:{PL+19}], v25, s[{sW}:{sW+3}], s58 offen
    s_branch L_xdone
    L_h3first:
    """)
    a("L_xdone:")
    if "pfine" in OPT: stamp(a, 2)
    srd(a, sWo, 8, 9, 144 * 288)
    srd(a, sG, 14, 15, GF_SIZE)
    a(f"s_add_u32 s48, s14, {E_OFF}\ns_addc_u32 s49, s15, 0")
    srd(a, sE, 48, 49, E_SIZE)
    a(f"s_cmp_ge_u32 s{sWV}, 4\ns_cbranch_scc1 L_helper")
    gen_mfma(a)
    a("L_helper:")
    gen_helper(a)
    a("L_end:\ns_endpgm\nL_code_end:")
    a('.section .rodata,"a"')
    a(".p2align 6")
    kernel_desc(a, NAME, 256)
    return a.text()
M_, Y_ = 16, 52
XF = 88
GR = 136
WA, WB = 184, GR + 32
vS0, vS1r, vW, vG, vX, vXn, vXb, vWb, vPt = 2, 3, 4, 5, 6, 7, 8, 9, 13
vW0 = 14
sSlotW = 61
TW, TR, TE, TF, TS = 200, 201, 202, 206, 204
sGo0, sGo1, sDx = 66, 67, 76
class Sched:
    def __init__(self, a):
        self.a = a; self.lds = []; self.vm = []
    def lds_issue(self, tag): self.lds.append(tag)
    def vm_issue(self, tag): self.vm.append(tag)
    def need(self, ltags=(), vtags=()):
        parts = []
        li = max((i for i, t in enumerate(self.lds) if t in ltags), default=-1)
        if li >= 0:
            n = min(len(self.lds) - 1 - li, 15)
            parts.append(f"lgkmcnt({n})")
            self.lds = self.lds[len(self.lds) - n:] if n > 0 else []
        vi = max((i for i, t in enumerate(self.vm) if t in vtags), default=-1)
        if vi >= 0:
            n = len(self.vm) - 1 - vi
            parts.append(f"vmcnt({n})")
            self.vm = self.vm[len(self.vm) - n:] if n > 0 else []
        if parts:
            self.a("s_waitcnt " + " ".join(parts))
def chunk_order():
    return [(sp, i - 3 + sp, i) for i in range(12) for sp in range(4) if 0 <= i - 3 + sp <= 8]
LAST_USE = {}
for n_, (s_, T_, i_) in enumerate(chunk_order()): LAST_USE[i_] = n_

def emit_chunk(a, sc, acc, wreg, wtags, fillers, pre=None, lookahead=5):
    order = chunk_order()
    for n, (s, T, i) in enumerate(order):
        if pre is not None:
            for f in pre[n]: f()
        pend_l = set(sc.lds); pend_v = set(sc.vm)
        now_l = ({f"x{i}"} | set(wtags[s][0])) & pend_l
        now_v = set(wtags[s][1]) & pend_v
        if now_l or now_v:
            lt = set()
            for (s2, T2, i2) in order[n:n + lookahead]:
                lt |= {f"x{i2}"} | set(wtags[s2][0])
            lt &= pend_l
            sc.need(lt if now_l else (), now_v)
        d = acc + 4 * T
        a(f"v_mfma_f32_16x16x32_bf16 v[{d}:{d+3}], v[{wreg+4*s}:{wreg+4*s+3}], v[{XF+4*i}:{XF+4*i+3}], v[{d}:{d+3}]")
        for f in fillers[n]: f()

def place(items, start, step=1, ngaps=36):
    g = [[] for _ in range(ngaps)]
    for k, it in enumerate(items):
        g[start + k * step].append(it)
    return g
def merge(*gs):
    return [sum((g[n] for g in gs), []) for n in range(len(gs[0]))]
def gen_mfma(a):
    ins = lambda t: (lambda: a(t))
    a(f"v_mov_b32 v{vW0}, v3")
    for i in range(1, 4):
        a(f"v_add_u32 v{16+i}, {i*(165888-1024)}, v3")
    a(f"""
    s_mul_i32 s48, s{sWV}, {4*165888}
    s_lshl_b32 s49, s{sWV}, 12
    s_add_u32 m0, s49, {LDS_W}
    s_nop 0
    buffer_load_dwordx4 v3, s[{sW}:{sW+3}], s48 offen lds
    """)
    for i in range(1, 4):
        a(f"buffer_load_dwordx4 v{16+i}, s[{sW}:{sW+3}], s48 offen offset:{i*1024} lds")
    if "pfine" in OPT: stamp(a, 3)
    a("s_setprio 1")
    a(f"s_lshr_b32 s{sT}, s{sWV}, 1\ns_and_b32 s{sT+1}, s{sWV}, 1")
    a(f"""
    v_bfe_u32 v10, v0, 1, 2
    v_bfe_u32 v11, v0, 3, 1
    v_mul_u32_u24 v11, 36, v11
    v_add_u32 v10, v10, v11
    v_lshrrev_b32 v11, 5, v0
    v_sub_u32 v10, v10, v11
    s_lshl_b32 s{sT+2}, s{sT}, 1
    s_sub_u32 s{sT+2}, 4, s{sT+2}
    v_add_u32 v10, s{sT+2}, v10
    v_and_b32 v11, 1, v0
    v_bfe_u32 v12, v0, 4, 1
    v_lshlrev_b32 v12, 4, v12
    v_lshl_add_u32 v15, v10, 2, v11
    v_mul_u32_u24 v{vXb}, 288, v15
    v_add_u32 v{vXb}, v{vXb}, v12
    v_lshl_add_u32 v15, v10, 1, v11
    v_bfe_u32 v10, v15, 2, 1
    v_lshlrev_b32 v10, 4, v10
    v_xor_b32 v10, v10, v12
    v_lshl_add_u32 v{vS0}, v15, 5, v10
    v_add_u32 v{vS0}, {LDS_S}, v{vS0}
    v_add_u32 v{vS1r}, {SSLOT}, v{vS0}
    """)
    tr_lane(a, vWb, 10, 11)
    a(f"""
    s_lshl_b32 s{sT+2}, s{sT+1}, 5
    v_xor_b32 v{vWb}, s{sT+2}, v{vWb}
    s_lshl_b32 s{sT+2}, s{sT}, 11
    s_add_u32 s{sT+2}, s{sT+2}, {LDS_W}
    v_add_u32 v{vWb}, s{sT+2}, v{vWb}
    s_mul_i32 s{sT+2}, s{sNG}, 147456
    s_lshl_b32 s{sT+3}, s{sT}, 13
    s_add_u32 s{sT+2}, s{sT+2}, s{sT+3}
    s_lshl_b32 s{sT+3}, s{sT+1}, 10
    s_add_u32 s{sT+2}, s{sT+2}, s{sT+3}
    v_lshlrev_b32 v{vG}, 4, v0
    v_add_u32 v{vG}, s{sT+2}, v{vG}
    """)
    a(f"""
    s_mov_b32 s{sT+5}, s{sT}
    s_mul_i32 s48, s{sWV}, 5120
    s_add_u32 s48, s48, {LDS_Y1}
    v_lshlrev_b32 v10, 4, v0
    v_add_u32 v{TW}, s48, v10
    s_xor_b32 s49, s{sWV}, 2
    s_mul_i32 s48, s49, 5120
    s_add_u32 s48, s48, {LDS_Y1}
    v_add_u32 v{TR}, s48, v10
    s_lshl_b32 s48, s{sWV}, 2
    s_add_u32 s48, s48, {LDS_CNT + 16}
    v_mov_b32 v{TF}, s48
    s_lshl_b32 s48, s49, 2
    s_add_u32 s48, s48, {LDS_CNT + 16}
    v_mov_b32 v{TF+1}, s48
    """)
    act_consts(a, f"s{sT+1}", 84, 86, TS)
    a(f"""
    s_mov_b32 s85, s84
    s_mov_b32 s87, s86
    s_mov_b32 s88, 1.0
    s_mov_b32 s89, 1.0
    v_mov_b32 v{TS+1}, v{TS}
    s_mul_i32 s49, s{sMT}, {9*2*18*512}
    s_lshl_b32 s48, s48, 9
    s_add_u32 s48, s48, s49
    s_add_u32 s48, s48, {18*512}
    s_mul_i32 s49, s{sT}, {2*18*512}
    s_add_u32 s48, s48, s49
    v_lshlrev_b32 v{TE}, 3, v0
    v_add_u32 v{TE}, s48, v{TE}
    """)
    for r in range(M_, Y_ + 36):
        a(f"v_mov_b32 v{r}, 0")
    a(f"""
    s_mov_b32 s{sSlotW}, 0
    s_mov_b32 s{sIt}, 0
    v_mov_b32 v{vW}, v{vWb}
    """)
    PF = "pfine" in OPT
    stamp(a, 4 if PF else 1)
    a("s_waitcnt vmcnt(4)\ns_barrier")
    stamp(a, 5 if PF else 2)
    for i in range(1, 4):
        a(f"v_add_u32 v{123+i}, {i*(165888-1024)}, v{vW0}")
    a(f"""
    s_mul_i32 s48, s{sWV}, {4*165888}
    s_add_u32 s48, s48, 9216
    s_lshl_b32 s49, s{sWV}, 12
    s_add_u32 m0, s49, {LDS_W + WSLOT}
    s_nop 0
    buffer_load_dwordx4 v{vW0}, s[{sW}:{sW+3}], s48 offen lds
    """)
    for i in range(1, 4):
        a(f"buffer_load_dwordx4 v{123+i}, s[{sW}:{sW+3}], s48 offen offset:{i*1024} lds")
    a(f"""
    s_add_u32 s48, s48, 9216
    s_add_u32 m0, s49, {LDS_W + 2*WSLOT}
    s_nop 0
    buffer_load_dwordx4 v{vW0}, s[{sW}:{sW+3}], s48 offen lds
    """)
    for i in range(1, 4):
        a(f"buffer_load_dwordx4 v{123+i}, s[{sW}:{sW+3}], s48 offen offset:{i*1024} lds")
    a(f"""
    s_mul_i32 s48, s{sWV}, 54
    v_add_u32 v124, s48, v0
    v_mul_u32_u24 v125, 1821, v124
    v_lshrrev_b32 v125, 16, v125
    v_mul_u32_u24 v126, 36, v125
    v_sub_u32 v124, v124, v126
    s_lshr_b32 s48, s2, 3
    s_and_b32 s49, s48, 1
    s_mul_i32 s49, s49, 36
    v_add_u32 v124, s49, v124
    v_lshlrev_b32 v124, 7, v124
    v_mul_u32_u24 v125, 9216, v125
    v_add_u32 v124, v124, v125
    s_lshr_b32 s48, s48, 1
    s_mul_i32 s48, s48, 165888
    s_add_u32 s48, s48, {3*9216}
    s_mov_b32 exec_hi, 0x3fffff
    {("buffer_load_dword v251, v0, s[20:23], 0 offen" if "nowshare" in OPT else f"buffer_load_dword v251, v124, s[{sW}:{sW+3}], s48 offen")}
    s_mov_b32 exec_hi, -1
    s_lshr_b32 s48, s2, 3
    s_mul_i32 s48, s48, 12
    s_mul_i32 s49, s{sWV}, 3
    s_add_u32 s48, s48, s49
    v_add_u32 v124, s48, v0
    v_lshlrev_b32 v124, 7, v124
    s_mov_b64 exec, 7
    buffer_load_dword v250, v124, s[{sWo}:{sWo+3}], 0 offen
    s_mov_b64 exec, -1
    """)
    a("s_waitcnt vmcnt(10)\ns_barrier")
    stamp(a, 6 if PF else 3)
    sc = Sched(a)
    def rd_x(i, vaddr, imm):
        def f():
            a(f"ds_read_b128 v[{XF+4*i}:{XF+4*i+3}], v{vaddr} offset:{imm}")
            sc.lds_issue(f"x{i}")
        return f
    def rd_w(wreg, s_, h):
        def f():
            a(f"ds_read_b64_tr_b16 v[{wreg+4*s_+2*h}:{wreg+4*s_+2*h+1}], v{vW} offset:{4096*s_ + 256*h}")
            sc.lds_issue(f"w{wreg}_{s_}")
        return f
    def gload(setidx, s_):
        reg = GR + 16 * setidx + 4 * s_
        so = sGo0 if s_ < 2 else sGo1
        def f():
            a(f"buffer_load_dwordx4 v[{reg}:{reg+3}], v{vG}, s[{sG}:{sG+3}], s{so} offen offset:{(s_ & 1)*2048} sc1")
            sc.vm_issue(f"g{setidx}_{s_}")
        return f
    def at(pairs):
        g = [[] for _ in range(36)]
        for n, f in pairs: g[n].append(f)
        return g
    def swz_items(dst):
        return [ins(f"v_add_u32 v{dst}, s{sDx}, v{vXb}"), ins(f"v_lshrrev_b32 v{vPt}, 2, v{dst}"),
                ins(f"v_and_b32 v{vPt}, 64, v{vPt}"), ins(f"v_xor_b32 v{dst}, v{dst}, v{vPt}")]
    def barrier_drain(vm=False):
        def f():
            sc.need(set(sc.lds), ())
            a(f"s_waitcnt vmcnt({vm})\ns_barrier" if vm else "s_barrier")
        return f
    wtags_a = lambda wreg: [([f"w{wreg}_{s_}"], []) for s_ in range(4)]
    wtags_b = lambda u: [([], [f"g{u}_{s_}"]) for s_ in range(4)]
    BAR = 6
    def reload_gaps_after_bar():
        g, n = {}, BAR + 1
        for i in range(12):
            n = max(n, LAST_USE[i]); g[i] = n; n += 1
            n = min(n, 35)
        return g
    RG_A = reload_gaps_after_bar()
    free_a = [n for n in range(BAR + 1, 34) if n not in RG_A.values()]

    init = [(RG_A[i], rd_x(i, vS0, 256 * i)) for i in range(12)]
    init += list(zip(free_a[:8], [rd_w(WA, s_, h) for s_ in (3, 2, 1, 0) for h in range(2)]))
    for row in at(init):
        for f in row: f()

    def a_chunk(it_par, kind, vm):
        wcur, wnxt = (WA, WB) if it_par == 0 else (WB, WA)
        vsn = vS1r if it_par == 0 else vS0
        items = [(BAR, barrier_drain(vm))]
        if kind != "B":
            items += [(0, ins(f"s_add_u32 s{sSlotW}, s{sSlotW}, {WSLOT}\ns_cmp_eq_u32 s{sSlotW}, {3*WSLOT}")),
                      (1, ins(f"s_cselect_b32 s{sSlotW}, 0, s{sSlotW}")),
                      (2, ins(f"v_add_u32 v{vW}, s{sSlotW}, v{vWb}"))]
            items += [(RG_A[i], rd_x(i, vsn, 256 * i)) for i in range(12)]
            ws = [rd_w(wnxt, s_, h) for s_ in (3, 2, 1, 0) for h in range(2)]
            items += list(zip(free_a[:8], ws))
        else:
            items += [(0, ins(f"s_mov_b32 s{sDx}, 576"))] + list(zip((1, 2, 3, 4), swz_items(vX)))
            items += [(RG_A[i], rd_x(i, vX, 4608 * i)) for i in range(12)]
            items += [(free_a[0], ins(f"s_mov_b32 s{sDx}, {576 + 32}"))] + list(zip(free_a[1:5], swz_items(vXn)))
            items += [(35, ins(f"v_mov_b32 v{vX}, v{vXn}"))]
        if kind in ("G0", "B"):
            gs = 0 if kind == "G0" else 1
            items += [(3, ins(f"s_mov_b32 s{sGo0}, {gs*16384}\ns_mov_b32 s{sGo1}, {gs*16384 + 4096}"))]
            items += list(zip(free_a[8:12] if kind == "G0" else free_a[5:9], [gload(gs, s_) for s_ in range(4)]))
        emit_chunk(a, sc, M_, wcur, wtags_a(wcur), at(items))

    a("L_A:")
    st = list(sc.lds)
    a_chunk(0, "A", 6)
    if PF: stamp_dyn2(a, 7, sIt, 0)
    a_chunk(1, "A", 2)
    assert sc.lds == st, (sc.lds, st)
    if PF: stamp_dyn2(a, 7, sIt, 1)
    if "aavg" in OPT:
        a(f"s_cmp_eq_u32 s{sIt}, 1\ns_cbranch_scc1 L_aavg_no")
        stamp_dyn(a, 5, sIt)
        a("L_aavg_no:")
    a(f"s_add_u32 s{sIt}, s{sIt}, 1\ns_cmp_lt_u32 s{sIt}, 3\ns_cbranch_scc1 L_A")
    a_chunk(0, "A", False)
    if PF: stamp(a, 13)
    a_chunk(1, "G0", False)
    if PF: stamp(a, 14)
    a_chunk(0, "B", False)
    stamp(a, 15 if PF else 4)
    if PF or "aavg" in OPT: HF_OFF[0] = True

    sTrip = sT + 4
    a(f"s_mov_b32 s{sDx}, {576 + 32}\ns_mov_b32 s{sGo0}, 16384")
    def b_chunk(acc, u, switch=False, extra=(), pre=None):
        items = [(LAST_USE[i], rd_x(i, vX, 4608 * i)) for i in range(12)] if "b_nox" not in OPT else []
        if switch:
            items += [(1, ins(f"s_add_u32 s{sDx}, s{sDx}, 32\ns_add_u32 s{sGo0}, s{sGo0}, 16384\ns_cmp_eq_u32 s{sTrip}, 2")),
                      (3, ins(f"s_cselect_b32 s{sDx}, 0, s{sDx}\ns_cselect_b32 s{sGo0}, {GF_PROD}, s{sGo0}"))]
        else:
            items += [(1, ins(f"s_add_u32 s{sDx}, s{sDx}, 32\ns_add_u32 s{sGo0}, s{sGo0}, 16384"))]
        items += [(4, ins(f"s_add_u32 s{sGo1}, s{sGo0}, 4096"))]
        if "b_nov" not in OPT: items += list(zip((6, 7, 8, 10), swz_items(vXn)))
        if "b_nog" not in OPT: items += list(zip((11, 15, 19, 23), [gload((u + 2) % 3, s_) for s_ in range(4)]))
        items += [(35, ins(f"v_mov_b32 v{vX}, v{vXn}"))]
        items += list(extra)
        emit_chunk(a, sc, acc, GR + 16 * u, wtags_b(u), at(items), pre)
    a(f"s_mov_b32 s{sTrip}, 0")
    a("L_B1:")
    st_l, st_v = list(sc.lds), list(sc.vm)
    for u in range(3):
        b_chunk(Y_, u, switch=(u == 1))
    stamp_dyn(a, 5, sTrip) if "pre" in OPT else None
    a("s_barrier")
    stamp_dyn(a, 5, sTrip) if "pre" not in OPT else None
    a(f"s_add_u32 s{sTrip}, s{sTrip}, 1\ns_cmp_lt_u32 s{sTrip}, 3\ns_cbranch_scc1 L_B1")
    assert "b_nog" in OPT or "b_nox" in OPT or (sc.lds == st_l and sc.vm == st_v)
    if "lite" in OPT: stamp(a, 5)
    a(f"""
    s_mul_i32 s{sT+1}, s{sWV}, 9216
    s_add_u32 s{sT+1}, s{sT+1}, {LDS_Y0}
    v_lshlrev_b32 v10, 4, v0
    v_add_u32 v10, s{sT+1}, v10
    """)
    first = {}
    for n, (s_, T, i) in enumerate(chunk_order()): first.setdefault(T, n)
    pre = [[] for _ in range(36)]
    prev = 0
    for T in range(9):
        slots = list(range(prev, first[T] + 1)) if T > 0 else [0]
        adds = [ins(f"v_add_f32 v{Y_+4*T+r}, v{M_+4*T+r}, v{Y_+4*T+r}") for r in range(4)]
        slots = [0] if T == 0 else list(range(prev + 1, first[T] + 1))
        for k, f in enumerate(adds): pre[slots[(k * len(slots)) // 4]].append(f)
        prev = first[T]
    def ywrite(T):
        def f():
            a(f"ds_write_b128 v10, v[{Y_+4*T}:{Y_+4*T+3}] offset:{T*1024}")
            sc.lds_issue(f"yw{T}")
        return f
    wgaps = [3, 7, 11, 15, 19, 23, 27, 31, 33]
    b_chunk(M_, 0, extra=[(wgaps[T], ywrite(T)) for T in range(9)], pre=pre)
    def bar_y0():
        sc.need({f"yw{T}" for T in range(9)}, ())
        a("s_barrier")
    b_chunk(M_, 1, extra=[(16, bar_y0)])
    b_chunk(M_, 2)
    if "lite" not in OPT: stamp(a, 8)
    a(f"s_mov_b32 s{sTrip}, 1")
    a("L_B2:")
    assert "b_nog" in OPT or "b_nox" in OPT or (sc.lds == st_l and sc.vm == st_v)
    for u in range(3):
        b_chunk(M_, u)
    stamp_dyn(a, 8, sTrip)
    a(f"s_add_u32 s{sTrip}, s{sTrip}, 1\ns_cmp_lt_u32 s{sTrip}, 3\ns_cbranch_scc1 L_B2")

    if "lite" in OPT: stamp(a, 6)
    a("s_setprio 0")
    K = XF
    def tail(keep, send, lbl):
        for i, T in enumerate(send):
            a(f"ds_write_b128 v{TW}, v[{M_+4*T}:{M_+4*T+3}] offset:{i*1024}")
        a(f"""
        v_mov_b32 v10, 1
        s_waitcnt lgkmcnt(0)
        ds_write_b32 v{TF}, v10
        s_mov_b32 s{sSpin}, 0
        L_tp_{lbl}:
        ds_read_b32 v11, v{TF+1}
        s_add_u32 s{sSpin}, s{sSpin}, 1
        s_waitcnt lgkmcnt(0)
        v_readfirstlane_b32 s48, v11
        s_cmp_ge_u32 s{sSpin}, {SPIN_MAX}
        s_cbranch_scc1 L_td_{lbl}
        s_cmp_eq_u32 s48, 0
        s_cbranch_scc1 L_tp_{lbl}
        L_td_{lbl}:
        """)
        for i, T in enumerate(keep):
            a(f"ds_read_b128 v[{K+4*i}:{K+4*i+3}], v{TR} offset:{i*1024}")
        for i, T in enumerate(keep):
            a(f"s_waitcnt lgkmcnt({len(keep)-1-i})")
            for r in (0, 2):
                a(f"v_pk_add_f32 v[{M_+4*T+r}:{M_+4*T+r+1}], v[{M_+4*T+r}:{M_+4*T+r+1}], v[{K+4*i+r}:{K+4*i+r+1}]")
        activation_pk(a, [M_ + 4*T + r for T in keep for r in (0, 2)], 84, 86, 88, TS, Y_)
        for i, T in enumerate(keep):
            a(f"s_mov_b32 s49, {i*2*2*18*512}")
            a(f"buffer_store_dwordx2 v[{Y_+2*i}:{Y_+2*i+1}], v{TE}, s[{sE}:{sE+3}], s49 offen sc1")
    a(f"s_waitcnt lgkmcnt(0)\ns_cmp_eq_u32 s{sT+5}, 0\ns_cbranch_scc0 L_t_k1\ns_nop 5")
    tail([0, 2, 4, 6, 8], [1, 3, 5, 7], "k0")
    a("s_branch L_t_j\nL_t_k1:\ns_nop 5")
    tail([1, 3, 5, 7], [0, 2, 4, 6, 8], "k1")
    a("L_t_j:")
    stamp(a, 7 if "lite" in OPT else 11)
    if "lite" not in OPT: stamp(a, 12)
    HF_OFF[0] = False
    stamp_flush(a)
    a("s_endpgm")
def z_unit_setup(a, q, zbase):
    a(f"""
    s_mul_i32 s48, s{sMT}, {9*2*18*512}
    s_mul_i32 s49, s{sNG}, {2*18*512}
    s_add_u32 s48, s48, s49
    s_add_u32 s48, s48, {q*18*512}
    v_lshlrev_b32 v14, 3, v0
    v_add_u32 v14, s48, v14
    v_lshlrev_b32 v15, 4, v0
    v_add_u32 v15, {zbase}, v15
    """)
def z_units(a, cts, lbl, nap):
    ZL, ZZ, ZT, ZM = 128, 140, 146, 150
    for u, c in enumerate(cts):
        a(f"s_lshl_b32 s{50+2*u}, s{c}, 9\ns_add_u32 s{51+2*u}, s{50+2*u}, 4608")
    a(f"s_mov_b32 s{sSpin}, 0\nL_zp_{lbl}:")
    for u in range(len(cts)):
        a(f"buffer_load_dwordx2 v[{ZL+4*u}:{ZL+4*u+1}], v14, s[{sE}:{sE+3}], s{50+2*u} offen sc1")
        a(f"buffer_load_dwordx2 v[{ZL+4*u+2}:{ZL+4*u+3}], v14, s[{sE}:{sE+3}], s{51+2*u} offen sc1")
    a(f"s_add_u32 s{sSpin}, s{sSpin}, 1\ns_waitcnt vmcnt(0)")
    a(f"v_max_u32 v{ZM}, v{ZL}, v{ZL+1}\nv_max3_u32 v{ZM}, v{ZM}, v{ZL+2}, v{ZL+3}")
    for u in range(1, len(cts)):
        a(f"v_max3_u32 v{ZM}, v{ZM}, v{ZL+4*u}, v{ZL+4*u+1}\nv_max3_u32 v{ZM}, v{ZM}, v{ZL+4*u+2}, v{ZL+4*u+3}")
    a(f"""
    v_cmp_eq_u32 vcc, -1, v{ZM}
    s_cmp_ge_u32 s{sSpin}, {SPIN_MAX}
    s_cbranch_scc1 L_zd_{lbl}
    s_cbranch_vccz L_zd_{lbl}
    """)
    if nap: a(f"s_sleep {nap}")
    a(f"s_branch L_zp_{lbl}\nL_zd_{lbl}:")
    for u, c in enumerate(cts):
        z_mul(a, ZZ + 2*u, ZL + 4*u, ZL + 4*u + 2, ZT)
        z_mul(a, ZZ + 2*u + 1, ZL + 4*u + 1, ZL + 4*u + 3, ZT)
        a(f"""
        s_lshr_b32 s48, s{c}, 1
        s_lshl_b32 s48, s48, 10
        s_and_b32 s49, s{c}, 1
        s_lshl_b32 s49, s49, 3
        s_add_u32 s48, s48, s49
        v_add_u32 v{ZM}, s48, v15
        ds_write_b64 v{ZM}, v[{ZZ+2*u}:{ZZ+2*u+1}]
        """)
WO = 64
def gen_helper(a):
    sH = sT
    sCw, sSl, sCs, sSs = 72, 73, 74, 75
    vSx, vSw, vPat, vLo = 20, 21, 22, 23
    SB, SD, ID, IJ = 28, 40, 52, 56
    a(f"s_sub_u32 s{sH}, s{sWV}, 4")
    if "pfine" in OPT: HF_OFF[0] = True
    for i in range(4):
        a(f"v_add_u32 v{16+i}, {i*(165888-1024)}, v3")
    a(f"s_mul_i32 s{sCw}, s{sH}, {4*165888}\ns_lshl_b32 s{sSl}, s{sH}, 12\ns_add_u32 s{sSl}, s{sSl}, {LDS_W}")
    def wdma(k):
        a(f"s_add_u32 m0, s{sSl}, {(k % 3) * WSLOT}\ns_add_u32 s50, s{sCw}, {k * 9216}")
        for i in range(4):
            if "nodma" not in OPT:
                a(f"buffer_load_dwordx4 v{16+i}, s[{sW}:{sW+3}], s50 offen offset:{i*1024} lds")
    PL = 176
    a(f"""
    v_bfe_u32 v24, v0, 1, 3
    v_lshlrev_b32 v24, 2, v24
    v_and_b32 v25, 1, v0
    v_add_u32 v24, v24, v25
    v_lshrrev_b32 v25, 5, v0
    v_lshl_add_u32 v24, v25, 1, v24
    v_mul_u32_u24 v{vSx}, 288, v24
    v_bfe_u32 v24, v0, 4, 1
    v_lshl_add_u32 v{vSx}, v24, 4, v{vSx}
    s_mul_i32 s48, s{sH}, 9216
    v_add_u32 v{vSx}, s48, v{vSx}
    v_and_b32 v24, 15, v0
    v_lshlrev_b32 v24, 5, v24
    v_bfe_u32 v26, v0, 2, 1
    v_xor_b32 v26, v26, v25
    v_lshl_add_u32 v24, v26, 4, v24
    v_bfe_u32 v26, v0, 4, 1
    v_lshl_add_u32 v24, v26, 3, v24
    s_lshl_b32 s48, s{sH}, 9
    s_add_u32 s48, s48, {LDS_S}
    v_add_u32 v{vSw}, s48, v24
    v_sub_u32 v{vLo}, 1, v25
    v_bfe_u32 v24, v0, 4, 1
    v_mul_u32_u24 v{vPat}, 544, v24
    v_bfe_u32 v24, v0, 2, 2
    v_lshl_add_u32 v{vPat}, v24, 6, v{vPat}
    v_and_b32 v24, 3, v0
    v_lshl_add_u32 v{vPat}, v24, 3, v{vPat}
    """)
    a(f"""
    v_lshrrev_b32 v24, 3, v0
    v_lshrrev_b32 v26, 4, v0
    v_xor_b32 v24, v24, v26
    v_and_b32 v24, 1, v24
    v_and_b32 v26, 1, v0
    v_lshlrev_b32 v26, 4, v26
    v_mov_b32 v27, 0x3f80
    v_lshlrev_b32 v27, v26, v27
    v_lshlrev_b32 v28, 15, v25
    v_lshlrev_b32 v28, v26, v28
    v_or_b32 v28, v28, v27
    v_bfe_u32 v26, v0, 1, 2
    v_lshl_or_b32 v26, v24, 2, v26
    """)
    for r in range(4):
        a(f"v_cmp_eq_u32 vcc, {r}, v26\ns_nop 1\nv_cndmask_b32 v{ID+r}, 0, v27, vcc\nv_cndmask_b32 v{IJ+r}, 0, v28, vcc")
    srd(a, sF, 14, 15, FL_OFF + FL_SIZE)
    SX, SW0 = 196, 205
    for c in range(9):
        a(f"v_add_u32 v24, {32*c}, v{vSx}\nv_lshrrev_b32 v25, 2, v24\nv_and_b32 v25, 64, v25\nv_xor_b32 v{SX+c}, v24, v25")
    a(f"v_mov_b32 v{SW0}, v{vSw}\nv_add_u32 v{SW0+1}, {SSLOT}, v{vSw}")
    def s_reads(c):
        if "nos" in OPT and c > 0: return
        a(f"""
        ds_read_b128 v[{SB}:{SB+3}], v{SX+c}
        ds_read_b128 v[{SB+4}:{SB+7}], v{SX+c} offset:{4*9216}
        v_add_u32 v25, {8*9216}, v{SX+c}
        ds_read_b128 v[{SB+8}:{SB+11}], v25
        """)
    def s_compute(c, between=None):
        if "nos" in OPT and c > 0:
            if between: between()
            return
        vw = SW0 + (c & 1)
        a("s_setprio 3")
        for k in range(3):
            a(f"v_mfma_f32_16x16x32_bf16 v[{SD+4*k}:{SD+4*k+3}], v[{ID}:{ID+3}], v[{SB+4*k}:{SB+4*k+3}], 0")
        if "hiwr" not in OPT: a("s_setprio 0")
        if between: between()
        a("s_nop 7")
        for k in range(3):
            a(f"v_cvt_pk_bf16_f32 v{SD+4*k}, v{SD+4*k}, v{SD+4*k+1}\nv_cvt_pk_bf16_f32 v{SD+4*k+1}, v{SD+4*k+2}, v{SD+4*k+3}")
            if k == 2: a(f"s_cmp_eq_u32 s{sH}, 3\ns_cbranch_scc1 L_s3_{c}")
            a(f"ds_write_b64 v{vw}, v[{SD+4*k}:{SD+4*k+1}] offset:{2048*k}")
        a(f"L_s3_{c}:")
        if "hiwr" in OPT: a("s_setprio 0")
    PB, PD, PK = 64, 128, 160
    def prod_stage():
        a(f"""
        s_mul_i32 s57, s{sH}, 5120
        s_add_u32 s57, s57, {LDS_W + 2*WSLOT}
        v_lshlrev_b32 v24, 4, v0
        v_add_u32 v24, s57, v24
        """)
        for k in range(5):
            a(f"ds_write_b128 v24, v[{PL+4*k}:{PL+4*k+3}] offset:{1024*k}")
        a("s_waitcnt lgkmcnt(0)")
        for c, e, o in ((0, 0, 1024), (2, 0, 2048), (1, 3072, 2048), (3, 3072, 4096)):
            a(f"v_mul_u32_u24 v26, {o}, v{vLo}\nv_sub_u32 v27, 1, v{vLo}\nv_mul_u32_u24 v27, {e}, v27\nv_add3_u32 v26, v26, v27, v{vPat}")
            a(f"v_add_u32 v26, s57, v26\nv_xor_b32 v27, 32, v26")
            for nh in range(2):
                b = PB + 8 * c + 4 * nh
                for h in range(2):
                    a(f"ds_read_b64_tr_b16 v[{b+2*h}:{b+2*h+1}], v{26+nh} offset:{h*256}")
        a("s_waitcnt lgkmcnt(0)")
    def production():
        a("s_setprio 3")
        for f in range(8):
            a(f"v_mfma_f32_16x16x32_bf16 v[{PD+4*f}:{PD+4*f+3}], v[{IJ}:{IJ+3}], v[{PB+4*f}:{PB+4*f+3}], 0")
        a("s_setprio 0")
        a(f"""
        s_add_u32 s57, s53, s{sH}
        s_and_b32 s58, s57, 1
        s_lshl_b32 s58, s58, 2
        s_lshr_b32 s57, s57, 1
        s_add_u32 s57, s57, s58
        s_lshl_b32 s58, s{sCP}, 3
        s_add_u32 s57, s57, s58
        s_lshl_b32 s57, s57, 11
        s_mul_i32 s58, s{sNG}, 147456
        s_add_u32 s57, s57, s58
        s_cmp_ge_u32 s{sH}, s54
        s_cselect_b32 s57, 0x7f000000, s57
        s_add_u32 s58, s57, {GF_PROD}
        v_and_b32 v26, 15, v0
        v_lshlrev_b32 v26, 4, v26
        v_lshrrev_b32 v27, 5, v0
        v_lshl_add_u32 v26, v27, 8, v26
        v_bfe_u32 v27, v0, 4, 1
        v_lshl_add_u32 v26, v27, 3, v26
        """)
        a("v_mov_b32 v61, v26\ns_mov_b32 s62, s57\ns_mov_b32 s63, s58")
        for f in range(8):
            a(f"v_cvt_pk_bf16_f32 v{PK+2*f}, v{PD+4*f}, v{PD+4*f+1}\nv_cvt_pk_bf16_f32 v{PK+2*f+1}, v{PD+4*f+2}, v{PD+4*f+3}")
    def gf_stores():
        for f in range(8):
            c, nh = f >> 1, f & 1
            so = "s62" if c < 2 else "s63"
            a(f"buffer_store_dwordx2 v[{PK+2*f}:{PK+2*f+1}], v61, s[{sG}:{sG+3}], {so} offen offset:{nh*1024 + (c & 1)*512} sc1")
    a(f"s_cmp_eq_u32 s{sH}, 3\ns_cbranch_scc1 L_noprod")
    if "xfine" in OPT: stamp(a, 6)
    a("s_waitcnt vmcnt(0)")
    if "xfine" in OPT: stamp(a, 7)
    prod_stage()
    if "xfine" in OPT: stamp(a, 8)
    production()
    gf_stores()
    if "xfine" in OPT: stamp(a, 9)
    a("L_noprod:")
    if "xfine" in OPT: stamp(a, 10)
    a("s_barrier")
    if "xfine" in OPT: stamp(a, 11)
    a(f"v_mov_b32 v26, {NOFF}\ns_cmp_lg_u32 s{sH}, 3\ns_cbranch_scc1 L_H_n2\nbuffer_load_dword v60, v26, s[{sD}:{sD+3}], 0 offen sc1\nL_H_n2:")
    s_reads(0)
    a("s_waitcnt lgkmcnt(0)")
    s_compute(0)
    s_reads(1)
    a("s_waitcnt lgkmcnt(0)")
    s_compute(1)
    s_reads(2)
    a("s_waitcnt lgkmcnt(3)")
    if "xfine" in OPT: stamp(a, 12)
    if "xfine" in OPT: stamp(a, 13)
    a("s_barrier")
    if "xfine" in OPT: stamp(a, 14); HF_OFF[0] = True
    for r in range(4): a(f"v_mov_b32 v{120+r}, -1")
    def flag_store(kind):
        a(f"""
        s_mul_i32 s49, s{sNG}, 28
        s_add_u32 s49, s49, s{sMT}
        s_lshl_b32 s49, s49, 7
        """)
        a(f"s_add_u32 s49, s49, {FL_OFF + (0 if kind == 'A' else 12)}\ns_cmp_eq_u32 s{sH}, 3")
        a(f"""
        s_cselect_b32 s49, s49, 0x7f000000
        v_mov_b32 v26, s49
        v_mov_b32 v27, s{sNonce}
        s_mov_b64 exec, 1
        buffer_store_dword v27, v26, s[{sF}:{sF+3}], 0 offen sc1
        s_mov_b64 exec, -1
        """)
    def poison():
        a(f"""
        s_mul_i32 s56, s{sMT}, {9*2*18*512}
        s_lshl_b32 s57, s{sNG}, 10
        s_add_u32 s56, s56, s57
        v_lshlrev_b32 v26, 4, v0
        v_add_u32 v26, s56, v26
        """)
        for i in range(5):
            a(f"s_add_u32 s57, s{sH}, {4*i}\ns_min_u32 s57, s57, 17\ns_mul_i32 s57, s57, {18*512}")
            a(f"buffer_store_dwordx4 v[120:123], v26, s[{sE}:{sE+3}], s57 offen sc1")
    waits = {2: 4, 3: 4, 4: 9, 5: 9, 6: 4, 7: 0}
    for it in range(9):
        if it == 5 and "hfine" in OPT: stamp(a, 1)
        if it == 0:
            a(f"""
            s_waitcnt vmcnt(0)
            s_cmp_lg_u32 s{sH}, 3
            s_cbranch_scc1 L_H_n0
            s_mov_b32 s{sSpin}, 0
            L_H_nspin:
            v_readfirstlane_b32 s{sNonce}, v60
            s_add_u32 s{sSpin}, s{sSpin}, 1
            s_cmp_lg_u32 s{sNonce}, 0
            s_cbranch_scc1 L_H_n0
            s_cmp_ge_u32 s{sSpin}, {SPIN_MAX}
            s_cbranch_scc1 L_H_n0
            s_sleep 4
            v_mov_b32 v26, {NOFF}
            buffer_load_dword v60, v26, s[{sD}:{sD+3}], 0 offen sc1
            s_waitcnt vmcnt(0)
            s_branch L_H_nspin
            L_H_n0:
            """)
        if it == 1: flag_store("A")
        if it == 6:
            gf_flag_addr(a)
            a(f"s_cmp_lg_u32 s{sH}, 3\ns_cbranch_scc1 L_H_np")
            a(f"buffer_load_dword v124, v63, s[{sF}:{sF+3}], 0 offen sc1\nL_H_np:")
        if 1 <= it <= 7:
            a("s_waitcnt lgkmcnt(0)")
            s_compute(it + 1, (lambda k=it+2: wdma(k)) if it <= 6 else None)
        if it == 5 and "hfine" in OPT: stamp(a, 7)
        if 1 <= it <= 6: s_reads(it + 2)
        if it == 4: poison()
        if it == 5 and "hfine" in OPT: stamp(a, 3)
        if it in waits: a(f"s_waitcnt vmcnt({waits[it]}) lgkmcnt({3 if it <= 6 else 0})")
        elif it == 1: a("s_waitcnt lgkmcnt(3)")
        if it == 5 and "hfine" in OPT: stamp(a, 4)
        if it == 7:
            a(f"""
            s_cmp_lg_u32 s{sH}, 3
            s_cbranch_scc1 L_H_f4
            s_mov_b32 s{sSpin}, 0
            L_H_fspin:
            v_cmp_ne_u32 vcc, s{sNonce}, v124
            s_add_u32 s{sSpin}, s{sSpin}, 1
            s_cmp_ge_u32 s{sSpin}, {SPIN_MAX}
            s_cbranch_scc1 L_H_f4
            s_cbranch_vccz L_H_f4
            s_sleep 2
            buffer_load_dword v124, v63, s[{sF}:{sF+3}], 0 offen sc1
            s_waitcnt vmcnt(0)
            s_branch L_H_fspin
            L_H_f4:
            """)
        a("s_barrier")
        if it == 5 and "hfine" in OPT: stamp(a, 5)
        if it == 6 and "hfine" in OPT: stamp(a, 6)
    if "hfine" not in OPT: stamp(a, 1)
    if "hfine" in OPT: HF_OFF[0] = True
    flag_store("B")
    a(f"v_lshlrev_b32 v24, 4, v0\ns_mov_b32 s50, s{sH}")
    a(f"""
    L_wo:
    s_lshl_b32 s51, s50, 10
    s_add_u32 m0, s51, {LDS_W}
    s_add_u32 s50, s50, 4
    {"" if "b_nowo" in OPT else f"buffer_load_dwordx4 v24, s[{sWo}:{sWo+3}], s51 offen lds"}
    s_sleep 2
    s_cmp_lt_u32 s50, 41
    s_cbranch_scc1 L_wo
    s_barrier
    """)
    a(f"s_mul_i32 s48, s{sB}, {XB_SIZE}\ns_add_u32 s10, s10, s48\ns_addc_u32 s11, s11, 0")
    srd(a, sO, 10, 11, XB_SIZE)
    a(f"""
    v_mul_u32_u24 v62, 28, v0
    v_add_u32 v62, s{sMT}, v62
    v_lshlrev_b32 v62, 7, v62
    v_add_u32 v62, {FL_OFF + 12}, v62
    s_cmp_lg_u32 s{sH}, 3
    s_cbranch_scc1 L_fbs
    s_mov_b32 s{sSpin}, 0
    s_mov_b64 exec, 0x1ff
    L_fb:
    buffer_load_dword v61, v62, s[{sF}:{sF+3}], 0 offen sc1
    s_add_u32 s{sSpin}, s{sSpin}, 1
    s_waitcnt vmcnt(0)
    v_cmp_ne_u32 vcc, s{sNonce}, v61
    s_cmp_ge_u32 s{sSpin}, {SPIN_MAX}
    s_cbranch_scc1 L_fbd
    s_cbranch_vccz L_fbd
    s_sleep 4
    s_branch L_fb
    L_fbd:
    s_mov_b64 exec, -1
    L_fbs:
    s_waitcnt vmcnt(0)
    s_barrier
    """)
    a(f"""
    v_lshrrev_b32 v24, 2, v0
    v_mul_u32_u24 v24, 288, v24
    v_and_b32 v25, 3, v0
    v_lshlrev_b32 v25, 3, v25
    v_add_u32 v24, v24, v25
    s_lshl_b32 s48, s{sH}, 5
    s_add_u32 s48, s48, {LDS_W}
    v_add_u32 v24, s48, v24
    v_add_u32 v25, {8*32}, v24
    """)
    for d, (va, off) in enumerate(((24, 0), (24, 128), (25, 0))):
        base = WO + 18 * d
        for P in range(4):
            a(f"ds_read_b64_tr_b16 v[{base+4*P}:{base+4*P+1}], v{va} offset:{off + 32*P*288}")
            a(f"ds_read_b64_tr_b16 v[{base+4*P+2}:{base+4*P+3}], v{va} offset:{off + (32*P+16)*288}")
        a(f"ds_read_b64_tr_b16 v[{base+16}:{base+17}], v{va} offset:{off + 128*288}")
        a("s_waitcnt lgkmcnt(0)")
    a(f"""
    v_bfe_u32 v41, v0, 1, 2
    v_lshlrev_b32 v41, 2, v41
    v_and_b32 v42, 1, v0
    v_add_u32 v41, v41, v42
    v_bfe_u32 v42, v0, 3, 1
    v_mul_u32_u24 v42, 144, v42
    v_add_u32 v41, v41, v42
    s_mul_i32 s48, s{sMTL}, 288
    s_lshl_b32 s49, s{sNG}, 4
    s_add_u32 s48, s48, s49
    v_add_u32 v41, s48, v41
    v_mul_u32_u24 v41, 288, v41
    v_lshrrev_b32 v42, 4, v0
    v_lshlrev_b32 v42, 3, v42
    v_add_u32 v41, v41, v42
    s_lshl_b32 s48, s{sH}, 5
    v_add_u32 v41, s48, v41
    """)
    a(f"s_and_b32 s76, s{sH}, 1\ns_lshr_b32 s77, s{sH}, 1")
    act_consts(a, "s76", 78, 79, 43)
    a(f"""
    s_mul_i32 s49, s{sMT}, {9*2*18*512}
    s_lshl_b32 s48, s48, 9
    s_add_u32 s48, s48, s49
    s_mul_i32 s49, s77, {2*18*512}
    s_add_u32 s48, s48, s49
    v_lshlrev_b32 v44, 3, v0
    v_add_u32 v44, s48, v44
    s_mul_i32 s48, s76, 9216
    s_lshl_b32 s49, s77, 10
    s_add_u32 s48, s48, s49
    s_add_u32 s48, s48, {LDS_Y0}
    v_lshlrev_b32 v45, 4, v0
    v_add_u32 v45, s48, v45
    """)
    a(f"v_and_b32 v24, 7, v0\nv_lshlrev_b32 v24, 2, v24\nv_add_u32 v24, {LDS_CNT}, v24\nv_mov_b32 v25, 0\nds_write_b32 v24, v25\ns_waitcnt lgkmcnt(0)")
    a("s_barrier")
    stamp(a, 2)
    a("s_barrier")
    for i in range(5):
        a(f"ds_read_b128 v[{128+4*i}:{131+4*i}], v45 offset:{i*2048}")
        a(f"ds_read_b128 v[{148+4*i}:{151+4*i}], v45 offset:{i*2048 + 2*9216}")
    for i in range(5):
        a(f"s_waitcnt lgkmcnt({8-2*i})")
        for r in range(4): a(f"v_add_f32 v{128+4*i+r}, v{128+4*i+r}, v{148+4*i+r}")
    activation(a, list(range(128, 148)), 78, 79, 43, 20)
    for i in range(5):
        if i == 4: a("s_cmp_eq_u32 s77, 1\ns_cbranch_scc1 L_y0_done")
        a(f"s_mov_b32 s49, {i*2*2*18*512}")
        a(f"buffer_store_dwordx2 v[{20+2*i}:{21+2*i}], v44, s[{sE}:{sE+3}], s49 offen sc1")
    a("L_y0_done:")
    stamp(a, 3)
    z_unit_setup(a, 0, LDS_Z)
    a(f"s_add_u32 s60, s{sH}, 4\ns_cmp_eq_u32 s{sH}, 0\ns_cselect_b32 s61, 8, s{sH}\ns_sleep 20")
    z_units(a, [sH, 60, 61], "q0", 12)
    if "qfine" in OPT: stamp(a, 9)
    def meet(word, lbl):
        a(f"""
        s_waitcnt lgkmcnt(0)
        v_mov_b32 v24, {LDS_CNT + 4*word}
        v_mov_b32 v25, 1
        s_mov_b64 exec, 1
        ds_add_u32 v24, v25
        s_mov_b64 exec, -1
        s_mov_b32 s{sSpin}, 0
        L_{lbl}c:
        ds_read_b32 v25, v24
        s_add_u32 s{sSpin}, s{sSpin}, 1
        s_waitcnt lgkmcnt(0)
        v_readfirstlane_b32 s48, v25
        s_cmp_ge_u32 s{sSpin}, {SPIN_MAX}
        s_cbranch_scc1 L_{lbl}cd
        s_cmp_lt_u32 s48, 4
        s_cbranch_scc1 L_{lbl}c
        L_{lbl}cd:
        """)
    meet(0, "q0")
    if "qfine" in OPT: stamp(a, 10)
    ZR = 160
    for P in range(4):
        a(f"ds_read_b128 v[{ZR+4*P}:{ZR+4*P+3}], v15 offset:{P*1024}")
    a(f"ds_read_b64 v[{ZR+16}:{ZR+17}], v15 offset:4096")
    a("s_waitcnt lgkmcnt(0)")
    def proj(zr, qoff, lbl):
        a("s_setprio 3")
        for P in range(4):
            for d in range(3):
                base = WO + 18 * d; acc = 20 + 4 * d
                c = "0" if P == 0 else f"v[{acc}:{acc+3}]"
                a(f"v_mfma_f32_16x16x32_bf16 v[{acc}:{acc+3}], v[{base+4*P}:{base+4*P+3}], v[{zr+4*P}:{zr+4*P+3}], {c}")
        a("s_nop 7")
        for d in range(3):
            base = WO + 18 * d; acc = 20 + 4 * d
            a(f"v_mfma_f32_16x16x16_bf16 v[{acc}:{acc+3}], v[{base+16}:{base+17}], v[{zr+16}:{zr+17}], v[{acc}:{acc+3}]")
        a("s_setprio 0\ns_nop 7")
        for d in range(3):
            acc = 20 + 4 * d
            if d == 2: a(f"s_cmp_lg_u32 s{sH}, 0\ns_cbranch_scc1 L_pj_{lbl}")
            a(f"v_cvt_pk_bf16_f32 v{32+2*d}, v{acc}, v{acc+1}\nv_cvt_pk_bf16_f32 v{33+2*d}, v{acc+2}, v{acc+3}")
            a(f"buffer_store_dwordx2 v[{32+2*d}:{33+2*d}], v41, s[{sO}:{sO+3}], 0 offen offset:{qoff + 128*d}")
        a(f"L_pj_{lbl}:")
    if "qfine" in OPT: stamp(a, 11)
    proj(ZR, 0, "q0")
    stamp(a, 4)
    z_unit_setup(a, 1, LDS_Y0)
    a(f"s_add_u32 s60, s{sH}, 4\ns_cmp_eq_u32 s{sH}, 0\ns_cselect_b32 s61, 8, s{sH}")
    z_units(a, [sH, 60, 61], "q1", 2)
    meet(1, "q1")
    stamp(a, 5)
    for P in range(4):
        a(f"ds_read_b128 v[{ZR+4*P}:{ZR+4*P+3}], v15 offset:{P*1024}")
    a(f"ds_read_b64 v[{ZR+16}:{ZR+17}], v15 offset:4096")
    a("s_waitcnt lgkmcnt(0)")
    proj(ZR, 576, "q1")
    stamp(a, 6)
    a("s_waitcnt vmcnt(0)")
    if "dur" in OPT:
        a(f"""
        s_memrealtime s[100:101]
        s_waitcnt lgkmcnt(0)
        s_cmp_lg_u32 s{sH}, 0
        s_cbranch_scc1 L_nodur
        s_mov_b32 s48, -1
        s_cmp_eq_u32 s2, 0
        s_cselect_b32 s48, 8, s48
        s_cmp_eq_u32 s2, 100
        s_cselect_b32 s48, 16, s48
        s_cmp_eq_u32 s2, 251
        s_cselect_b32 s48, 24, s48
        v_mov_b32 v4, s98
        v_mov_b32 v5, s100
        v_mov_b32 v6, s48
        s_mov_b64 exec, 1
        buffer_store_dwordx2 v[4:5], v6, s[{sD}:{sD+3}], 0 offen
        s_waitcnt vmcnt(0)
        s_mov_b64 exec, -1
        L_nodur:
        """)
    stamp(a, 7)
    stamp(a, 8)
    HF_OFF[0] = False
    stamp_flush(a)
    a("s_endpgm")
def gf_flag_addr(a):
    a(f"""
    v_min_u32 v63, 27, v0
    s_mul_i32 s48, s{sNG}, 28
    v_add_u32 v63, s48, v63
    v_lshlrev_b32 v63, 7, v63
    v_add_u32 v63, {FL_OFF}, v63
    """)
sys.stdout.write(gen())
```

```python
import sys
from asmlib import *
OPT = set(sys.argv[1].split(",")) if len(sys.argv) > 1 else set()
OPT.add("poisB")
STAMP = "stamp" in OPT
NAME = "standalone__autoregressive_conv_wavenet__speech_kernel"
XROWS = 352
LDS_W = XROWS * 288
WSLOT = 16384
LDS_S = LDS_W + 3 * WSLOT
SSLOT = 176 * 32
LDS_TOTAL = 163840
LDS_Y0 = LDS_W
LDS_Y1 = LDS_W + 36864
LDS_Z = LDS_W + 57344
LDS_SP = LDS_S + 2 * SSLOT
LDS_CNT = LDS_Y1 + 4096
GF_PROD = 9 * 72 * 2048
GF_SIZE = 2 * GF_PROD
E_OFF = 0x400000
E_SIZE = 28 * 9 * 2 * 18 * 512
FL_OFF = 0x900000
FL_SIZE = 256 * 128
W_SIZE = 31 * 144 * 288 * 2
XB_SIZE = 4000 * 288
STAMP_OFF = 0x1000000
SPIN_MAX = 200000
NOFF = 128 if 'dur' in OPT else 0
sX, sW, sG, sE, sO, sWo, sD, sF = 16, 20, 24, 28, 32, 36, 84, 88
sNG, sMT, sMTL, sB, sC0, sWV = 42, 43, 44, 45, 46, 47
sIt = 63
sT = 68
sNonce = 80
sSpin = 81
sCP = 82
ST0 = 92
def srd(a, d, lo, hi, size):
    a(f"s_mov_b32 s{d}, s{lo}\ns_and_b32 s{d+1}, s{hi}, 0xffff\ns_mov_b32 s{d+2}, {size}\ns_mov_b32 s{d+3}, 0x20000")
HF_OFF = [False]
def stamp(a, idx):
    if not STAMP or HF_OFF[0]: return
    import inspect
    if "xfine" in OPT and idx != 0 and 'xfine' not in inspect.stack()[1].code_context[0]: return
    a(f"s_memtime s[{ST0}:{ST0+1}]\ns_memrealtime s[{ST0+2}:{ST0+3}]\ns_waitcnt lgkmcnt(0)")
    a(f"v_writelane_b32 v253, s{ST0}, {2*idx}\nv_writelane_b32 v253, s{ST0+2}, {2*idx+1}")
def stamp_dyn(a, base, sreg):
    if not STAMP or HF_OFF[0] or "lite" in OPT: return
    a(f"s_memtime s[{ST0}:{ST0+1}]\ns_memrealtime s[{ST0+2}:{ST0+3}]\ns_waitcnt lgkmcnt(0)")
    a(f"s_lshl_b32 s96, s{sreg}, 1\ns_add_u32 m0, s96, {2*base}\ns_nop 3")
    a(f"v_writelane_b32 v253, s{ST0}, m0\ns_add_u32 m0, m0, 1\ns_nop 3\nv_writelane_b32 v253, s{ST0+2}, m0")
def stamp_dyn2(a, base, sreg, k):
    if not STAMP or HF_OFF[0]: return
    a(f"s_memtime s[{ST0}:{ST0+1}]\ns_memrealtime s[{ST0+2}:{ST0+3}]\ns_waitcnt lgkmcnt(0)")
    a(f"s_lshl_b32 s96, s{sreg}, 2\ns_add_u32 m0, s96, {2*(base+k)}\ns_nop 3")
    a(f"v_writelane_b32 v253, s{ST0}, m0\ns_add_u32 m0, m0, 1\ns_nop 3\nv_writelane_b32 v253, s{ST0+2}, m0")
def stamp_flush(a):
    if not STAMP: return
    a(f"""
    s_mov_b32 s{ST0}, s14
    s_and_b32 s{ST0+1}, s15, 0xffff
    s_mov_b32 s{ST0+2}, 0x2000000
    s_mov_b32 s{ST0+3}, 0x20000
    s_lshl_b32 s48, s2, 3
    s_add_u32 s48, s48, s{sWV}
    s_lshl_b32 s48, s48, 7
    s_add_u32 s48, s48, {STAMP_OFF}
    v_lshlrev_b32 v252, 2, v0
    v_add_u32 v252, s48, v252
    s_mov_b64 exec, 0xffffffff
    buffer_store_dword v253, v252, s[{ST0}:{ST0+3}], 0 offen
    s_waitcnt vmcnt(0)
    s_mov_b64 exec, -1
    """)
def bf16_op(a, op, dst, xa, xb, t):
    a(f"v_lshlrev_b32 v{t}, 16, v{xa}")
    a(f"v_lshlrev_b32 v{t+1}, 16, v{xb}")
    a(f"v_and_b32 v{t+2}, 0xffff0000, v{xa}")
    a(f"v_and_b32 v{t+3}, 0xffff0000, v{xb}")
    a(f"{op} v{t}, v{t}, v{t+1}")
    a(f"{op} v{t+2}, v{t+2}, v{t+3}")
    a(f"v_cvt_pk_bf16_f32 v{dst}, v{t}, v{t+2}")
def next_mod(a, s, n):
    a(f"s_add_u32 s{s}, s{s}, 1\ns_cmp_eq_u32 s{s}, {n}\ns_cselect_b32 s{s}, 0, s{s}")
def tr_lane(a, vd, vt, vt2):
    a(f"""
    v_lshrrev_b32 v{vd}, 5, v0
    v_lshlrev_b32 v{vd}, 10, v{vd}
    v_bfe_u32 v{vt}, v0, 4, 1
    v_mul_u32_u24 v{vt}, 544, v{vt}
    v_add_u32 v{vd}, v{vd}, v{vt}
    v_bfe_u32 v{vt}, v0, 2, 2
    v_lshlrev_b32 v{vt}, 6, v{vt}
    v_add_u32 v{vd}, v{vd}, v{vt}
    v_and_b32 v{vt}, 3, v0
    v_lshlrev_b32 v{vt}, 3, v{vt}
    v_add_u32 v{vd}, v{vd}, v{vt}
    """)
def activation(a, regs, sA, sS1, vS0, dst):
    for r in regs: a(f"v_mul_f32 v{r}, s{sA}, v{r}")
    for r in regs: a(f"v_exp_f32 v{r}, v{r}")
    for r in regs: a(f"v_add_f32 v{r}, 1.0, v{r}")
    for r in regs: a(f"v_rcp_f32 v{r}, v{r}")
    a("s_nop 0")
    for r in regs: a(f"v_fma_f32 v{r}, v{r}, s{sS1}, v{vS0}")
    for k in range(len(regs) // 2):
        a(f"v_cvt_pk_bf16_f32 v{dst+k}, v{regs[2*k]}, v{regs[2*k+1]}")
    for k in range(len(regs) // 2):
        a(f"v_min_u32 v{dst+k}, 0xfffffffe, v{dst+k}")
def activation_pk(a, pairs, sA, sS1, sOne, vS0, dst):
    for r in pairs: a(f"v_pk_mul_f32 v[{r}:{r+1}], v[{r}:{r+1}], s[{sA}:{sA+1}]")
    for r in pairs: a(f"v_exp_f32 v{r}, v{r}\nv_exp_f32 v{r+1}, v{r+1}")
    for r in pairs: a(f"v_pk_add_f32 v[{r}:{r+1}], v[{r}:{r+1}], s[{sOne}:{sOne+1}]")
    for r in pairs: a(f"v_rcp_f32 v{r}, v{r}\nv_rcp_f32 v{r+1}, v{r+1}")
    for r in pairs: a(f"v_pk_fma_f32 v[{r}:{r+1}], v[{r}:{r+1}], s[{sS1}:{sS1+1}], v[{vS0}:{vS0+1}]")
    for k, r in enumerate(pairs): a(f"v_cvt_pk_bf16_f32 v{dst+k}, v{r}, v{r+1}")
    for k in range(len(pairs)): a(f"v_min_u32 v{dst+k}, 0xfffffffe, v{dst+k}")

def act_consts(a, nh_s, sA, sS1, vS0):
    a(f"""
    s_lshl_b32 s48, s{sNG}, 1
    s_add_u32 s48, s48, {nh_s}
    s_cmp_lt_u32 s48, 9
    s_mov_b32 s{sA}, 0xbfb8aa3b
    s_cselect_b32 s{sA}, 0xc038aa3b, s{sA}
    s_cselect_b32 s{sS1}, 2.0, 1.0
    s_cselect_b32 s49, -1.0, 0
    v_mov_b32 v{vS0}, s49
    """)
def z_mul(a, dst, f, g, t):
    bf16_op(a, "v_mul_f32", dst, f, g, t)
MAP_B = """s_mul_i32 s51, s48, 7282
    s_lshr_b32 s51, s51, 16
    s_mul_i32 s49, s51, 9
    s_sub_u32 s42, s48, s49"""
MAP_A = """s_mul_i32 s42, s48, 9363
    s_lshr_b32 s42, s42, 16
    s_mul_i32 s49, s42, 7
    s_sub_u32 s51, s48, s49"""
MAPCODE = MAP_B if "mapb" in OPT else MAP_A
def gen():
    a = Asm()
    a(f"; @launch grid=(252,1,1) block=(512,1,1) lds={LDS_TOTAL}")
    a('.amdgcn_target "amdgcn-amd-amdhsa--gfx950"')
    a(".text")
    a(f".globl {NAME}")
    kernel_header(a, NAME)
    a("s_cmp_ge_u32 s2, 252\ns_cbranch_scc1 L_end")
    a("""
    s_load_dwordx4 s[4:7], s[0:1], 0
    s_load_dwordx4 s[8:11], s[0:1], 16
    s_load_dwordx4 s[12:15], s[0:1], 32
    s_getpc_b64 s[40:41]
    L_pc:
    s_lshr_b32 s48, s2, 3
    s_mul_i32 s48, s48, 6
    v_add_u32 v1, s48, v0
    v_lshlrev_b32 v1, 7, v1
    v_min_u32 v1, L_code_end-L_pc-4, v1
    s_mov_b64 exec, 0x3f
    global_load_dword v254, v1, s[40:41]
    s_mov_b64 exec, -1
    """)
    if STAMP: a("v_mov_b32 v253, 0")
    if "dur" in OPT: a("s_memrealtime s[98:99]")
    stamp(a, 0)
    a(f"""
    v_lshrrev_b32 v1, 6, v0
    v_and_b32 v0, 63, v0
    v_readfirstlane_b32 s{sWV}, v1
    s_and_b32 s48, s2, 7
    s_lshr_b32 s49, s2, 3
    s_and_b32 s50, s48, 3
    s_lshr_b32 s48, s48, 2
    s_lshl_b32 s48, s48, 5
    s_add_u32 s48, s48, s49
    {MAPCODE}
    s_mul_i32 s{sMT}, s50, 7
    s_add_u32 s{sMT}, s{sMT}, s51
    s_lshr_b32 s{sB}, s50, 1
    s_and_b32 s50, s50, 1
    s_mul_i32 s50, s50, 7
    s_add_u32 s{sMTL}, s50, s51
    s_mul_i32 s52, s{sMT}, 7282
    s_lshr_b32 s52, s52, 16
    s_mul_i32 s49, s52, 9
    s_sub_u32 s{sCP}, s{sMT}, s49
    s_mov_b32 s{sC0}, 0
    """)
    a(f"""
    s_cmp_eq_u32 s{sCP}, 0
    s_cselect_b32 s55, 2, 3
    s_mul_i32 s53, s52, s55
    s_sub_u32 s54, 8, s53
    s_min_u32 s54, s54, s55
    """)
    a(f"""
    v_lshrrev_b32 v3, 2, v0
    v_mul_u32_u24 v3, 576, v3
    v_lshrrev_b32 v4, 5, v0
    v_lshlrev_b32 v4, 1, v4
    v_xor_b32 v4, v4, v0
    v_and_b32 v4, 3, v4
    v_lshlrev_b32 v4, 4, v4
    s_lshl_b32 s48, s{sNG}, 6
    v_add3_u32 v3, v3, v4, s48
    """)
    a("""
    v_lshrrev_b32 v12, 2, v0
    v_and_b32 v12, 4, v12
    v_xor_b32 v12, v12, v0
    v_lshlrev_b32 v12, 4, v12
    """)
    a("s_waitcnt lgkmcnt(0)")
    if "pfine" in OPT or "xfine" in OPT: stamp(a, 1)
    a(f"s_mul_i32 s48, s{sB}, {XB_SIZE}\ns_add_u32 s4, s4, s48\ns_addc_u32 s5, s5, 0")
    srd(a, sX, 4, 5, XB_SIZE)
    srd(a, sW, 6, 7, W_SIZE)
    srd(a, sD, 12, 13, 256)
    a(f"""
    s_cmp_ge_u32 s2, {1 if "nonce1" in OPT else 8}
    s_cbranch_scc1 L_nononce
    s_cmp_lg_u32 s{sWV}, 7
    s_cbranch_scc1 L_nononce
    s_memrealtime s[56:57]
    s_waitcnt lgkmcnt(0)
    s_or_b32 s56, s56, 1
    v_mov_b32 v4, s56
    v_mov_b32 v5, 0
    v_mov_b32 v6, {NOFF}
    s_mov_b64 exec, 1
    buffer_atomic_cmpswap v[4:5], v6, s[{sD}:{sD+3}], 0 offen
    s_mov_b64 exec, -1
    L_nononce:
    """)
    PL = 176
    def x_loop(lbl, end_s):
        a(f"""
        {lbl}:
        s_cmp_ge_u32 s50, 99
        s_cselect_b32 s51, 99, 0
        s_sub_u32 s50, s50, s51
        s_lshl_b32 s51, s50, 10
        s_mov_b32 m0, s51
        s_add_i32 s51, s51, s49
        s_cmp_lt_i32 s51, 0
        s_cselect_b32 s58, 0x7fff0000, 0
        v_or_b32 v11, s58, v12
        s_max_i32 s51, s51, 0
        s_add_u32 s50, s50, 4
        s_add_u32 s59, s59, 4
        buffer_load_dwordx4 v11, s[{sX}:{sX+3}], s51 offen lds
        s_cmp_lt_u32 s59, {end_s}
        s_cbranch_scc1 {lbl}
        """)
    a(f"""
    s_mul_i32 s49, s{sMTL}, {288*288}
    s_sub_i32 s49, s49, {64*288}
    s_cmp_ge_u32 s{sWV}, 4
    s_cbranch_scc1 L_hfirst
    s_mov_b32 s59, s{sWV}
    s_mul_i32 s60, s{sNG}, 11
    s_add_u32 s50, s60, s59
    """)
    x_loop("L_xl1", 99)
    if "xfine" in OPT: stamp(a, 3)
    a("s_branch L_xdone\nL_hfirst:")
    a(f"""
    s_sub_u32 s61, s{sWV}, 4
    s_add_u32 s56, s53, s61
    s_lshl_b32 s56, s56, 1
    s_mul_i32 s57, s56, 165888
    s_mul_i32 s58, s{sCP}, 9216
    s_add_u32 s57, s57, s58
    s_sub_u32 s58, s57, 82944
    s_cmp_eq_u32 s56, 0
    s_cselect_b32 s58, 0, s58
    s_cselect_b32 s59, 0x7fff0000, 0
    s_cmp_ge_u32 s61, s54
    s_cselect_b32 s60, 0x7fff0000, 0
    s_or_b32 s59, s59, s60
    v_or_b32 v24, s59, v3
    v_or_b32 v25, s60, v3
    s_cmp_eq_u32 s61, 3
    s_cbranch_scc1 L_h3first
    buffer_load_dwordx4 v[{PL}:{PL+3}], v25, s[{sW}:{sW+3}], s57 offen
    buffer_load_dwordx4 v[{PL+4}:{PL+7}], v24, s[{sW}:{sW+3}], s58 offen
    s_add_u32 s58, s57, 82944
    buffer_load_dwordx4 v[{PL+8}:{PL+11}], v25, s[{sW}:{sW+3}], s58 offen
    s_add_u32 s58, s57, 165888
    buffer_load_dwordx4 v[{PL+12}:{PL+15}], v25, s[{sW}:{sW+3}], s58 offen
    s_add_u32 s58, s57, 248832
    buffer_load_dwordx4 v[{PL+16}:{PL+19}], v25, s[{sW}:{sW+3}], s58 offen
    s_branch L_xdone
    L_h3first:
    """)
    a("L_xdone:")
    if "pfine" in OPT: stamp(a, 2)
    srd(a, sWo, 8, 9, 144 * 288)
    srd(a, sG, 14, 15, GF_SIZE)
    a(f"s_add_u32 s48, s14, {E_OFF}\ns_addc_u32 s49, s15, 0")
    srd(a, sE, 48, 49, E_SIZE)
    a(f"s_cmp_ge_u32 s{sWV}, 4\ns_cbranch_scc1 L_helper")
    gen_mfma(a)
    a("L_helper:")
    gen_helper(a)
    a("L_end:\ns_endpgm\nL_code_end:")
    a('.section .rodata,"a"')
    a(".p2align 6")
    kernel_desc(a, NAME, 256)
    return a.text()
M_, Y_ = 16, 52
XF = 88
GR = 136
WA, WB = 184, GR + 32
vS0, vS1r, vW, vG, vX, vXn, vXb, vWb, vPt = 2, 3, 4, 5, 6, 7, 8, 9, 13
vW0 = 14
sSlotW = 61
TW, TR, TE, TF, TS = 200, 201, 202, 206, 204
sGo0, sGo1, sDx = 66, 67, 76
class Sched:
    def __init__(self, a):
        self.a = a; self.lds = []; self.vm = []
    def lds_issue(self, tag): self.lds.append(tag)
    def vm_issue(self, tag): self.vm.append(tag)
    def need(self, ltags=(), vtags=()):
        parts = []
        li = max((i for i, t in enumerate(self.lds) if t in ltags), default=-1)
        if li >= 0:
            n = min(len(self.lds) - 1 - li, 15)
            parts.append(f"lgkmcnt({n})")
            self.lds = self.lds[len(self.lds) - n:] if n > 0 else []
        vi = max((i for i, t in enumerate(self.vm) if t in vtags), default=-1)
        if vi >= 0:
            n = len(self.vm) - 1 - vi
            parts.append(f"vmcnt({n})")
            self.vm = self.vm[len(self.vm) - n:] if n > 0 else []
        if parts:
            self.a("s_waitcnt " + " ".join(parts))
def chunk_order():
    return [(sp, i - 3 + sp, i) for i in range(12) for sp in range(4) if 0 <= i - 3 + sp <= 8]
LAST_USE = {}
for n_, (s_, T_, i_) in enumerate(chunk_order()): LAST_USE[i_] = n_

def emit_chunk(a, sc, acc, wreg, wtags, fillers, pre=None, lookahead=5):
    order = chunk_order()
    for n, (s, T, i) in enumerate(order):
        if pre is not None:
            for f in pre[n]: f()
        pend_l = set(sc.lds); pend_v = set(sc.vm)
        now_l = ({f"x{i}"} | set(wtags[s][0])) & pend_l
        now_v = set(wtags[s][1]) & pend_v
        if now_l or now_v:
            lt = set()
            for (s2, T2, i2) in order[n:n + lookahead]:
                lt |= {f"x{i2}"} | set(wtags[s2][0])
            lt &= pend_l
            sc.need(lt if now_l else (), now_v)
        d = acc + 4 * T
        a(f"v_mfma_f32_16x16x32_bf16 v[{d}:{d+3}], v[{wreg+4*s}:{wreg+4*s+3}], v[{XF+4*i}:{XF+4*i+3}], v[{d}:{d+3}]")
        for f in fillers[n]: f()

def place(items, start, step=1, ngaps=36):
    g = [[] for _ in range(ngaps)]
    for k, it in enumerate(items):
        g[start + k * step].append(it)
    return g
def merge(*gs):
    return [sum((g[n] for g in gs), []) for n in range(len(gs[0]))]
def gen_mfma(a):
    ins = lambda t: (lambda: a(t))
    a(f"v_mov_b32 v{vW0}, v3")
    for i in range(1, 4):
        a(f"v_add_u32 v{16+i}, {i*(165888-1024)}, v3")
    a(f"""
    s_mul_i32 s48, s{sWV}, {4*165888}
    s_lshl_b32 s49, s{sWV}, 12
    s_add_u32 m0, s49, {LDS_W}
    s_nop 0
    buffer_load_dwordx4 v3, s[{sW}:{sW+3}], s48 offen lds
    """)
    for i in range(1, 4):
        a(f"buffer_load_dwordx4 v{16+i}, s[{sW}:{sW+3}], s48 offen offset:{i*1024} lds")
    if "pfine" in OPT: stamp(a, 3)
    a("s_setprio 1")
    a(f"s_lshr_b32 s{sT}, s{sWV}, 1\ns_and_b32 s{sT+1}, s{sWV}, 1")
    a(f"""
    v_bfe_u32 v10, v0, 1, 2
    v_bfe_u32 v11, v0, 3, 1
    v_mul_u32_u24 v11, 36, v11
    v_add_u32 v10, v10, v11
    v_lshrrev_b32 v11, 5, v0
    v_sub_u32 v10, v10, v11
    s_lshl_b32 s{sT+2}, s{sT}, 1
    s_sub_u32 s{sT+2}, 4, s{sT+2}
    v_add_u32 v10, s{sT+2}, v10
    v_and_b32 v11, 1, v0
    v_bfe_u32 v12, v0, 4, 1
    v_lshlrev_b32 v12, 4, v12
    v_lshl_add_u32 v15, v10, 2, v11
    v_mul_u32_u24 v{vXb}, 288, v15
    v_add_u32 v{vXb}, v{vXb}, v12
    v_lshl_add_u32 v15, v10, 1, v11
    v_bfe_u32 v10, v15, 2, 1
    v_lshlrev_b32 v10, 4, v10
    v_xor_b32 v10, v10, v12
    v_lshl_add_u32 v{vS0}, v15, 5, v10
    v_add_u32 v{vS0}, {LDS_S}, v{vS0}
    v_add_u32 v{vS1r}, {SSLOT}, v{vS0}
    """)
    tr_lane(a, vWb, 10, 11)
    a(f"""
    s_lshl_b32 s{sT+2}, s{sT+1}, 5
    v_xor_b32 v{vWb}, s{sT+2}, v{vWb}
    s_lshl_b32 s{sT+2}, s{sT}, 11
    s_add_u32 s{sT+2}, s{sT+2}, {LDS_W}
    v_add_u32 v{vWb}, s{sT+2}, v{vWb}
    s_mul_i32 s{sT+2}, s{sNG}, 147456
    s_lshl_b32 s{sT+3}, s{sT}, 13
    s_add_u32 s{sT+2}, s{sT+2}, s{sT+3}
    s_lshl_b32 s{sT+3}, s{sT+1}, 10
    s_add_u32 s{sT+2}, s{sT+2}, s{sT+3}
    v_lshlrev_b32 v{vG}, 4, v0
    v_add_u32 v{vG}, s{sT+2}, v{vG}
    """)
    a(f"""
    s_mov_b32 s{sT+5}, s{sT}
    s_mul_i32 s48, s{sWV}, 5120
    s_add_u32 s48, s48, {LDS_Y1}
    v_lshlrev_b32 v10, 4, v0
    v_add_u32 v{TW}, s48, v10
    s_xor_b32 s49, s{sWV}, 2
    s_mul_i32 s48, s49, 5120
    s_add_u32 s48, s48, {LDS_Y1}
    v_add_u32 v{TR}, s48, v10
    s_lshl_b32 s48, s{sWV}, 2
    s_add_u32 s48, s48, {LDS_CNT + 16}
    v_mov_b32 v{TF}, s48
    s_lshl_b32 s48, s49, 2
    s_add_u32 s48, s48, {LDS_CNT + 16}
    v_mov_b32 v{TF+1}, s48
    """)
    act_consts(a, f"s{sT+1}", 84, 86, TS)
    a(f"""
    s_mov_b32 s85, s84
    s_mov_b32 s87, s86
    s_mov_b32 s88, 1.0
    s_mov_b32 s89, 1.0
    v_mov_b32 v{TS+1}, v{TS}
    s_mul_i32 s49, s{sMT}, {9*2*18*512}
    s_lshl_b32 s48, s48, 9
    s_add_u32 s48, s48, s49
    s_add_u32 s48, s48, {18*512}
    s_mul_i32 s49, s{sT}, {2*18*512}
    s_add_u32 s48, s48, s49
    v_lshlrev_b32 v{TE}, 3, v0
    v_add_u32 v{TE}, s48, v{TE}
    """)
    for r in range(M_, Y_ + 36):
        a(f"v_mov_b32 v{r}, 0")
    a(f"""
    s_mov_b32 s{sSlotW}, 0
    s_mov_b32 s{sIt}, 0
    v_mov_b32 v{vW}, v{vWb}
    """)
    PF = "pfine" in OPT
    stamp(a, 4 if PF else 1)
    a("s_waitcnt vmcnt(4)\ns_barrier")
    stamp(a, 5 if PF else 2)
    for i in range(1, 4):
        a(f"v_add_u32 v{123+i}, {i*(165888-1024)}, v{vW0}")
    a(f"""
    s_mul_i32 s48, s{sWV}, {4*165888}
    s_add_u32 s48, s48, 9216
    s_lshl_b32 s49, s{sWV}, 12
    s_add_u32 m0, s49, {LDS_W + WSLOT}
    s_nop 0
    buffer_load_dwordx4 v{vW0}, s[{sW}:{sW+3}], s48 offen lds
    """)
    for i in range(1, 4):
        a(f"buffer_load_dwordx4 v{123+i}, s[{sW}:{sW+3}], s48 offen offset:{i*1024} lds")
    a(f"""
    s_add_u32 s48, s48, 9216
    s_add_u32 m0, s49, {LDS_W + 2*WSLOT}
    s_nop 0
    buffer_load_dwordx4 v{vW0}, s[{sW}:{sW+3}], s48 offen lds
    """)
    for i in range(1, 4):
        a(f"buffer_load_dwordx4 v{123+i}, s[{sW}:{sW+3}], s48 offen offset:{i*1024} lds")
    a("s_waitcnt vmcnt(8)\ns_barrier")
    stamp(a, 6 if PF else 3)
    sc = Sched(a)
    def rd_x(i, vaddr, imm):
        def f():
            a(f"ds_read_b128 v[{XF+4*i}:{XF+4*i+3}], v{vaddr} offset:{imm}")
            sc.lds_issue(f"x{i}")
        return f
    def rd_w(wreg, s_, h):
        def f():
            a(f"ds_read_b64_tr_b16 v[{wreg+4*s_+2*h}:{wreg+4*s_+2*h+1}], v{vW} offset:{4096*s_ + 256*h}")
            sc.lds_issue(f"w{wreg}_{s_}")
        return f
    def gload(setidx, s_):
        reg = GR + 16 * setidx + 4 * s_
        so = sGo0 if s_ < 2 else sGo1
        def f():
            a(f"buffer_load_dwordx4 v[{reg}:{reg+3}], v{vG}, s[{sG}:{sG+3}], s{so} offen offset:{(s_ & 1)*2048} sc1")
            sc.vm_issue(f"g{setidx}_{s_}")
        return f
    def at(pairs):
        g = [[] for _ in range(36)]
        for n, f in pairs: g[n].append(f)
        return g
    def swz_items(dst):
        return [ins(f"v_add_u32 v{dst}, s{sDx}, v{vXb}"), ins(f"v_lshrrev_b32 v{vPt}, 2, v{dst}"),
                ins(f"v_and_b32 v{vPt}, 64, v{vPt}"), ins(f"v_xor_b32 v{dst}, v{dst}, v{vPt}")]
    def barrier_drain(vm=None):
        def f():
            sc.need(set(sc.lds), ())
            a(f"s_waitcnt vmcnt({vm})\ns_barrier" if vm is not None else "s_barrier")
        return f
    wtags_a = lambda wreg: [([f"w{wreg}_{s_}"], []) for s_ in range(4)]
    wtags_b = lambda u: [([], [f"g{u}_{s_}"]) for s_ in range(4)]
    BAR = 6
    def reload_gaps_after_bar():
        g, n = {}, BAR + 1
        for i in range(12):
            n = max(n, LAST_USE[i]); g[i] = n; n += 1
            n = min(n, 35)
        return g
    RG_A = reload_gaps_after_bar()
    free_a = [n for n in range(BAR + 1, 34) if n not in RG_A.values()]

    init = [(RG_A[i], rd_x(i, vS0, 256 * i)) for i in range(12)]
    init += list(zip(free_a[:8], [rd_w(WA, s_, h) for s_ in (3, 2, 1, 0) for h in range(2)]))
    for row in at(init):
        for f in row: f()

    def a_chunk(it_par, kind, vm):
        wcur, wnxt = (WA, WB) if it_par == 0 else (WB, WA)
        vsn = vS1r if it_par == 0 else vS0
        items = [(BAR, barrier_drain(vm))]
        if kind != "B":
            items += [(0, ins(f"s_add_u32 s{sSlotW}, s{sSlotW}, {WSLOT}\ns_cmp_eq_u32 s{sSlotW}, {3*WSLOT}")),
                      (1, ins(f"s_cselect_b32 s{sSlotW}, 0, s{sSlotW}")),
                      (2, ins(f"v_add_u32 v{vW}, s{sSlotW}, v{vWb}"))]
            items += [(RG_A[i], rd_x(i, vsn, 256 * i)) for i in range(12)]
            ws = [rd_w(wnxt, s_, h) for s_ in (3, 2, 1, 0) for h in range(2)]
            items += list(zip(free_a[:8], ws))
        else:
            items += [(0, ins(f"s_mov_b32 s{sDx}, 576"))] + list(zip((1, 2, 3, 4), swz_items(vX)))
            items += [(RG_A[i], rd_x(i, vX, 4608 * i)) for i in range(12)]
            items += [(free_a[0], ins(f"s_mov_b32 s{sDx}, {576 + 32}"))] + list(zip(free_a[1:5], swz_items(vXn)))
            items += [(35, ins(f"v_mov_b32 v{vX}, v{vXn}"))]
        if kind in ("G0", "B"):
            gs = 0 if kind == "G0" else 1
            items += [(3, ins(f"s_mov_b32 s{sGo0}, {gs*16384}\ns_mov_b32 s{sGo1}, {gs*16384 + 4096}"))]
            items += list(zip(free_a[8:12] if kind == "G0" else free_a[5:9], [gload(gs, s_) for s_ in range(4)]))
        emit_chunk(a, sc, M_, wcur, wtags_a(wcur), at(items))

    a("L_A:")
    st = list(sc.lds)
    a_chunk(0, "A", 4)
    if PF: stamp_dyn2(a, 7, sIt, 0)
    a_chunk(1, "A", 0)
    assert sc.lds == st, (sc.lds, st)
    if PF: stamp_dyn2(a, 7, sIt, 1)
    if "aavg" in OPT:
        a(f"s_cmp_eq_u32 s{sIt}, 1\ns_cbranch_scc1 L_aavg_no")
        stamp_dyn(a, 5, sIt)
        a("L_aavg_no:")
    a(f"s_add_u32 s{sIt}, s{sIt}, 1\ns_cmp_lt_u32 s{sIt}, 3\ns_cbranch_scc1 L_A")
    a_chunk(0, "A", None)
    if PF: stamp(a, 13)
    a_chunk(1, "G0", None)
    if PF: stamp(a, 14)
    a_chunk(0, "B", None)
    stamp(a, 15 if PF else 4)
    if PF or "aavg" in OPT: HF_OFF[0] = True

    sTrip = sT + 4
    a(f"s_mov_b32 s{sDx}, {576 + 32}\ns_mov_b32 s{sGo0}, 16384")
    def b_chunk(acc, u, switch=False, extra=(), pre=None):
        items = [(LAST_USE[i], rd_x(i, vX, 4608 * i)) for i in range(12)] if "b_nox" not in OPT else []
        if switch:
            items += [(1, ins(f"s_add_u32 s{sDx}, s{sDx}, 32\ns_add_u32 s{sGo0}, s{sGo0}, 16384\ns_cmp_eq_u32 s{sTrip}, 2")),
                      (3, ins(f"s_cselect_b32 s{sDx}, 0, s{sDx}\ns_cselect_b32 s{sGo0}, {GF_PROD}, s{sGo0}"))]
        else:
            items += [(1, ins(f"s_add_u32 s{sDx}, s{sDx}, 32\ns_add_u32 s{sGo0}, s{sGo0}, 16384"))]
        items += [(4, ins(f"s_add_u32 s{sGo1}, s{sGo0}, 4096"))]
        if "b_nov" not in OPT: items += list(zip((6, 7, 8, 10), swz_items(vXn)))
        if "b_nog" not in OPT: items += list(zip((11, 15, 19, 23), [gload((u + 2) % 3, s_) for s_ in range(4)]))
        items += [(35, ins(f"v_mov_b32 v{vX}, v{vXn}"))]
        items += list(extra)
        emit_chunk(a, sc, acc, GR + 16 * u, wtags_b(u), at(items), pre)
    a(f"s_mov_b32 s{sTrip}, 0")
    a("L_B1:")
    st_l, st_v = list(sc.lds), list(sc.vm)
    for u in range(3):
        b_chunk(Y_, u, switch=(u == 1))
    stamp_dyn(a, 5, sTrip) if "pre" in OPT else None
    a("s_barrier")
    stamp_dyn(a, 5, sTrip) if "pre" not in OPT else None
    a(f"s_add_u32 s{sTrip}, s{sTrip}, 1\ns_cmp_lt_u32 s{sTrip}, 3\ns_cbranch_scc1 L_B1")
    assert "b_nog" in OPT or "b_nox" in OPT or (sc.lds == st_l and sc.vm == st_v)
    if "lite" in OPT: stamp(a, 5)
    a(f"""
    s_mul_i32 s{sT+1}, s{sWV}, 9216
    s_add_u32 s{sT+1}, s{sT+1}, {LDS_Y0}
    v_lshlrev_b32 v10, 4, v0
    v_add_u32 v10, s{sT+1}, v10
    """)
    first = {}
    for n, (s_, T, i) in enumerate(chunk_order()): first.setdefault(T, n)
    pre = [[] for _ in range(36)]
    prev = 0
    for T in range(9):
        slots = list(range(prev, first[T] + 1)) if T > 0 else [0]
        adds = [ins(f"v_add_f32 v{Y_+4*T+r}, v{M_+4*T+r}, v{Y_+4*T+r}") for r in range(4)]
        slots = [0] if T == 0 else list(range(prev + 1, first[T] + 1))
        for k, f in enumerate(adds): pre[slots[(k * len(slots)) // 4]].append(f)
        prev = first[T]
    def ywrite(T):
        def f():
            a(f"ds_write_b128 v10, v[{Y_+4*T}:{Y_+4*T+3}] offset:{T*1024}")
            sc.lds_issue(f"yw{T}")
        return f
    wgaps = [3, 7, 11, 15, 19, 23, 27, 31, 33]
    b_chunk(M_, 0, extra=[(wgaps[T], ywrite(T)) for T in range(9)], pre=pre)
    def bar_y0():
        sc.need({f"yw{T}" for T in range(9)}, ())
        a("s_barrier")
    b_chunk(M_, 1, extra=[(16, bar_y0)])
    b_chunk(M_, 2)
    if "lite" not in OPT: stamp(a, 8)
    a(f"s_mov_b32 s{sTrip}, 1")
    a("L_B2:")
    assert "b_nog" in OPT or "b_nox" in OPT or (sc.lds == st_l and sc.vm == st_v)
    for u in range(3):
        b_chunk(M_, u)
    stamp_dyn(a, 8, sTrip)
    a(f"s_add_u32 s{sTrip}, s{sTrip}, 1\ns_cmp_lt_u32 s{sTrip}, 3\ns_cbranch_scc1 L_B2")

    if "lite" in OPT: stamp(a, 6)
    a("s_setprio 0")
    K = XF
    def tail(keep, send, lbl):
        for i, T in enumerate(send):
            a(f"ds_write_b128 v{TW}, v[{M_+4*T}:{M_+4*T+3}] offset:{i*1024}")
        a(f"""
        v_mov_b32 v10, 1
        s_waitcnt lgkmcnt(0)
        ds_write_b32 v{TF}, v10
        s_mov_b32 s{sSpin}, 0
        L_tp_{lbl}:
        ds_read_b32 v11, v{TF+1}
        s_add_u32 s{sSpin}, s{sSpin}, 1
        s_waitcnt lgkmcnt(0)
        v_readfirstlane_b32 s48, v11
        s_cmp_ge_u32 s{sSpin}, {SPIN_MAX}
        s_cbranch_scc1 L_td_{lbl}
        s_cmp_eq_u32 s48, 0
        s_cbranch_scc1 L_tp_{lbl}
        L_td_{lbl}:
        """)
        for i, T in enumerate(keep):
            a(f"ds_read_b128 v[{K+4*i}:{K+4*i+3}], v{TR} offset:{i*1024}")
        for i, T in enumerate(keep):
            a(f"s_waitcnt lgkmcnt({len(keep)-1-i})")
            for r in (0, 2):
                a(f"v_pk_add_f32 v[{M_+4*T+r}:{M_+4*T+r+1}], v[{M_+4*T+r}:{M_+4*T+r+1}], v[{K+4*i+r}:{K+4*i+r+1}]")
        activation_pk(a, [M_ + 4*T + r for T in keep for r in (0, 2)], 84, 86, 88, TS, Y_)
        for i, T in enumerate(keep):
            a(f"s_mov_b32 s49, {i*2*2*18*512}")
            a(f"buffer_store_dwordx2 v[{Y_+2*i}:{Y_+2*i+1}], v{TE}, s[{sE}:{sE+3}], s49 offen sc1")
    a(f"s_waitcnt lgkmcnt(0)\ns_cmp_eq_u32 s{sT+5}, 0\ns_cbranch_scc0 L_t_k1\ns_nop 5")
    tail([0, 2, 4, 6, 8], [1, 3, 5, 7], "k0")
    a("s_branch L_t_j\nL_t_k1:\ns_nop 5")
    tail([1, 3, 5, 7], [0, 2, 4, 6, 8], "k1")
    a("L_t_j:")
    stamp(a, 7 if "lite" in OPT else 11)
    if "lite" not in OPT: stamp(a, 12)
    HF_OFF[0] = False
    stamp_flush(a)
    a("s_endpgm")
def z_unit_setup(a, q, zbase):
    a(f"""
    s_mul_i32 s48, s{sMT}, {9*2*18*512}
    s_mul_i32 s49, s{sNG}, {2*18*512}
    s_add_u32 s48, s48, s49
    s_add_u32 s48, s48, {q*18*512}
    v_lshlrev_b32 v14, 3, v0
    v_add_u32 v14, s48, v14
    v_lshlrev_b32 v15, 4, v0
    v_add_u32 v15, {zbase}, v15
    """)
def z_units(a, cts, lbl, nap):
    ZL, ZZ, ZT, ZM = 128, 140, 146, 150
    for u, c in enumerate(cts):
        a(f"s_lshl_b32 s{50+2*u}, s{c}, 9\ns_add_u32 s{51+2*u}, s{50+2*u}, 4608")
    a(f"s_mov_b32 s{sSpin}, 0\nL_zp_{lbl}:")
    for u in range(len(cts)):
        a(f"buffer_load_dwordx2 v[{ZL+4*u}:{ZL+4*u+1}], v14, s[{sE}:{sE+3}], s{50+2*u} offen sc1")
        a(f"buffer_load_dwordx2 v[{ZL+4*u+2}:{ZL+4*u+3}], v14, s[{sE}:{sE+3}], s{51+2*u} offen sc1")
    a(f"s_add_u32 s{sSpin}, s{sSpin}, 1\ns_waitcnt vmcnt(0)")
    a(f"v_max_u32 v{ZM}, v{ZL}, v{ZL+1}\nv_max3_u32 v{ZM}, v{ZM}, v{ZL+2}, v{ZL+3}")
    for u in range(1, len(cts)):
        a(f"v_max3_u32 v{ZM}, v{ZM}, v{ZL+4*u}, v{ZL+4*u+1}\nv_max3_u32 v{ZM}, v{ZM}, v{ZL+4*u+2}, v{ZL+4*u+3}")
    a(f"""
    v_cmp_eq_u32 vcc, -1, v{ZM}
    s_cmp_ge_u32 s{sSpin}, {SPIN_MAX}
    s_cbranch_scc1 L_zd_{lbl}
    s_cbranch_vccz L_zd_{lbl}
    """)
    if nap: a(f"s_sleep {nap}")
    a(f"s_branch L_zp_{lbl}\nL_zd_{lbl}:")
    for u, c in enumerate(cts):
        z_mul(a, ZZ + 2*u, ZL + 4*u, ZL + 4*u + 2, ZT)
        z_mul(a, ZZ + 2*u + 1, ZL + 4*u + 1, ZL + 4*u + 3, ZT)
        a(f"""
        s_lshr_b32 s48, s{c}, 1
        s_lshl_b32 s48, s48, 10
        s_and_b32 s49, s{c}, 1
        s_lshl_b32 s49, s49, 3
        s_add_u32 s48, s48, s49
        v_add_u32 v{ZM}, s48, v15
        ds_write_b64 v{ZM}, v[{ZZ+2*u}:{ZZ+2*u+1}]
        """)
WO = 64
def gen_helper(a):
    sH = sT
    sCw, sSl, sCs, sSs = 72, 73, 74, 75
    vSx, vSw, vPat, vLo = 20, 21, 22, 23
    SB, SD, ID, IJ = 28, 40, 52, 56
    a(f"s_sub_u32 s{sH}, s{sWV}, 4")
    if "pfine" in OPT: HF_OFF[0] = True
    for i in range(4):
        a(f"v_add_u32 v{16+i}, {i*(165888-1024)}, v3")
    a(f"s_mul_i32 s{sCw}, s{sH}, {4*165888}\ns_lshl_b32 s{sSl}, s{sH}, 12\ns_add_u32 s{sSl}, s{sSl}, {LDS_W}")
    def wdma(k):
        a(f"s_add_u32 m0, s{sSl}, {(k % 3) * WSLOT}\ns_add_u32 s50, s{sCw}, {k * 9216}")
        for i in range(4):
            if "nodma" not in OPT:
                a(f"buffer_load_dwordx4 v{16+i}, s[{sW}:{sW+3}], s50 offen offset:{i*1024} lds")
    PL = 176
    a(f"""
    v_bfe_u32 v24, v0, 1, 3
    v_lshlrev_b32 v24, 2, v24
    v_and_b32 v25, 1, v0
    v_add_u32 v24, v24, v25
    v_lshrrev_b32 v25, 5, v0
    v_lshl_add_u32 v24, v25, 1, v24
    v_mul_u32_u24 v{vSx}, 288, v24
    v_bfe_u32 v24, v0, 4, 1
    v_lshl_add_u32 v{vSx}, v24, 4, v{vSx}
    s_mul_i32 s48, s{sH}, 9216
    v_add_u32 v{vSx}, s48, v{vSx}
    v_and_b32 v24, 15, v0
    v_lshlrev_b32 v24, 5, v24
    v_bfe_u32 v26, v0, 2, 1
    v_xor_b32 v26, v26, v25
    v_lshl_add_u32 v24, v26, 4, v24
    v_bfe_u32 v26, v0, 4, 1
    v_lshl_add_u32 v24, v26, 3, v24
    s_lshl_b32 s48, s{sH}, 9
    s_add_u32 s48, s48, {LDS_S}
    v_add_u32 v{vSw}, s48, v24
    v_sub_u32 v{vLo}, 1, v25
    v_bfe_u32 v24, v0, 4, 1
    v_mul_u32_u24 v{vPat}, 544, v24
    v_bfe_u32 v24, v0, 2, 2
    v_lshl_add_u32 v{vPat}, v24, 6, v{vPat}
    v_and_b32 v24, 3, v0
    v_lshl_add_u32 v{vPat}, v24, 3, v{vPat}
    """)
    a(f"""
    v_lshrrev_b32 v24, 3, v0
    v_lshrrev_b32 v26, 4, v0
    v_xor_b32 v24, v24, v26
    v_and_b32 v24, 1, v24
    v_and_b32 v26, 1, v0
    v_lshlrev_b32 v26, 4, v26
    v_mov_b32 v27, 0x3f80
    v_lshlrev_b32 v27, v26, v27
    v_lshlrev_b32 v28, 15, v25
    v_lshlrev_b32 v28, v26, v28
    v_or_b32 v28, v28, v27
    v_bfe_u32 v26, v0, 1, 2
    v_lshl_or_b32 v26, v24, 2, v26
    """)
    for r in range(4):
        a(f"v_cmp_eq_u32 vcc, {r}, v26\ns_nop 1\nv_cndmask_b32 v{ID+r}, 0, v27, vcc\nv_cndmask_b32 v{IJ+r}, 0, v28, vcc")
    srd(a, sF, 14, 15, FL_OFF + FL_SIZE)
    SX, SW0 = 196, 205
    for c in range(9):
        a(f"v_add_u32 v24, {32*c}, v{vSx}\nv_lshrrev_b32 v25, 2, v24\nv_and_b32 v25, 64, v25\nv_xor_b32 v{SX+c}, v24, v25")
    a(f"v_mov_b32 v{SW0}, v{vSw}\nv_add_u32 v{SW0+1}, {SSLOT}, v{vSw}")
    def s_reads(c):
        if "nos" in OPT and c > 0: return
        a(f"""
        ds_read_b128 v[{SB}:{SB+3}], v{SX+c}
        ds_read_b128 v[{SB+4}:{SB+7}], v{SX+c} offset:{4*9216}
        v_add_u32 v25, {8*9216}, v{SX+c}
        ds_read_b128 v[{SB+8}:{SB+11}], v25
        """)
    def s_compute(c, between=None):
        if "nos" in OPT and c > 0:
            if between: between()
            return
        vw = SW0 + (c & 1)
        a("s_setprio 3")
        for k in range(3):
            a(f"v_mfma_f32_16x16x32_bf16 v[{SD+4*k}:{SD+4*k+3}], v[{ID}:{ID+3}], v[{SB+4*k}:{SB+4*k+3}], 0")
        if "hiwr" not in OPT: a("s_setprio 0")
        if between: between()
        a("s_nop 7")
        for k in range(3):
            a(f"v_cvt_pk_bf16_f32 v{SD+4*k}, v{SD+4*k}, v{SD+4*k+1}\nv_cvt_pk_bf16_f32 v{SD+4*k+1}, v{SD+4*k+2}, v{SD+4*k+3}")
            if k == 2: a(f"s_cmp_eq_u32 s{sH}, 3\ns_cbranch_scc1 L_s3_{c}")
            a(f"ds_write_b64 v{vw}, v[{SD+4*k}:{SD+4*k+1}] offset:{2048*k}")
        a(f"L_s3_{c}:")
        if "hiwr" in OPT: a("s_setprio 0")
    PB, PD, PK = 64, 128, 160
    def prod_stage():
        a(f"""
        s_mul_i32 s57, s{sH}, 5120
        s_add_u32 s57, s57, {LDS_W + 2*WSLOT}
        v_lshlrev_b32 v24, 4, v0
        v_add_u32 v24, s57, v24
        """)
        for k in range(5):
            a(f"ds_write_b128 v24, v[{PL+4*k}:{PL+4*k+3}] offset:{1024*k}")
        a("s_waitcnt lgkmcnt(0)")
        for c, e, o in ((0, 0, 1024), (2, 0, 2048), (1, 3072, 2048), (3, 3072, 4096)):
            a(f"v_mul_u32_u24 v26, {o}, v{vLo}\nv_sub_u32 v27, 1, v{vLo}\nv_mul_u32_u24 v27, {e}, v27\nv_add3_u32 v26, v26, v27, v{vPat}")
            a(f"v_add_u32 v26, s57, v26\nv_xor_b32 v27, 32, v26")
            for nh in range(2):
                b = PB + 8 * c + 4 * nh
                for h in range(2):
                    a(f"ds_read_b64_tr_b16 v[{b+2*h}:{b+2*h+1}], v{26+nh} offset:{h*256}")
        a("s_waitcnt lgkmcnt(0)")
    def production():
        a("s_setprio 3")
        for f in range(8):
            a(f"v_mfma_f32_16x16x32_bf16 v[{PD+4*f}:{PD+4*f+3}], v[{IJ}:{IJ+3}], v[{PB+4*f}:{PB+4*f+3}], 0")
        a("s_setprio 0")
        a(f"""
        s_add_u32 s57, s53, s{sH}
        s_and_b32 s58, s57, 1
        s_lshl_b32 s58, s58, 2
        s_lshr_b32 s57, s57, 1
        s_add_u32 s57, s57, s58
        s_lshl_b32 s58, s{sCP}, 3
        s_add_u32 s57, s57, s58
        s_lshl_b32 s57, s57, 11
        s_mul_i32 s58, s{sNG}, 147456
        s_add_u32 s57, s57, s58
        s_cmp_ge_u32 s{sH}, s54
        s_cselect_b32 s57, 0x7f000000, s57
        s_add_u32 s58, s57, {GF_PROD}
        v_and_b32 v26, 15, v0
        v_lshlrev_b32 v26, 4, v26
        v_lshrrev_b32 v27, 5, v0
        v_lshl_add_u32 v26, v27, 8, v26
        v_bfe_u32 v27, v0, 4, 1
        v_lshl_add_u32 v26, v27, 3, v26
        """)
        a("v_mov_b32 v61, v26\ns_mov_b32 s62, s57\ns_mov_b32 s63, s58")
        for f in range(8):
            a(f"v_cvt_pk_bf16_f32 v{PK+2*f}, v{PD+4*f}, v{PD+4*f+1}\nv_cvt_pk_bf16_f32 v{PK+2*f+1}, v{PD+4*f+2}, v{PD+4*f+3}")
    def gf_stores():
        for f in range(8):
            c, nh = f >> 1, f & 1
            so = "s62" if c < 2 else "s63"
            a(f"buffer_store_dwordx2 v[{PK+2*f}:{PK+2*f+1}], v61, s[{sG}:{sG+3}], {so} offen offset:{nh*1024 + (c & 1)*512} sc1")
    a(f"s_cmp_eq_u32 s{sH}, 3\ns_cbranch_scc1 L_noprod")
    if "xfine" in OPT: stamp(a, 6)
    a("s_waitcnt vmcnt(0)")
    if "xfine" in OPT: stamp(a, 7)
    prod_stage()
    if "xfine" in OPT: stamp(a, 8)
    production()
    gf_stores()
    if "xfine" in OPT: stamp(a, 9)
    a("L_noprod:")
    if "xfine" in OPT: stamp(a, 10)
    a("s_barrier")
    if "xfine" in OPT: stamp(a, 11)
    a(f"v_mov_b32 v26, {NOFF}\ns_cmp_lg_u32 s{sH}, 3\ns_cbranch_scc1 L_H_n2\nbuffer_load_dword v60, v26, s[{sD}:{sD+3}], 0 offen sc1\nL_H_n2:")
    s_reads(0)
    a("s_waitcnt lgkmcnt(0)")
    s_compute(0)
    s_reads(1)
    a("s_waitcnt lgkmcnt(0)")
    s_compute(1)
    s_reads(2)
    a("s_waitcnt lgkmcnt(3)")
    if "xfine" in OPT: stamp(a, 12)
    if "xfine" in OPT: stamp(a, 13)
    a("s_barrier")
    if "xfine" in OPT: stamp(a, 14); HF_OFF[0] = True
    for r in range(4): a(f"v_mov_b32 v{120+r}, -1")
    def flag_store(kind):
        a(f"""
        s_mul_i32 s49, s{sNG}, 28
        s_add_u32 s49, s49, s{sMT}
        s_lshl_b32 s49, s49, 7
        """)
        a(f"s_add_u32 s49, s49, {FL_OFF + (0 if kind == 'A' else 12)}\ns_cmp_eq_u32 s{sH}, 3")
        a(f"""
        s_cselect_b32 s49, s49, 0x7f000000
        v_mov_b32 v26, s49
        v_mov_b32 v27, s{sNonce}
        s_mov_b64 exec, 1
        buffer_store_dword v27, v26, s[{sF}:{sF+3}], 0 offen sc1
        s_mov_b64 exec, -1
        """)
    a(f"""
    s_mul_i32 s56, s{sMT}, {9*2*18*512}
    s_lshl_b32 s57, s{sNG}, 10
    s_add_u32 s56, s56, s57
    v_lshlrev_b32 v119, 4, v0
    v_add_u32 v119, s56, v119
    """)
    def poison(i):
        a(f"s_add_u32 s57, s{sH}, {4*i}\ns_min_u32 s57, s57, 17\ns_mul_i32 s57, s57, {18*512}")
        a(f"buffer_store_dwordx4 v[120:123], v119, s[{sE}:{sE+3}], s57 offen sc1")
    waits = {2: 6, 3: 6, 4: 6, 5: 6, 6: 5, 7: 0}
    if "pois4" in OPT: waits = {2: 4, 3: 4, 4: 9, 5: 9, 6: 4, 7: 0}
    if "poisB" in OPT: waits = {2: 4, 3: 4, 4: 4, 5: 4, 6: 5 if "poll6" in OPT else 4, 7: 0}
    for it in range(9):
        if it == 5 and "hfine" in OPT: stamp(a, 1)
        if it == 0:
            a(f"""
            s_waitcnt vmcnt(0)
            s_cmp_lg_u32 s{sH}, 3
            s_cbranch_scc1 L_H_n0
            s_mov_b32 s{sSpin}, 0
            L_H_nspin:
            v_readfirstlane_b32 s{sNonce}, v60
            s_add_u32 s{sSpin}, s{sSpin}, 1
            s_cmp_lg_u32 s{sNonce}, 0
            s_cbranch_scc1 L_H_n0
            s_cmp_ge_u32 s{sSpin}, {SPIN_MAX}
            s_cbranch_scc1 L_H_n0
            s_sleep 4
            v_mov_b32 v26, {NOFF}
            buffer_load_dword v60, v26, s[{sD}:{sD+3}], 0 offen sc1
            s_waitcnt vmcnt(0)
            s_branch L_H_nspin
            L_H_n0:
            """)
        if it == 1: flag_store("A")
        if it == 7 and "poll6" not in OPT:
            gf_flag_addr(a)
            a(f"s_cmp_lg_u32 s{sH}, 3\ns_cbranch_scc1 L_H_np")
            a(f"buffer_load_dword v124, v63, s[{sF}:{sF+3}], 0 offen sc1\nL_H_np:")
        if 1 <= it <= 7:
            a("s_waitcnt lgkmcnt(0)")
            s_compute(it + 1, (lambda k=it+2: wdma(k)) if it <= 6 else None)
        if it == 5 and "hfine" in OPT: stamp(a, 7)
        if 1 <= it <= 6: s_reads(it + 2)
        if it == 6 and "poll6" in OPT:
            gf_flag_addr(a)
            a(f"buffer_load_dword v124, v63, s[{sF}:{sF+3}], 0 offen sc1")
        if "pois4" in OPT:
            if it == 4:
                for i in range(5): poison(i)
        elif "poisB" in OPT: pass
        elif 1 <= it <= 5: poison(it - 1)
        if it == 5 and "hfine" in OPT: stamp(a, 3)
        if it in waits: a(f"s_waitcnt vmcnt({waits[it]}) lgkmcnt({3 if it <= 6 else 0})")
        elif it == 1: a("s_waitcnt lgkmcnt(3)")
        if it == 5 and "hfine" in OPT: stamp(a, 4)
        if it == 7:
            a(f"""
            s_cmp_lg_u32 s{sH}, 3
            s_cbranch_scc1 L_H_f4
            s_mov_b32 s{sSpin}, 0
            L_H_fspin:
            v_cmp_ne_u32 vcc, s{sNonce}, v124
            s_add_u32 s{sSpin}, s{sSpin}, 1
            s_cmp_ge_u32 s{sSpin}, {SPIN_MAX}
            s_cbranch_scc1 L_H_f4
            s_cbranch_vccz L_H_f4
            s_sleep 2
            buffer_load_dword v124, v63, s[{sF}:{sF+3}], 0 offen sc1
            s_waitcnt vmcnt(0)
            s_branch L_H_fspin
            L_H_f4:
            """)
        a("s_barrier")
        if it == 5 and "hfine" in OPT: stamp(a, 5)
        if it == 6 and "hfine" in OPT: stamp(a, 6)
    if "hfine" not in OPT: stamp(a, 1)
    if "hfine" in OPT: HF_OFF[0] = True
    if "poisB" in OPT:
        pass
    else:
        flag_store("B")
    a(f"v_lshlrev_b32 v24, 4, v0\ns_mov_b32 s50, s{sH}")
    a(f"""
    L_wo:
    s_lshl_b32 s51, s50, 10
    s_add_u32 m0, s51, {LDS_W}
    s_add_u32 s50, s50, 4
    {"" if "b_nowo" in OPT else f"buffer_load_dwordx4 v24, s[{sWo}:{sWo+3}], s51 offen lds"}
    s_sleep 2
    s_cmp_lt_u32 s50, 41
    s_cbranch_scc1 L_wo
    s_barrier
    """)
    if "poisB" in OPT:
        for i in range(5):
            poison(i)
            a("s_sleep 2")
    a(f"s_mul_i32 s48, s{sB}, {XB_SIZE}\ns_add_u32 s10, s10, s48\ns_addc_u32 s11, s11, 0")
    srd(a, sO, 10, 11, XB_SIZE)
    def check_flag_b():
        a(f"""
        v_mul_u32_u24 v62, 28, v0
        v_add_u32 v62, s{sMT}, v62
        v_lshlrev_b32 v62, 7, v62
        v_add_u32 v62, {FL_OFF + 12}, v62
        s_cmp_lg_u32 s{sH}, 3
        s_cbranch_scc1 L_fbs
        s_mov_b32 s{sSpin}, 0
        s_mov_b64 exec, 0x1ff
        L_fb:
        buffer_load_dword v61, v62, s[{sF}:{sF+3}], 0 offen sc1
        s_add_u32 s{sSpin}, s{sSpin}, 1
        s_waitcnt vmcnt(0)
        v_cmp_ne_u32 vcc, s{sNonce}, v61
        s_cmp_ge_u32 s{sSpin}, {SPIN_MAX}
        s_cbranch_scc1 L_fbd
        s_cbranch_vccz L_fbd
        s_sleep 4
        s_branch L_fb
        L_fbd:
        s_mov_b64 exec, -1
        L_fbs:
        """)
    if "poisB" not in OPT:
        check_flag_b()
    a("s_waitcnt vmcnt(5)\ns_barrier")
    a(f"""
    v_lshrrev_b32 v24, 2, v0
    v_mul_u32_u24 v24, 288, v24
    v_and_b32 v25, 3, v0
    v_lshlrev_b32 v25, 3, v25
    v_add_u32 v24, v24, v25
    s_lshl_b32 s48, s{sH}, 5
    s_add_u32 s48, s48, {LDS_W}
    v_add_u32 v24, s48, v24
    v_add_u32 v25, {8*32}, v24
    """)
    for d, (va, off) in enumerate(((24, 0), (24, 128), (25, 0))):
        base = WO + 18 * d
        for P in range(4):
            a(f"ds_read_b64_tr_b16 v[{base+4*P}:{base+4*P+1}], v{va} offset:{off + 32*P*288}")
            a(f"ds_read_b64_tr_b16 v[{base+4*P+2}:{base+4*P+3}], v{va} offset:{off + (32*P+16)*288}")
        a(f"ds_read_b64_tr_b16 v[{base+16}:{base+17}], v{va} offset:{off + 128*288}")
        a("s_waitcnt lgkmcnt(0)")
    a(f"""
    v_bfe_u32 v41, v0, 1, 2
    v_lshlrev_b32 v41, 2, v41
    v_and_b32 v42, 1, v0
    v_add_u32 v41, v41, v42
    v_bfe_u32 v42, v0, 3, 1
    v_mul_u32_u24 v42, 144, v42
    v_add_u32 v41, v41, v42
    s_mul_i32 s48, s{sMTL}, 288
    s_lshl_b32 s49, s{sNG}, 4
    s_add_u32 s48, s48, s49
    v_add_u32 v41, s48, v41
    v_mul_u32_u24 v41, 288, v41
    v_lshrrev_b32 v42, 4, v0
    v_lshlrev_b32 v42, 3, v42
    v_add_u32 v41, v41, v42
    s_lshl_b32 s48, s{sH}, 5
    v_add_u32 v41, s48, v41
    """)
    a(f"s_and_b32 s76, s{sH}, 1\ns_lshr_b32 s77, s{sH}, 1")
    act_consts(a, "s76", 78, 79, 43)
    a(f"""
    s_mul_i32 s49, s{sMT}, {9*2*18*512}
    s_lshl_b32 s48, s48, 9
    s_add_u32 s48, s48, s49
    s_mul_i32 s49, s77, {2*18*512}
    s_add_u32 s48, s48, s49
    v_lshlrev_b32 v44, 3, v0
    v_add_u32 v44, s48, v44
    s_mul_i32 s48, s76, 9216
    s_lshl_b32 s49, s77, 10
    s_add_u32 s48, s48, s49
    s_add_u32 s48, s48, {LDS_Y0}
    v_lshlrev_b32 v45, 4, v0
    v_add_u32 v45, s48, v45
    """)
    a(f"v_and_b32 v24, 7, v0\nv_lshlrev_b32 v24, 2, v24\nv_add_u32 v24, {LDS_CNT}, v24\nv_mov_b32 v25, 0\nds_write_b32 v24, v25\ns_waitcnt lgkmcnt(0)")
    a("s_waitcnt vmcnt(0)\ns_barrier")
    flag_store("B")
    stamp(a, 2)
    a("s_barrier")
    for i in range(5):
        a(f"ds_read_b128 v[{128+4*i}:{131+4*i}], v45 offset:{i*2048}")
        a(f"ds_read_b128 v[{148+4*i}:{151+4*i}], v45 offset:{i*2048 + 2*9216}")
    for i in range(5):
        a(f"s_waitcnt lgkmcnt({8-2*i})")
        for r in range(4): a(f"v_add_f32 v{128+4*i+r}, v{128+4*i+r}, v{148+4*i+r}")
    activation(a, list(range(128, 148)), 78, 79, 43, 20)
    for i in range(5):
        if i == 4: a("s_cmp_eq_u32 s77, 1\ns_cbranch_scc1 L_y0_done")
        a(f"s_mov_b32 s49, {i*2*2*18*512}")
        a(f"buffer_store_dwordx2 v[{20+2*i}:{21+2*i}], v44, s[{sE}:{sE+3}], s49 offen sc1")
    a("L_y0_done:")
    stamp(a, 3)
    if "poisB" in OPT:
        check_flag_b()
        a(f"""
        v_mov_b32 v24, {LDS_CNT + 8}
        v_mov_b32 v25, 1
        s_cmp_lg_u32 s{sH}, 3
        s_cbranch_scc1 L_fbw
        ds_write_b32 v24, v25
        L_fbw:
        s_mov_b32 s{sSpin}, 0
        L_fbr:
        ds_read_b32 v25, v24
        s_add_u32 s{sSpin}, s{sSpin}, 1
        s_waitcnt lgkmcnt(0)
        v_readfirstlane_b32 s48, v25
        s_cmp_ge_u32 s{sSpin}, {SPIN_MAX}
        s_cbranch_scc1 L_fbrd
        s_cmp_eq_u32 s48, 0
        s_cbranch_scc0 L_fbrd
        s_sleep 2
        s_branch L_fbr
        L_fbrd:
        """)
    z_unit_setup(a, 0, LDS_Z)
    a(f"s_add_u32 s60, s{sH}, 4\ns_cmp_eq_u32 s{sH}, 0\ns_cselect_b32 s61, 8, s{sH}\ns_sleep 20")
    z_units(a, [sH, 60, 61], "q0", 12)
    if "qfine" in OPT: stamp(a, 9)
    def meet(word, lbl):
        a(f"""
        s_waitcnt lgkmcnt(0)
        v_mov_b32 v24, {LDS_CNT + 4*word}
        v_mov_b32 v25, 1
        s_mov_b64 exec, 1
        ds_add_u32 v24, v25
        s_mov_b64 exec, -1
        s_mov_b32 s{sSpin}, 0
        L_{lbl}c:
        ds_read_b32 v25, v24
        s_add_u32 s{sSpin}, s{sSpin}, 1
        s_waitcnt lgkmcnt(0)
        v_readfirstlane_b32 s48, v25
        s_cmp_ge_u32 s{sSpin}, {SPIN_MAX}
        s_cbranch_scc1 L_{lbl}cd
        s_cmp_lt_u32 s48, 4
        s_cbranch_scc1 L_{lbl}c
        L_{lbl}cd:
        """)
    meet(0, "q0")
    if "qfine" in OPT: stamp(a, 10)
    ZR = 160
    for P in range(4):
        a(f"ds_read_b128 v[{ZR+4*P}:{ZR+4*P+3}], v15 offset:{P*1024}")
    a(f"ds_read_b64 v[{ZR+16}:{ZR+17}], v15 offset:4096")
    a("s_waitcnt lgkmcnt(0)")
    def proj(zr, qoff, lbl):
        a("s_setprio 3")
        for P in range(4):
            for d in range(3):
                base = WO + 18 * d; acc = 20 + 4 * d
                c = "0" if P == 0 else f"v[{acc}:{acc+3}]"
                a(f"v_mfma_f32_16x16x32_bf16 v[{acc}:{acc+3}], v[{base+4*P}:{base+4*P+3}], v[{zr+4*P}:{zr+4*P+3}], {c}")
        a("s_nop 7")
        for d in range(3):
            base = WO + 18 * d; acc = 20 + 4 * d
            a(f"v_mfma_f32_16x16x16_bf16 v[{acc}:{acc+3}], v[{base+16}:{base+17}], v[{zr+16}:{zr+17}], v[{acc}:{acc+3}]")
        a("s_setprio 0\ns_nop 7")
        for d in range(3):
            acc = 20 + 4 * d
            if d == 2: a(f"s_cmp_lg_u32 s{sH}, 0\ns_cbranch_scc1 L_pj_{lbl}")
            a(f"v_cvt_pk_bf16_f32 v{32+2*d}, v{acc}, v{acc+1}\nv_cvt_pk_bf16_f32 v{33+2*d}, v{acc+2}, v{acc+3}")
            a(f"buffer_store_dwordx2 v[{32+2*d}:{33+2*d}], v41, s[{sO}:{sO+3}], 0 offen offset:{qoff + 128*d}")
        a(f"L_pj_{lbl}:")
    if "qfine" in OPT: stamp(a, 11)
    proj(ZR, 0, "q0")
    stamp(a, 4)
    z_unit_setup(a, 1, LDS_Y0)
    a(f"s_add_u32 s60, s{sH}, 4\ns_cmp_eq_u32 s{sH}, 0\ns_cselect_b32 s61, 8, s{sH}")
    z_units(a, [sH, 60, 61], "q1", 2)
    meet(1, "q1")
    stamp(a, 5)
    for P in range(4):
        a(f"ds_read_b128 v[{ZR+4*P}:{ZR+4*P+3}], v15 offset:{P*1024}")
    a(f"ds_read_b64 v[{ZR+16}:{ZR+17}], v15 offset:4096")
    a("s_waitcnt lgkmcnt(0)")
    proj(ZR, 576, "q1")
    stamp(a, 6)
    a("s_waitcnt vmcnt(0)")
    if "dur" in OPT:
        a(f"""
        s_memrealtime s[100:101]
        s_waitcnt lgkmcnt(0)
        s_cmp_lg_u32 s{sH}, 0
        s_cbranch_scc1 L_nodur
        s_mov_b32 s48, -1
        s_cmp_eq_u32 s2, 0
        s_cselect_b32 s48, 8, s48
        s_cmp_eq_u32 s2, 100
        s_cselect_b32 s48, 16, s48
        s_cmp_eq_u32 s2, 251
        s_cselect_b32 s48, 24, s48
        v_mov_b32 v4, s98
        v_mov_b32 v5, s100
        v_mov_b32 v6, s48
        s_mov_b64 exec, 1
        buffer_store_dwordx2 v[4:5], v6, s[{sD}:{sD+3}], 0 offen
        s_waitcnt vmcnt(0)
        s_mov_b64 exec, -1
        L_nodur:
        """)
    stamp(a, 7)
    stamp(a, 8)
    HF_OFF[0] = False
    stamp_flush(a)
    a("s_endpgm")
def gf_flag_addr(a):
    a(f"""
    v_min_u32 v63, 27, v0
    s_mul_i32 s48, s{sNG}, 28
    v_add_u32 v63, s48, v63
    v_lshlrev_b32 v63, 7, v63
    v_add_u32 v63, {FL_OFF}, v63
    """)
sys.stdout.write(gen())
```

```python
import sys
from asmlib import *
OPT = set(sys.argv[1].split(",")) if len(sys.argv) > 1 else set()
OPT.add("poisB")
STAMP = "stamp" in OPT
NAME = "standalone__autoregressive_conv_wavenet__speech_kernel"
XROWS = 352
LDS_W = XROWS * 288
WSLOT = 16384
LDS_S = LDS_W + 3 * WSLOT
SSLOT = 176 * 32
LDS_TOTAL = 163840
LDS_Y0 = LDS_W
LDS_Y1 = LDS_W + 36864
LDS_Z = LDS_W + 57344
LDS_SP = LDS_S + 2 * SSLOT
LDS_CNT = LDS_Y1 + 4096
GF_PROD = 9 * 72 * 2048
GF_SIZE = 2 * GF_PROD
E_OFF = 0x400000
E_SIZE = 28 * 9 * 2 * 18 * 512
FL_OFF = 0x900000
FL_SIZE = 256 * 128
W_SIZE = 31 * 144 * 288 * 2
XB_SIZE = 4000 * 288
STAMP_OFF = 0x1000000
SPIN_MAX = 200000
NOFF = 128 if 'dur' in OPT else 0
sX, sW, sG, sE, sO, sWo, sD, sF = 16, 20, 24, 28, 32, 36, 84, 88
sNG, sMT, sMTL, sB, sC0, sWV = 42, 43, 44, 45, 46, 47
sIt = 63
sT = 68
sNonce = 80
sSpin = 81
sCP = 82
ST0 = 92
def srd(a, d, lo, hi, size):
    a(f"s_mov_b32 s{d}, s{lo}\ns_and_b32 s{d+1}, s{hi}, 0xffff\ns_mov_b32 s{d+2}, {size}\ns_mov_b32 s{d+3}, 0x20000")
HF_OFF = [False]
def stamp(a, idx):
    if not STAMP or HF_OFF[0]: return
    import inspect
    if "xfine" in OPT and idx != 0 and 'xfine' not in inspect.stack()[1].code_context[0]: return
    a(f"s_memtime s[{ST0}:{ST0+1}]\ns_memrealtime s[{ST0+2}:{ST0+3}]\ns_waitcnt lgkmcnt(0)")
    a(f"v_writelane_b32 v253, s{ST0}, {2*idx}\nv_writelane_b32 v253, s{ST0+2}, {2*idx+1}")
def stamp_dyn(a, base, sreg):
    if not STAMP or HF_OFF[0] or "lite" in OPT: return
    a(f"s_memtime s[{ST0}:{ST0+1}]\ns_memrealtime s[{ST0+2}:{ST0+3}]\ns_waitcnt lgkmcnt(0)")
    a(f"s_lshl_b32 s96, s{sreg}, 1\ns_add_u32 m0, s96, {2*base}\ns_nop 3")
    a(f"v_writelane_b32 v253, s{ST0}, m0\ns_add_u32 m0, m0, 1\ns_nop 3\nv_writelane_b32 v253, s{ST0+2}, m0")
def stamp_dyn2(a, base, sreg, k):
    if not STAMP or HF_OFF[0]: return
    a(f"s_memtime s[{ST0}:{ST0+1}]\ns_memrealtime s[{ST0+2}:{ST0+3}]\ns_waitcnt lgkmcnt(0)")
    a(f"s_lshl_b32 s96, s{sreg}, 2\ns_add_u32 m0, s96, {2*(base+k)}\ns_nop 3")
    a(f"v_writelane_b32 v253, s{ST0}, m0\ns_add_u32 m0, m0, 1\ns_nop 3\nv_writelane_b32 v253, s{ST0+2}, m0")
def stamp_flush(a):
    if not STAMP: return
    a(f"""
    s_mov_b32 s{ST0}, s14
    s_and_b32 s{ST0+1}, s15, 0xffff
    s_mov_b32 s{ST0+2}, 0x2000000
    s_mov_b32 s{ST0+3}, 0x20000
    s_lshl_b32 s48, s2, 3
    s_add_u32 s48, s48, s{sWV}
    s_lshl_b32 s48, s48, 7
    s_add_u32 s48, s48, {STAMP_OFF}
    v_lshlrev_b32 v252, 2, v0
    v_add_u32 v252, s48, v252
    s_mov_b64 exec, 0xffffffff
    buffer_store_dword v253, v252, s[{ST0}:{ST0+3}], 0 offen
    s_waitcnt vmcnt(0)
    s_mov_b64 exec, -1
    """)
def bf16_op(a, op, dst, xa, xb, t):
    a(f"v_lshlrev_b32 v{t}, 16, v{xa}")
    a(f"v_lshlrev_b32 v{t+1}, 16, v{xb}")
    a(f"v_and_b32 v{t+2}, 0xffff0000, v{xa}")
    a(f"v_and_b32 v{t+3}, 0xffff0000, v{xb}")
    a(f"{op} v{t}, v{t}, v{t+1}")
    a(f"{op} v{t+2}, v{t+2}, v{t+3}")
    a(f"v_cvt_pk_bf16_f32 v{dst}, v{t}, v{t+2}")
def next_mod(a, s, n):
    a(f"s_add_u32 s{s}, s{s}, 1\ns_cmp_eq_u32 s{s}, {n}\ns_cselect_b32 s{s}, 0, s{s}")
def tr_lane(a, vd, vt, vt2):
    a(f"""
    v_lshrrev_b32 v{vd}, 5, v0
    v_lshlrev_b32 v{vd}, 10, v{vd}
    v_bfe_u32 v{vt}, v0, 4, 1
    v_mul_u32_u24 v{vt}, 544, v{vt}
    v_add_u32 v{vd}, v{vd}, v{vt}
    v_bfe_u32 v{vt}, v0, 2, 2
    v_lshlrev_b32 v{vt}, 6, v{vt}
    v_add_u32 v{vd}, v{vd}, v{vt}
    v_and_b32 v{vt}, 3, v0
    v_lshlrev_b32 v{vt}, 3, v{vt}
    v_add_u32 v{vd}, v{vd}, v{vt}
    """)
def activation(a, regs, sA, sS1, vS0, dst):
    for r in regs: a(f"v_mul_f32 v{r}, s{sA}, v{r}")
    for r in regs: a(f"v_exp_f32 v{r}, v{r}")
    for r in regs: a(f"v_add_f32 v{r}, 1.0, v{r}")
    for r in regs: a(f"v_rcp_f32 v{r}, v{r}")
    a("s_nop 0")
    for r in regs: a(f"v_fma_f32 v{r}, v{r}, s{sS1}, v{vS0}")
    for k in range(len(regs) // 2):
        a(f"v_cvt_pk_bf16_f32 v{dst+k}, v{regs[2*k]}, v{regs[2*k+1]}")
    for k in range(len(regs) // 2):
        a(f"v_min_u32 v{dst+k}, 0xfffffffe, v{dst+k}")
def activation_pk(a, pairs, sA, sS1, sOne, vS0, dst):
    for r in pairs: a(f"v_pk_mul_f32 v[{r}:{r+1}], v[{r}:{r+1}], s[{sA}:{sA+1}]")
    for r in pairs: a(f"v_exp_f32 v{r}, v{r}\nv_exp_f32 v{r+1}, v{r+1}")
    a("s_nop 0")
    for r in pairs: a(f"v_pk_add_f32 v[{r}:{r+1}], v[{r}:{r+1}], s[{sOne}:{sOne+1}]")
    for r in pairs: a(f"v_rcp_f32 v{r}, v{r}\nv_rcp_f32 v{r+1}, v{r+1}")
    a("s_nop 0")
    for r in pairs: a(f"v_pk_fma_f32 v[{r}:{r+1}], v[{r}:{r+1}], s[{sS1}:{sS1+1}], v[{vS0}:{vS0+1}]")
    for k, r in enumerate(pairs): a(f"v_cvt_pk_bf16_f32 v{dst+k}, v{r}, v{r+1}")
    for k in range(len(pairs)): a(f"v_min_u32 v{dst+k}, 0xfffffffe, v{dst+k}")

def act_consts(a, nh_s, sA, sS1, vS0):
    a(f"""
    s_lshl_b32 s48, s{sNG}, 1
    s_add_u32 s48, s48, {nh_s}
    s_cmp_lt_u32 s48, 9
    s_mov_b32 s{sA}, 0xbfb8aa3b
    s_cselect_b32 s{sA}, 0xc038aa3b, s{sA}
    s_cselect_b32 s{sS1}, 2.0, 1.0
    s_cselect_b32 s49, -1.0, 0
    v_mov_b32 v{vS0}, s49
    """)
def z_mul(a, dst, f, g, t):
    bf16_op(a, "v_mul_f32", dst, f, g, t)
MAP_B = """s_mul_i32 s51, s48, 7282
    s_lshr_b32 s51, s51, 16
    s_mul_i32 s49, s51, 9
    s_sub_u32 s42, s48, s49"""
MAP_A = """s_mul_i32 s42, s48, 9363
    s_lshr_b32 s42, s42, 16
    s_mul_i32 s49, s42, 7
    s_sub_u32 s51, s48, s49"""
RAWSLEEP = next((f"s_sleep {o[2:]}" for o in OPT if o.startswith("rs")), "")
XALL = "xall" in OPT
Q0S = next((int(o[3:]) for o in OPT if o.startswith("q0s")), 20)
Q0N = next((int(o[3:]) for o in OPT if o.startswith("q0n")), 12)
Q1N = next((int(o[3:]) for o in OPT if o.startswith("q1n")), 2)
YB = next((int(o[2:]) for o in OPT if o.startswith("yb")), 16)
Q1W = next((int(o[3:]) for o in OPT if o.startswith("q1w")), 0)
WOS = next((int(o[3:]) for o in OPT if o.startswith("wos")), 2)
POS = next((int(o[3:]) for o in OPT if o.startswith("pos")), 2)
ABAR = next((int(o[4:]) for o in OPT if o.startswith("abar")), 12)
TG = next((int(o[2:]) for o in OPT if o.startswith("tg")), 5)
MAPCODE = MAP_B if "mapb" in OPT else MAP_A
def gen():
    a = Asm()
    a(f"; @launch grid=(252,1,1) block=(512,1,1) lds={LDS_TOTAL}")
    a('.amdgcn_target "amdgcn-amd-amdhsa--gfx950"')
    a(".text")
    a(f".globl {NAME}")
    kernel_header(a, NAME)
    a("s_cmp_ge_u32 s2, 252\ns_cbranch_scc1 L_end")
    a("""
    s_load_dwordx4 s[4:7], s[0:1], 0
    s_load_dwordx4 s[8:11], s[0:1], 16
    s_load_dwordx4 s[12:15], s[0:1], 32
    s_getpc_b64 s[40:41]
    L_pc:
    s_lshr_b32 s48, s2, 3
    s_mul_i32 s48, s48, 6
    v_add_u32 v1, s48, v0
    v_lshlrev_b32 v1, 7, v1
    v_min_u32 v1, L_code_end-L_pc-4, v1
    s_mov_b64 exec, 0x3f
    global_load_dword v254, v1, s[40:41]
    s_mov_b64 exec, -1
    """)
    if STAMP: a("v_mov_b32 v253, 0")
    if "dur" in OPT: a("s_memrealtime s[98:99]")
    stamp(a, 0)
    a(f"""
    v_lshrrev_b32 v1, 6, v0
    v_and_b32 v0, 63, v0
    v_readfirstlane_b32 s{sWV}, v1
    s_and_b32 s48, s2, 7
    s_lshr_b32 s49, s2, 3
    s_and_b32 s50, s48, 3
    s_lshr_b32 s48, s48, 2
    s_lshl_b32 s48, s48, 5
    s_add_u32 s48, s48, s49
    {MAPCODE}
    s_mul_i32 s{sMT}, s50, 7
    s_add_u32 s{sMT}, s{sMT}, s51
    s_lshr_b32 s{sB}, s50, 1
    s_and_b32 s50, s50, 1
    s_mul_i32 s50, s50, 7
    s_add_u32 s{sMTL}, s50, s51
    s_mul_i32 s52, s{sMT}, 7282
    s_lshr_b32 s52, s52, 16
    s_mul_i32 s49, s52, 9
    s_sub_u32 s{sCP}, s{sMT}, s49
    s_mov_b32 s{sC0}, 0
    """)
    a(f"""
    s_cmp_eq_u32 s{sCP}, 0
    s_cselect_b32 s55, 2, 3
    s_mul_i32 s53, s52, s55
    s_sub_u32 s54, 8, s53
    s_min_u32 s54, s54, s55
    """)
    a(f"""
    v_lshrrev_b32 v3, 2, v0
    v_mul_u32_u24 v3, 576, v3
    v_lshrrev_b32 v4, 5, v0
    v_lshlrev_b32 v4, 1, v4
    v_xor_b32 v4, v4, v0
    v_and_b32 v4, 3, v4
    v_lshlrev_b32 v4, 4, v4
    s_lshl_b32 s48, s{sNG}, 6
    v_add3_u32 v3, v3, v4, s48
    """)
    a("""
    v_lshrrev_b32 v12, 2, v0
    v_and_b32 v12, 4, v12
    v_xor_b32 v12, v12, v0
    v_lshlrev_b32 v12, 4, v12
    """)
    a("s_waitcnt lgkmcnt(0)")
    if "pfine" in OPT or "xfine" in OPT: stamp(a, 1)
    a(f"s_mul_i32 s48, s{sB}, {XB_SIZE}\ns_add_u32 s4, s4, s48\ns_addc_u32 s5, s5, 0")
    srd(a, sX, 4, 5, XB_SIZE)
    srd(a, sW, 6, 7, W_SIZE)
    srd(a, sD, 12, 13, 256)
    a(f"""
    s_cmp_ge_u32 s2, {1 if "nonce1" in OPT else 8}
    s_cbranch_scc1 L_nononce
    s_cmp_lg_u32 s{sWV}, 7
    s_cbranch_scc1 L_nononce
    s_memrealtime s[56:57]
    s_waitcnt lgkmcnt(0)
    s_or_b32 s56, s56, 1
    v_mov_b32 v4, s56
    v_mov_b32 v5, 0
    v_mov_b32 v6, {NOFF}
    s_mov_b64 exec, 1
    buffer_atomic_cmpswap v[4:5], v6, s[{sD}:{sD+3}], 0 offen
    s_mov_b64 exec, -1
    L_nononce:
    """)
    PL = 176
    def x_loop(lbl, end_s):
        a(f"""
        {lbl}:
        s_cmp_ge_u32 s50, 99
        s_cselect_b32 s51, 99, 0
        s_sub_u32 s50, s50, s51
        s_lshl_b32 s51, s50, 10
        s_mov_b32 m0, s51
        s_add_i32 s51, s51, s49
        s_cmp_lt_i32 s51, 0
        s_cselect_b32 s58, 0x7fff0000, 0
        v_or_b32 v11, s58, v12
        s_max_i32 s51, s51, 0
        s_add_u32 s50, s50, 4
        s_add_u32 s59, s59, 4
        buffer_load_dwordx4 v11, s[{sX}:{sX+3}], s51 offen lds
        s_cmp_lt_u32 s59, {end_s}
        s_cbranch_scc1 {lbl}
        """)
    a(f"""
    s_mul_i32 s49, s{sMTL}, {288*288}
    s_sub_i32 s49, s49, {64*288}
    s_cmp_ge_u32 s{sWV}, 4
    s_cbranch_scc1 L_hfirst
    s_mov_b32 s59, s{sWV}
    s_mul_i32 s60, s{sNG}, 11
    s_add_u32 s50, s60, s59
    """)
    x_loop("L_xl1", 99)
    if "xfine" in OPT: stamp(a, 3)
    a("s_branch L_xdone\nL_hfirst:")
    a(f"""
    s_sub_u32 s61, s{sWV}, 4
    s_add_u32 s56, s53, s61
    s_lshl_b32 s56, s56, 1
    s_mul_i32 s57, s56, 165888
    s_mul_i32 s58, s{sCP}, 9216
    s_add_u32 s57, s57, s58
    s_sub_u32 s58, s57, 82944
    s_cmp_eq_u32 s56, 0
    s_cselect_b32 s58, 0, s58
    s_cselect_b32 s59, 0x7fff0000, 0
    s_cmp_ge_u32 s61, s54
    s_cselect_b32 s60, 0x7fff0000, 0
    s_or_b32 s59, s59, s60
    v_or_b32 v24, s59, v3
    v_or_b32 v25, s60, v3
    s_cmp_eq_u32 s61, 3
    s_cbranch_scc1 L_h3first
    {RAWSLEEP}
    buffer_load_dwordx4 v[{PL}:{PL+3}], v25, s[{sW}:{sW+3}], s57 offen
    buffer_load_dwordx4 v[{PL+4}:{PL+7}], v24, s[{sW}:{sW+3}], s58 offen
    s_add_u32 s58, s57, 82944
    buffer_load_dwordx4 v[{PL+8}:{PL+11}], v25, s[{sW}:{sW+3}], s58 offen
    s_add_u32 s58, s57, 165888
    buffer_load_dwordx4 v[{PL+12}:{PL+15}], v25, s[{sW}:{sW+3}], s58 offen
    s_add_u32 s58, s57, 248832
    buffer_load_dwordx4 v[{PL+16}:{PL+19}], v25, s[{sW}:{sW+3}], s58 offen
    s_branch L_xdone
    L_h3first:
    """)
    a("L_xdone:")
    if "pfine" in OPT: stamp(a, 2)
    srd(a, sWo, 8, 9, 144 * 288)
    srd(a, sG, 14, 15, GF_SIZE)
    a(f"s_add_u32 s48, s14, {E_OFF}\ns_addc_u32 s49, s15, 0")
    srd(a, sE, 48, 49, E_SIZE)
    a(f"s_cmp_ge_u32 s{sWV}, 4\ns_cbranch_scc1 L_helper")
    gen_mfma(a)
    a("L_helper:")
    gen_helper(a)
    a("L_end:\ns_endpgm\nL_code_end:")
    a('.section .rodata,"a"')
    a(".p2align 6")
    kernel_desc(a, NAME, 256)
    return a.text()
M_, Y_ = 16, 52
XF = 88
GR = 136
WA, WB = 184, GR + 32
vS0, vS1r, vW, vG, vX, vXn, vXb, vWb, vPt = 2, 3, 4, 5, 6, 7, 8, 9, 13
vW0 = 14
sSlotW = 61
TW, TR, TE, TF, TS = 200, 201, 202, 206, 204
sGo0, sGo1, sDx = 66, 67, 76
class Sched:
    def __init__(self, a):
        self.a = a; self.lds = []; self.vm = []
    def lds_issue(self, tag): self.lds.append(tag)
    def vm_issue(self, tag): self.vm.append(tag)
    def need(self, ltags=(), vtags=()):
        parts = []
        li = max((i for i, t in enumerate(self.lds) if t in ltags), default=-1)
        if li >= 0:
            n = min(len(self.lds) - 1 - li, 15)
            parts.append(f"lgkmcnt({n})")
            self.lds = self.lds[len(self.lds) - n:] if n > 0 else []
        vi = max((i for i, t in enumerate(self.vm) if t in vtags), default=-1)
        if vi >= 0:
            n = len(self.vm) - 1 - vi
            parts.append(f"vmcnt({n})")
            self.vm = self.vm[len(self.vm) - n:] if n > 0 else []
        if parts:
            self.a("s_waitcnt " + " ".join(parts))
LOOK = next((int(o[4:]) for o in OPT if o.startswith("look")), 5)
def steady(entry, exit_):
    return len(exit_) <= len(entry) and (not exit_ or entry[-len(exit_):] == exit_)
def chunk_order():
    return [(sp, i - 3 + sp, i) for i in range(12) for sp in range(4) if 0 <= i - 3 + sp <= 8]
LAST_USE = {}
for n_, (s_, T_, i_) in enumerate(chunk_order()): LAST_USE[i_] = n_

def emit_chunk(a, sc, acc, wreg, wtags, fillers, pre=None, lookahead=None):
    lookahead = lookahead or LOOK
    order = chunk_order()
    for n, (s, T, i) in enumerate(order):
        if pre is not None:
            for f in pre[n]: f()
        pend_l = set(sc.lds); pend_v = set(sc.vm)
        now_l = ({f"x{i}"} | set(wtags[s][0])) & pend_l
        now_v = set(wtags[s][1]) & pend_v
        if now_l or now_v:
            lt = set()
            for (s2, T2, i2) in order[n:n + lookahead]:
                lt |= {f"x{i2}"} | set(wtags[s2][0])
            lt &= pend_l
            sc.need(lt if now_l else (), now_v)
        d = acc + 4 * T
        a(f"v_mfma_f32_16x16x32_bf16 v[{d}:{d+3}], v[{wreg+4*s}:{wreg+4*s+3}], v[{XF+4*i}:{XF+4*i+3}], v[{d}:{d+3}]")
        for f in fillers[n]: f()

def place(items, start, step=1, ngaps=36):
    g = [[] for _ in range(ngaps)]
    for k, it in enumerate(items):
        g[start + k * step].append(it)
    return g
def merge(*gs):
    return [sum((g[n] for g in gs), []) for n in range(len(gs[0]))]
def gen_mfma(a):
    ins = lambda t: (lambda: a(t))
    a(f"v_mov_b32 v{vW0}, v3")
    for i in range(1, 4):
        a(f"v_add_u32 v{16+i}, {i*(165888-1024)}, v3")
    a(f"""
    s_mul_i32 s48, s{sWV}, {4*165888}
    s_lshl_b32 s49, s{sWV}, 12
    s_add_u32 m0, s49, {LDS_W}
    s_nop 0
    buffer_load_dwordx4 v3, s[{sW}:{sW+3}], s48 offen lds
    """)
    for i in range(1, 4):
        a(f"buffer_load_dwordx4 v{16+i}, s[{sW}:{sW+3}], s48 offen offset:{i*1024} lds")
    if "pfine" in OPT: stamp(a, 3)
    a("s_setprio 1")
    a(f"s_lshr_b32 s{sT}, s{sWV}, 1\ns_and_b32 s{sT+1}, s{sWV}, 1")
    a(f"""
    v_bfe_u32 v10, v0, 1, 2
    v_bfe_u32 v11, v0, 3, 1
    v_mul_u32_u24 v11, 36, v11
    v_add_u32 v10, v10, v11
    v_lshrrev_b32 v11, 5, v0
    v_sub_u32 v10, v10, v11
    s_lshl_b32 s{sT+2}, s{sT}, 1
    s_sub_u32 s{sT+2}, 4, s{sT+2}
    v_add_u32 v10, s{sT+2}, v10
    v_and_b32 v11, 1, v0
    v_bfe_u32 v12, v0, 4, 1
    v_lshlrev_b32 v12, 4, v12
    v_lshl_add_u32 v15, v10, 2, v11
    v_mul_u32_u24 v{vXb}, 288, v15
    v_add_u32 v{vXb}, v{vXb}, v12
    v_lshl_add_u32 v15, v10, 1, v11
    v_bfe_u32 v10, v15, 2, 1
    v_lshlrev_b32 v10, 4, v10
    v_xor_b32 v10, v10, v12
    v_lshl_add_u32 v{vS0}, v15, 5, v10
    v_add_u32 v{vS0}, {LDS_S}, v{vS0}
    v_add_u32 v{vS1r}, {SSLOT}, v{vS0}
    """)
    tr_lane(a, vWb, 10, 11)
    a(f"""
    s_lshl_b32 s{sT+2}, s{sT+1}, 5
    v_xor_b32 v{vWb}, s{sT+2}, v{vWb}
    s_lshl_b32 s{sT+2}, s{sT}, 11
    s_add_u32 s{sT+2}, s{sT+2}, {LDS_W}
    v_add_u32 v{vWb}, s{sT+2}, v{vWb}
    s_mul_i32 s{sT+2}, s{sNG}, 147456
    s_lshl_b32 s{sT+3}, s{sT}, 13
    s_add_u32 s{sT+2}, s{sT+2}, s{sT+3}
    s_lshl_b32 s{sT+3}, s{sT+1}, 10
    s_add_u32 s{sT+2}, s{sT+2}, s{sT+3}
    v_lshlrev_b32 v{vG}, 4, v0
    v_add_u32 v{vG}, s{sT+2}, v{vG}
    """)
    a(f"""
    s_mov_b32 s{sT+5}, s{sT}
    s_mul_i32 s48, s{sWV}, 5120
    s_add_u32 s48, s48, {LDS_Y1}
    v_lshlrev_b32 v10, 4, v0
    v_add_u32 v{TW}, s48, v10
    s_xor_b32 s49, s{sWV}, 2
    s_mul_i32 s48, s49, 5120
    s_add_u32 s48, s48, {LDS_Y1}
    v_add_u32 v{TR}, s48, v10
    s_lshl_b32 s48, s{sWV}, 2
    s_add_u32 s48, s48, {LDS_CNT + 16}
    v_mov_b32 v{TF}, s48
    s_lshl_b32 s48, s49, 2
    s_add_u32 s48, s48, {LDS_CNT + 16}
    v_mov_b32 v{TF+1}, s48
    """)
    act_consts(a, f"s{sT+1}", 84, 86, TS)
    a(f"""
    s_mov_b32 s85, s84
    s_mov_b32 s87, s86
    s_mov_b32 s88, 1.0
    s_mov_b32 s89, 1.0
    v_mov_b32 v{TS+1}, v{TS}
    s_mul_i32 s49, s{sMT}, {9*2*18*512}
    s_lshl_b32 s48, s48, 9
    s_add_u32 s48, s48, s49
    s_add_u32 s48, s48, {18*512}
    s_mul_i32 s49, s{sT}, {2*18*512}
    s_add_u32 s48, s48, s49
    v_lshlrev_b32 v{TE}, 3, v0
    v_add_u32 v{TE}, s48, v{TE}
    """)
    for r in range(M_, Y_ + 36):
        a(f"v_mov_b32 v{r}, 0")
    a(f"""
    s_mov_b32 s{sSlotW}, 0
    s_mov_b32 s{sIt}, 0
    v_mov_b32 v{vW}, v{vWb}
    """)
    PF = "pfine" in OPT
    stamp(a, 4 if PF else 1)
    a("s_waitcnt vmcnt(4)\ns_barrier")
    stamp(a, 5 if PF else 2)
    for i in range(1, 4):
        a(f"v_add_u32 v{123+i}, {i*(165888-1024)}, v{vW0}")
    a(f"""
    s_mul_i32 s48, s{sWV}, {4*165888}
    s_add_u32 s48, s48, 9216
    s_lshl_b32 s49, s{sWV}, 12
    s_add_u32 m0, s49, {LDS_W + WSLOT}
    s_nop 0
    buffer_load_dwordx4 v{vW0}, s[{sW}:{sW+3}], s48 offen lds
    """)
    for i in range(1, 4):
        a(f"buffer_load_dwordx4 v{123+i}, s[{sW}:{sW+3}], s48 offen offset:{i*1024} lds")
    a("s_waitcnt vmcnt(4)\ns_barrier")
    stamp(a, 6 if PF else 3)
    sc = Sched(a)
    def rd_x(i, vaddr, imm):
        def f():
            a(f"ds_read_b128 v[{XF+4*i}:{XF+4*i+3}], v{vaddr} offset:{imm}")
            sc.lds_issue(f"x{i}")
        return f
    def rd_w(wreg, s_, h):
        def f():
            a(f"ds_read_b64_tr_b16 v[{wreg+4*s_+2*h}:{wreg+4*s_+2*h+1}], v{vW} offset:{4096*s_ + 256*h}")
            sc.lds_issue(f"w{wreg}_{s_}")
        return f
    def gload(setidx, s_):
        reg = GR + 16 * setidx + 4 * s_
        so = sGo0 if s_ < 2 else sGo1
        def f():
            a(f"buffer_load_dwordx4 v[{reg}:{reg+3}], v{vG}, s[{sG}:{sG+3}], s{so} offen offset:{(s_ & 1)*2048} sc1")
            sc.vm_issue(f"g{setidx}_{s_}")
        return f
    def at(pairs):
        g = [[] for _ in range(36)]
        for n, f in pairs: g[n].append(f)
        return g
    def swz_items(dst):
        return [ins(f"v_add_u32 v{dst}, s{sDx}, v{vXb}"), ins(f"v_lshrrev_b32 v{vPt}, 2, v{dst}"),
                ins(f"v_and_b32 v{vPt}, 64, v{vPt}"), ins(f"v_xor_b32 v{dst}, v{dst}, v{vPt}")]
    def barrier_drain(vm=None):
        def f():
            if "a_nodrain" in OPT:
                a("s_barrier"); return
            sc.need(set(sc.lds), ())
            a(f"s_waitcnt vmcnt({vm})\ns_barrier" if vm is not None else "s_barrier")
        return f
    wtags_a = lambda wreg: [([f"w{wreg}_{s_}"], []) for s_ in range(4)]
    wtags_b = lambda u: [([], [f"g{u}_{s_}"]) for s_ in range(4)]
    BAR = ABAR
    def reload_gaps_after_bar():
        g, n = {}, BAR + 1
        for i in range(12):
            n = max(n, LAST_USE[i]); g[i] = n; n += 1
            n = min(n, 35)
        return g
    RG_A = reload_gaps_after_bar()
    free_a = [n for n in range(BAR + 1, 34) if n not in RG_A.values()]

    init = [(RG_A[i], rd_x(i, vS0, 256 * i)) for i in range(12)]
    init += list(zip(free_a[:8], [rd_w(WA, s_, h) for s_ in (3, 2, 1, 0) for h in range(2)]))
    for row in at(init):
        for f in row: f()

    def a_chunk(it_par, kind, vm):
        wcur, wnxt = (WA, WB) if it_par == 0 else (WB, WA)
        vsn = vS1r if it_par == 0 else vS0
        items = [(BAR, barrier_drain(vm))]
        if kind != "B":
            items += [(0, ins(f"s_add_u32 s{sSlotW}, s{sSlotW}, {WSLOT}\ns_cmp_eq_u32 s{sSlotW}, {3*WSLOT}")),
                      (1, ins(f"s_cselect_b32 s{sSlotW}, 0, s{sSlotW}")),
                      (2, ins(f"v_add_u32 v{vW}, s{sSlotW}, v{vWb}"))]
            items += [(RG_A[i], rd_x(i, vsn, 256 * i)) for i in range(12)]
            ws = [rd_w(wnxt, s_, h) for s_ in (3, 2, 1, 0) for h in range(2)]
            if "a_notr" not in OPT: items += list(zip(free_a[:8], ws))
        else:
            items += [(0, ins(f"s_mov_b32 s{sDx}, 576"))] + list(zip((1, 2, 3, 4), swz_items(vX)))
            items += [(RG_A[i], rd_x(i, vX, 4608 * i)) for i in range(12)]
            items += [(free_a[0], ins(f"s_mov_b32 s{sDx}, {576 + 32}"))] + list(zip(free_a[1:5], swz_items(vXn)))
            items += [(35, ins(f"v_mov_b32 v{vX}, v{vXn}"))]
        if kind in ("G0", "B"):
            gs = 0 if kind == "G0" else 1
            items += [(3, ins(f"s_mov_b32 s{sGo0}, {gs*16384}\ns_mov_b32 s{sGo1}, {gs*16384 + 4096}"))]
            ggaps = [min(BAR + 3 + 5 * k, 33) for k in range(4)]
            items += list(zip(ggaps, [gload(gs, s_) for s_ in range(4)]))
        emit_chunk(a, sc, M_, wcur, wtags_a(wcur), at(items))

    a("L_A:")
    st = list(sc.lds)
    a_chunk(0, "A", 0)
    if PF: stamp_dyn2(a, 7, sIt, 0)
    a_chunk(1, "A", None)
    assert "a_notr" in OPT or "a_nodrain" in OPT or steady(st, sc.lds), (sc.lds, st)
    if PF: stamp_dyn2(a, 7, sIt, 1)
    if "aavg" in OPT:
        a(f"s_cmp_eq_u32 s{sIt}, 1\ns_cbranch_scc1 L_aavg_no")
        stamp_dyn(a, 5, sIt)
        a("L_aavg_no:")
    a(f"s_add_u32 s{sIt}, s{sIt}, 1\ns_cmp_lt_u32 s{sIt}, 3\ns_cbranch_scc1 L_A")
    a_chunk(0, "A", None)
    if PF: stamp(a, 13)
    a_chunk(1, "G0", None)
    if PF: stamp(a, 14)
    a_chunk(0, "B", None)
    stamp(a, 15 if PF else 4)
    if PF or "aavg" in OPT: HF_OFF[0] = True

    sTrip = sT + 4
    a(f"s_mov_b32 s{sDx}, {576 + 32}\ns_mov_b32 s{sGo0}, 16384")
    def b_chunk(acc, u, switch=False, extra=(), pre=None):
        items = [(LAST_USE[i], rd_x(i, vX, 4608 * i)) for i in range(12)] if "b_nox" not in OPT else []
        if switch:
            items += [(1, ins(f"s_add_u32 s{sDx}, s{sDx}, 32\ns_add_u32 s{sGo0}, s{sGo0}, 16384\ns_cmp_eq_u32 s{sTrip}, 2")),
                      (3, ins(f"s_cselect_b32 s{sDx}, 0, s{sDx}\ns_cselect_b32 s{sGo0}, {GF_PROD}, s{sGo0}"))]
        else:
            items += [(1, ins(f"s_add_u32 s{sDx}, s{sDx}, 32\ns_add_u32 s{sGo0}, s{sGo0}, 16384"))]
        items += [(4, ins(f"s_add_u32 s{sGo1}, s{sGo0}, 4096"))]
        if "b_nov" not in OPT: items += list(zip((6, 7, 8, 10), swz_items(vXn)))
        if "b_nog" not in OPT: items += list(zip((11, 15, 19, 23), [gload((u + 2) % 3, s_) for s_ in range(4)]))
        items += [(35, ins(f"v_mov_b32 v{vX}, v{vXn}"))]
        items += list(extra)
        emit_chunk(a, sc, acc, GR + 16 * u, wtags_b(u), at(items), pre)
    a(f"s_mov_b32 s{sTrip}, 0")
    a("L_B1:")
    st_l, st_v = list(sc.lds), list(sc.vm)
    for u in range(3):
        b_chunk(Y_, u, switch=(u == 1))
    stamp_dyn(a, 5, sTrip) if "pre" in OPT else None
    a("s_barrier")
    stamp_dyn(a, 5, sTrip) if "pre" not in OPT else None
    a(f"s_add_u32 s{sTrip}, s{sTrip}, 1\ns_cmp_lt_u32 s{sTrip}, 3\ns_cbranch_scc1 L_B1")
    assert "b_nog" in OPT or "b_nox" in OPT or (steady(st_l, sc.lds) and steady(st_v, sc.vm)), (st_l, sc.lds)
    if "lite" in OPT: stamp(a, 5)
    a(f"""
    s_mul_i32 s{sT+1}, s{sWV}, 9216
    s_add_u32 s{sT+1}, s{sT+1}, {LDS_Y0}
    v_lshlrev_b32 v10, 4, v0
    v_add_u32 v10, s{sT+1}, v10
    """)
    first = {}
    for n, (s_, T, i) in enumerate(chunk_order()): first.setdefault(T, n)
    pre = [[] for _ in range(36)]
    prev = 0
    for T in range(9):
        slots = list(range(prev, first[T] + 1)) if T > 0 else [0]
        adds = [ins(f"v_add_f32 v{Y_+4*T+r}, v{M_+4*T+r}, v{Y_+4*T+r}") for r in range(4)]
        slots = [0] if T == 0 else list(range(prev + 1, first[T] + 1))
        for k, f in enumerate(adds): pre[slots[(k * len(slots)) // 4]].append(f)
        prev = first[T]
    def ywrite(T):
        def f():
            a(f"ds_write_b128 v10, v[{Y_+4*T}:{Y_+4*T+3}] offset:{T*1024}")
            sc.lds_issue(f"yw{T}")
        return f
    wgaps = [3, 7, 11, 15, 19, 23, 27, 31, 33]
    b_chunk(M_, 0, extra=[(wgaps[T], ywrite(T)) for T in range(9)], pre=pre)
    def bar_y0():
        sc.need({f"yw{T}" for T in range(9)}, ())
        a("s_barrier")
    b_chunk(M_, 1, extra=[(YB, bar_y0)])
    b_chunk(M_, 2)
    if "lite" not in OPT: stamp(a, 8)
    a(f"s_mov_b32 s{sTrip}, 1")
    a("L_B2:")
    st_l, st_v = list(sc.lds), list(sc.vm)
    for u in range(3):
        b_chunk(M_, u)
    assert "b_nog" in OPT or "b_nox" in OPT or (steady(st_l, sc.lds) and steady(st_v, sc.vm)), (st_l, sc.lds)
    stamp_dyn(a, 8, sTrip)
    a(f"s_add_u32 s{sTrip}, s{sTrip}, 1\ns_cmp_lt_u32 s{sTrip}, 3\ns_cbranch_scc1 L_B2")

    if "lite" in OPT: stamp(a, 6)
    a("s_setprio 0")
    K = XF
    def tail(keep, send, lbl):
        for i, T in enumerate(send):
            a(f"ds_write_b128 v{TW}, v[{M_+4*T}:{M_+4*T+3}] offset:{i*1024}")
        a(f"""
        v_mov_b32 v10, 1
        s_waitcnt lgkmcnt(0)
        ds_write_b32 v{TF}, v10
        s_mov_b32 s{sSpin}, 0
        L_tp_{lbl}:
        ds_read_b32 v11, v{TF+1}
        s_add_u32 s{sSpin}, s{sSpin}, 1
        s_waitcnt lgkmcnt(0)
        v_readfirstlane_b32 s48, v11
        s_cmp_ge_u32 s{sSpin}, {SPIN_MAX}
        s_cbranch_scc1 L_td_{lbl}
        s_cmp_eq_u32 s48, 0
        s_cbranch_scc1 L_tp_{lbl}
        L_td_{lbl}:
        """)
        for i, T in enumerate(keep):
            a(f"ds_read_b128 v[{K+4*i}:{K+4*i+3}], v{TR} offset:{i*1024}")
        for g0 in range(0, len(keep), TG):
            grp = list(range(g0, min(g0 + TG, len(keep))))
            if len(keep) - grp[-1] - 1 == 1: pass
            a(f"s_waitcnt lgkmcnt({len(keep)-1-grp[-1]})")
            for i in grp:
                T = keep[i]
                for r in (0, 2):
                    a(f"v_pk_add_f32 v[{M_+4*T+r}:{M_+4*T+r+1}], v[{M_+4*T+r}:{M_+4*T+r+1}], v[{K+4*i+r}:{K+4*i+r+1}]")
            activation_pk(a, [M_ + 4*keep[i] + r for i in grp for r in (0, 2)], 84, 86, 88, TS, Y_ + 2*grp[0])
            for i in grp:
                a(f"s_mov_b32 s49, {i*2*2*18*512}")
                a(f"buffer_store_dwordx2 v[{Y_+2*i}:{Y_+2*i+1}], v{TE}, s[{sE}:{sE+3}], s49 offen sc1")
    a(f"s_waitcnt lgkmcnt(0)\ns_cmp_eq_u32 s{sT+5}, 0\ns_cbranch_scc0 L_t_k1\ns_nop 5")
    tail([0, 2, 4, 6, 8], [1, 3, 5, 7], "k0")
    a("s_branch L_t_j\nL_t_k1:\ns_nop 5")
    tail([1, 3, 5, 7], [0, 2, 4, 6, 8], "k1")
    a("L_t_j:")
    stamp(a, 7 if "lite" in OPT else 11)
    if "lite" not in OPT: stamp(a, 12)
    HF_OFF[0] = False
    stamp_flush(a)
    a("s_endpgm")
def z_unit_setup(a, q, zbase):
    a(f"""
    s_mul_i32 s48, s{sMT}, {9*2*18*512}
    s_mul_i32 s49, s{sNG}, {2*18*512}
    s_add_u32 s48, s48, s49
    s_add_u32 s48, s48, {q*18*512}
    v_lshlrev_b32 v14, 3, v0
    v_add_u32 v14, s48, v14
    v_lshlrev_b32 v15, 4, v0
    v_add_u32 v15, {zbase}, v15
    """)
def z_units(a, cts, lbl, nap):
    ZL, ZZ, ZT, ZM = 128, 140, 146, 150
    for u, c in enumerate(cts):
        a(f"s_lshl_b32 s{50+2*u}, s{c}, 9\ns_add_u32 s{51+2*u}, s{50+2*u}, 4608")
    a(f"s_mov_b32 s{sSpin}, 0\nL_zp_{lbl}:")
    for u in range(len(cts)):
        a(f"buffer_load_dwordx2 v[{ZL+4*u}:{ZL+4*u+1}], v14, s[{sE}:{sE+3}], s{50+2*u} offen sc1")
        a(f"buffer_load_dwordx2 v[{ZL+4*u+2}:{ZL+4*u+3}], v14, s[{sE}:{sE+3}], s{51+2*u} offen sc1")
    a(f"s_add_u32 s{sSpin}, s{sSpin}, 1\ns_waitcnt vmcnt(0)")
    a(f"v_max_u32 v{ZM}, v{ZL}, v{ZL+1}\nv_max3_u32 v{ZM}, v{ZM}, v{ZL+2}, v{ZL+3}")
    for u in range(1, len(cts)):
        a(f"v_max3_u32 v{ZM}, v{ZM}, v{ZL+4*u}, v{ZL+4*u+1}\nv_max3_u32 v{ZM}, v{ZM}, v{ZL+4*u+2}, v{ZL+4*u+3}")
    a(f"""
    v_cmp_eq_u32 vcc, -1, v{ZM}
    s_cmp_ge_u32 s{sSpin}, {SPIN_MAX}
    s_cbranch_scc1 L_zd_{lbl}
    s_cbranch_vccz L_zd_{lbl}
    """)
    if nap: a(f"s_sleep {nap}")
    a(f"s_branch L_zp_{lbl}\nL_zd_{lbl}:")
    for u, c in enumerate(cts):
        z_mul(a, ZZ + 2*u, ZL + 4*u, ZL + 4*u + 2, ZT)
        z_mul(a, ZZ + 2*u + 1, ZL + 4*u + 1, ZL + 4*u + 3, ZT)
        a(f"""
        s_lshr_b32 s48, s{c}, 1
        s_lshl_b32 s48, s48, 10
        s_and_b32 s49, s{c}, 1
        s_lshl_b32 s49, s49, 3
        s_add_u32 s48, s48, s49
        v_add_u32 v{ZM}, s48, v15
        ds_write_b64 v{ZM}, v[{ZZ+2*u}:{ZZ+2*u+1}]
        """)
WO = 64
def gen_helper(a):
    sH = sT
    sCw, sSl, sCs, sSs = 72, 73, 74, 75
    vSx, vSw, vPat, vLo = 20, 21, 22, 23
    SB, SD, ID, IJ = 28, 40, 52, 56
    a(f"s_sub_u32 s{sH}, s{sWV}, 4")
    if "pfine" in OPT: HF_OFF[0] = True
    for i in range(4):
        a(f"v_add_u32 v{16+i}, {i*(165888-1024)}, v3")
    a(f"s_mul_i32 s{sCw}, s{sH}, {4*165888}\ns_lshl_b32 s{sSl}, s{sH}, 12\ns_add_u32 s{sSl}, s{sSl}, {LDS_W}")
    def wdma(k):
        a(f"s_add_u32 m0, s{sSl}, {(k % 3) * WSLOT}\ns_add_u32 s50, s{sCw}, {k * 9216}")
        for i in range(4):
            if "nodma" not in OPT:
                a(f"buffer_load_dwordx4 v{16+i}, s[{sW}:{sW+3}], s50 offen offset:{i*1024} lds")
    PL = 176
    a(f"""
    v_bfe_u32 v24, v0, 1, 3
    v_lshlrev_b32 v24, 2, v24
    v_and_b32 v25, 1, v0
    v_add_u32 v24, v24, v25
    v_lshrrev_b32 v25, 5, v0
    v_lshl_add_u32 v24, v25, 1, v24
    v_mul_u32_u24 v{vSx}, 288, v24
    v_bfe_u32 v24, v0, 4, 1
    v_lshl_add_u32 v{vSx}, v24, 4, v{vSx}
    s_mul_i32 s48, s{sH}, 9216
    v_add_u32 v{vSx}, s48, v{vSx}
    v_and_b32 v24, 15, v0
    v_lshlrev_b32 v24, 5, v24
    v_bfe_u32 v26, v0, 2, 1
    v_xor_b32 v26, v26, v25
    v_lshl_add_u32 v24, v26, 4, v24
    v_bfe_u32 v26, v0, 4, 1
    v_lshl_add_u32 v24, v26, 3, v24
    s_lshl_b32 s48, s{sH}, 9
    s_add_u32 s48, s48, {LDS_S}
    v_add_u32 v{vSw}, s48, v24
    v_sub_u32 v{vLo}, 1, v25
    v_bfe_u32 v24, v0, 4, 1
    v_mul_u32_u24 v{vPat}, 544, v24
    v_bfe_u32 v24, v0, 2, 2
    v_lshl_add_u32 v{vPat}, v24, 6, v{vPat}
    v_and_b32 v24, 3, v0
    v_lshl_add_u32 v{vPat}, v24, 3, v{vPat}
    """)
    a(f"""
    v_lshrrev_b32 v24, 3, v0
    v_lshrrev_b32 v26, 4, v0
    v_xor_b32 v24, v24, v26
    v_and_b32 v24, 1, v24
    v_and_b32 v26, 1, v0
    v_lshlrev_b32 v26, 4, v26
    v_mov_b32 v27, 0x3f80
    v_lshlrev_b32 v27, v26, v27
    v_lshlrev_b32 v28, 15, v25
    v_lshlrev_b32 v28, v26, v28
    v_or_b32 v28, v28, v27
    v_bfe_u32 v26, v0, 1, 2
    v_lshl_or_b32 v26, v24, 2, v26
    """)
    for r in range(4):
        a(f"v_cmp_eq_u32 vcc, {r}, v26\ns_nop 1\nv_cndmask_b32 v{ID+r}, 0, v27, vcc\nv_cndmask_b32 v{IJ+r}, 0, v28, vcc")
    srd(a, sF, 14, 15, FL_OFF + FL_SIZE)
    SX, SW0 = 196, 205
    for c in range(9):
        a(f"v_add_u32 v24, {32*c}, v{vSx}\nv_lshrrev_b32 v25, 2, v24\nv_and_b32 v25, 64, v25\nv_xor_b32 v{SX+c}, v24, v25")
    a(f"v_mov_b32 v{SW0}, v{vSw}\nv_add_u32 v{SW0+1}, {SSLOT}, v{vSw}")
    def s_reads(c):
        if "nos" in OPT and c > 0: return
        a(f"""
        ds_read_b128 v[{SB}:{SB+3}], v{SX+c}
        ds_read_b128 v[{SB+4}:{SB+7}], v{SX+c} offset:{4*9216}
        v_add_u32 v25, {8*9216}, v{SX+c}
        ds_read_b128 v[{SB+8}:{SB+11}], v25
        """)
    def s_compute(c, between=None):
        if "nos" in OPT and c > 0:
            if between: between()
            return
        vw = SW0 + (c & 1)
        a("s_setprio 3")
        for k in range(3):
            a(f"v_mfma_f32_16x16x32_bf16 v[{SD+4*k}:{SD+4*k+3}], v[{ID}:{ID+3}], v[{SB+4*k}:{SB+4*k+3}], 0")
        if "hiwr" not in OPT: a("s_setprio 0")
        if between: between()
        a("s_nop 7")
        for k in range(3):
            a(f"v_cvt_pk_bf16_f32 v{SD+4*k}, v{SD+4*k}, v{SD+4*k+1}\nv_cvt_pk_bf16_f32 v{SD+4*k+1}, v{SD+4*k+2}, v{SD+4*k+3}")
            if k == 2: a(f"s_cmp_eq_u32 s{sH}, 3\ns_cbranch_scc1 L_s3_{c}")
            a(f"ds_write_b64 v{vw}, v[{SD+4*k}:{SD+4*k+1}] offset:{2048*k}")
        a(f"L_s3_{c}:")
        if "hiwr" in OPT: a("s_setprio 0")
    PB, PD, PK = 64, 128, 160
    def prod_stage():
        a(f"""
        s_mul_i32 s57, s{sH}, 5120
        s_add_u32 s57, s57, {LDS_W + 2*WSLOT}
        v_lshlrev_b32 v24, 4, v0
        v_add_u32 v24, s57, v24
        """)
        for k in range(5):
            a(f"ds_write_b128 v24, v[{PL+4*k}:{PL+4*k+3}] offset:{1024*k}")
        a("s_waitcnt lgkmcnt(0)")
        for c, e, o in ((0, 0, 1024), (2, 0, 2048), (1, 3072, 2048), (3, 3072, 4096)):
            a(f"v_mul_u32_u24 v26, {o}, v{vLo}\nv_sub_u32 v27, 1, v{vLo}\nv_mul_u32_u24 v27, {e}, v27\nv_add3_u32 v26, v26, v27, v{vPat}")
            a(f"v_add_u32 v26, s57, v26\nv_xor_b32 v27, 32, v26")
            for nh in range(2):
                b = PB + 8 * c + 4 * nh
                for h in range(2):
                    a(f"ds_read_b64_tr_b16 v[{b+2*h}:{b+2*h+1}], v{26+nh} offset:{h*256}")
        a("s_waitcnt lgkmcnt(0)")
    def production():
        a("s_setprio 3")
        for f in range(8):
            a(f"v_mfma_f32_16x16x32_bf16 v[{PD+4*f}:{PD+4*f+3}], v[{IJ}:{IJ+3}], v[{PB+4*f}:{PB+4*f+3}], 0")
        a("s_setprio 0")
        a(f"""
        s_add_u32 s57, s53, s{sH}
        s_and_b32 s58, s57, 1
        s_lshl_b32 s58, s58, 2
        s_lshr_b32 s57, s57, 1
        s_add_u32 s57, s57, s58
        s_lshl_b32 s58, s{sCP}, 3
        s_add_u32 s57, s57, s58
        s_lshl_b32 s57, s57, 11
        s_mul_i32 s58, s{sNG}, 147456
        s_add_u32 s57, s57, s58
        s_cmp_ge_u32 s{sH}, s54
        s_cselect_b32 s57, 0x7f000000, s57
        s_add_u32 s58, s57, {GF_PROD}
        v_and_b32 v26, 15, v0
        v_lshlrev_b32 v26, 4, v26
        v_lshrrev_b32 v27, 5, v0
        v_lshl_add_u32 v26, v27, 8, v26
        v_bfe_u32 v27, v0, 4, 1
        v_lshl_add_u32 v26, v27, 3, v26
        """)
        a("v_mov_b32 v61, v26\ns_mov_b32 s62, s57\ns_mov_b32 s63, s58")
        for f in range(8):
            a(f"v_cvt_pk_bf16_f32 v{PK+2*f}, v{PD+4*f}, v{PD+4*f+1}\nv_cvt_pk_bf16_f32 v{PK+2*f+1}, v{PD+4*f+2}, v{PD+4*f+3}")
    def gf_stores():
        for f in range(8):
            c, nh = f >> 1, f & 1
            so = "s62" if c < 2 else "s63"
            a(f"buffer_store_dwordx2 v[{PK+2*f}:{PK+2*f+1}], v61, s[{sG}:{sG+3}], {so} offen offset:{nh*1024 + (c & 1)*512} sc1")
    a(f"s_cmp_eq_u32 s{sH}, 3\ns_cbranch_scc1 L_noprod")
    if "xfine" in OPT: stamp(a, 6)
    a("s_waitcnt vmcnt(0)")
    if "xfine" in OPT: stamp(a, 7)
    prod_stage()
    if "xfine" in OPT: stamp(a, 8)
    production()
    gf_stores()
    if "xfine" in OPT: stamp(a, 9)
    a("L_noprod:")
    if "xfine" in OPT: stamp(a, 10)
    a("s_barrier")
    if "xfine" in OPT: stamp(a, 11)
    a(f"v_mov_b32 v26, {NOFF}\ns_cmp_lg_u32 s{sH}, 3\ns_cbranch_scc1 L_H_n2\nbuffer_load_dword v60, v26, s[{sD}:{sD+3}], 0 offen sc1\nL_H_n2:")
    Q0, Q1 = 64, 88
    for c in range(2):
        a(f"""
        ds_read_b128 v[{Q0+12*c}:{Q0+12*c+3}], v{SX+c}
        ds_read_b128 v[{Q0+12*c+4}:{Q0+12*c+7}], v{SX+c} offset:{4*9216}
        v_add_u32 v{24+c}, {8*9216}, v{SX+c}
        ds_read_b128 v[{Q0+12*c+8}:{Q0+12*c+11}], v{24+c}
        """)
    for c in range(2):
        a(f"s_waitcnt lgkmcnt({3 - 3*c})")
        for k in range(3):
            a(f"v_mfma_f32_16x16x32_bf16 v[{Q1+12*c+4*k}:{Q1+12*c+4*k+3}], v[{ID}:{ID+3}], v[{Q0+12*c+4*k}:{Q0+12*c+4*k+3}], 0")
    s_reads(2)
    a("s_nop 3")
    for c in range(2):
        for k in range(3):
            r = Q1 + 12*c + 4*k
            a(f"v_cvt_pk_bf16_f32 v{r}, v{r}, v{r+1}\nv_cvt_pk_bf16_f32 v{r+1}, v{r+2}, v{r+3}")
            if k == 2: a(f"s_cmp_eq_u32 s{sH}, 3\ns_cbranch_scc1 L_s3_{c}")
            a(f"ds_write_b64 v{SW0+c}, v[{r}:{r+1}] offset:{2048*k}")
            if k == 2: a(f"L_s3_{c}:")
    a("s_waitcnt lgkmcnt(0)")
    if "xfine" in OPT: stamp(a, 12)
    if "xfine" in OPT: stamp(a, 13)
    a("s_barrier")
    if "xfine" in OPT: stamp(a, 14); HF_OFF[0] = True
    for r in range(4): a(f"v_mov_b32 v{120+r}, -1")
    def flag_store(kind):
        a(f"""
        s_mul_i32 s49, s{sNG}, 28
        s_add_u32 s49, s49, s{sMT}
        s_lshl_b32 s49, s49, 7
        """)
        a(f"s_add_u32 s49, s49, {FL_OFF + (0 if kind == 'A' else 12)}\ns_cmp_eq_u32 s{sH}, 3")
        a(f"""
        s_cselect_b32 s49, s49, 0x7f000000
        v_mov_b32 v26, s49
        v_mov_b32 v27, s{sNonce}
        s_mov_b64 exec, 1
        buffer_store_dword v27, v26, s[{sF}:{sF+3}], 0 offen sc1
        s_mov_b64 exec, -1
        """)
    a(f"""
    s_mul_i32 s56, s{sMT}, {9*2*18*512}
    s_lshl_b32 s57, s{sNG}, 10
    s_add_u32 s56, s56, s57
    v_lshlrev_b32 v119, 4, v0
    v_add_u32 v119, s56, v119
    """)
    def poison(i):
        a(f"s_add_u32 s57, s{sH}, {4*i}\ns_min_u32 s57, s57, 17\ns_mul_i32 s57, s57, {18*512}")
        a(f"buffer_store_dwordx4 v[120:123], v119, s[{sE}:{sE+3}], s57 offen sc1")
    waits = {2: 6, 3: 6, 4: 6, 5: 6, 6: 5, 7: 0}
    if "pois4" in OPT: waits = {2: 4, 3: 4, 4: 9, 5: 9, 6: 4, 7: 0}
    if "poisB" in OPT: waits = {1: 5, 2: 4, 3: 4, 4: 4, 5: 4, 6: 5 if "poll6" in OPT else 4, 7: 0}
    for it in range(9):
        if it == 5 and "hfine" in OPT: stamp(a, 1)
        if it == 0:
            wdma(2)
            a(f"""
            s_waitcnt vmcnt(4)
            s_cmp_lg_u32 s{sH}, 3
            s_cbranch_scc1 L_H_n0
            s_mov_b32 s{sSpin}, 0
            L_H_nspin:
            v_readfirstlane_b32 s{sNonce}, v60
            s_add_u32 s{sSpin}, s{sSpin}, 1
            s_cmp_lg_u32 s{sNonce}, 0
            s_cbranch_scc1 L_H_n0
            s_cmp_ge_u32 s{sSpin}, {SPIN_MAX}
            s_cbranch_scc1 L_H_n0
            s_sleep 4
            v_mov_b32 v26, {NOFF}
            buffer_load_dword v60, v26, s[{sD}:{sD+3}], 0 offen sc1
            s_waitcnt vmcnt(0)
            s_branch L_H_nspin
            L_H_n0:
            """)
        if it == 1: flag_store("A")
        if it == 7 and "poll6" not in OPT:
            gf_flag_addr(a)
            a(f"s_cmp_lg_u32 s{sH}, 3\ns_cbranch_scc1 L_H_np")
            a(f"buffer_load_dword v124, v63, s[{sF}:{sF+3}], 0 offen sc1\nL_H_np:")
        if 1 <= it <= 7:
            a("s_waitcnt lgkmcnt(0)")
            s_compute(it + 1, (lambda k=it+2: wdma(k)) if it <= 6 else None)
        if it == 5 and "hfine" in OPT: stamp(a, 7)
        if 1 <= it <= 6: s_reads(it + 2)
        if it == 6 and "poll6" in OPT:
            gf_flag_addr(a)
            a(f"buffer_load_dword v124, v63, s[{sF}:{sF+3}], 0 offen sc1")
        if "pois4" in OPT:
            if it == 4:
                for i in range(5): poison(i)
        elif "poisB" in OPT: pass
        elif 1 <= it <= 5: poison(it - 1)
        if it == 5 and "hfine" in OPT: stamp(a, 3)
        if it in waits: a(f"s_waitcnt vmcnt({waits[it]}) lgkmcnt({3 if it <= 6 else 0})")
        elif it == 1: a("s_waitcnt lgkmcnt(3)")
        if it == 5 and "hfine" in OPT: stamp(a, 4)
        if it == 7:
            a(f"""
            s_cmp_lg_u32 s{sH}, 3
            s_cbranch_scc1 L_H_f4
            s_mov_b32 s{sSpin}, 0
            L_H_fspin:
            v_cmp_ne_u32 vcc, s{sNonce}, v124
            s_add_u32 s{sSpin}, s{sSpin}, 1
            s_cmp_ge_u32 s{sSpin}, {SPIN_MAX}
            s_cbranch_scc1 L_H_f4
            s_cbranch_vccz L_H_f4
            s_sleep 2
            buffer_load_dword v124, v63, s[{sF}:{sF+3}], 0 offen sc1
            s_waitcnt vmcnt(0)
            s_branch L_H_fspin
            L_H_f4:
            """)
        a("s_barrier")
        if it == 5 and "hfine" in OPT: stamp(a, 5)
        if it == 6 and "hfine" in OPT: stamp(a, 6)
    if "hfine" not in OPT: stamp(a, 1)
    if "hfine" in OPT: HF_OFF[0] = True
    if "poisB" in OPT:
        pass
    else:
        flag_store("B")
    a(f"v_lshlrev_b32 v24, 4, v0\ns_mov_b32 s50, s{sH}")
    a(f"""
    L_wo:
    s_lshl_b32 s51, s50, 10
    s_add_u32 m0, s51, {LDS_W}
    s_add_u32 s50, s50, 4
    {"" if "b_nowo" in OPT else f"buffer_load_dwordx4 v24, s[{sWo}:{sWo+3}], s51 offen lds"}
    s_sleep {WOS}
    s_cmp_lt_u32 s50, 41
    s_cbranch_scc1 L_wo
    s_barrier
    """)
    if "poisB" in OPT:
        for i in range(5):
            poison(i)
            a(f"s_sleep {POS}")
    a(f"s_mul_i32 s48, s{sB}, {XB_SIZE}\ns_add_u32 s10, s10, s48\ns_addc_u32 s11, s11, 0")
    srd(a, sO, 10, 11, XB_SIZE)
    def check_flag_b():
        a(f"""
        v_mul_u32_u24 v62, 28, v0
        v_add_u32 v62, s{sMT}, v62
        v_lshlrev_b32 v62, 7, v62
        v_add_u32 v62, {FL_OFF + 12}, v62
        s_cmp_lg_u32 s{sH}, 3
        s_cbranch_scc1 L_fbs
        s_mov_b32 s{sSpin}, 0
        s_mov_b64 exec, 0x1ff
        L_fb:
        buffer_load_dword v61, v62, s[{sF}:{sF+3}], 0 offen sc1
        s_add_u32 s{sSpin}, s{sSpin}, 1
        s_waitcnt vmcnt(0)
        v_cmp_ne_u32 vcc, s{sNonce}, v61
        s_cmp_ge_u32 s{sSpin}, {SPIN_MAX}
        s_cbranch_scc1 L_fbd
        s_cbranch_vccz L_fbd
        s_sleep 4
        s_branch L_fb
        L_fbd:
        s_mov_b64 exec, -1
        L_fbs:
        """)
    if "poisB" not in OPT:
        check_flag_b()
    a("s_waitcnt vmcnt(5)\ns_barrier")
    a(f"""
    v_lshrrev_b32 v24, 2, v0
    v_mul_u32_u24 v24, 288, v24
    v_and_b32 v25, 3, v0
    v_lshlrev_b32 v25, 3, v25
    v_add_u32 v24, v24, v25
    s_lshl_b32 s48, s{sH}, 5
    s_add_u32 s48, s48, {LDS_W}
    v_add_u32 v24, s48, v24
    v_add_u32 v25, {8*32}, v24
    """)
    for d, (va, off) in enumerate(((24, 0), (24, 128), (25, 0))):
        base = WO + 18 * d
        for P in range(4):
            a(f"ds_read_b64_tr_b16 v[{base+4*P}:{base+4*P+1}], v{va} offset:{off + 32*P*288}")
            a(f"ds_read_b64_tr_b16 v[{base+4*P+2}:{base+4*P+3}], v{va} offset:{off + (32*P+16)*288}")
        a(f"ds_read_b64_tr_b16 v[{base+16}:{base+17}], v{va} offset:{off + 128*288}")
        a("s_waitcnt lgkmcnt(0)")
    a(f"""
    v_bfe_u32 v41, v0, 1, 2
    v_lshlrev_b32 v41, 2, v41
    v_and_b32 v42, 1, v0
    v_add_u32 v41, v41, v42
    v_bfe_u32 v42, v0, 3, 1
    v_mul_u32_u24 v42, 144, v42
    v_add_u32 v41, v41, v42
    s_mul_i32 s48, s{sMTL}, 288
    s_lshl_b32 s49, s{sNG}, 4
    s_add_u32 s48, s48, s49
    v_add_u32 v41, s48, v41
    v_mul_u32_u24 v41, 288, v41
    v_lshrrev_b32 v42, 4, v0
    v_lshlrev_b32 v42, 3, v42
    v_add_u32 v41, v41, v42
    s_lshl_b32 s48, s{sH}, 5
    v_add_u32 v41, s48, v41
    """)
    a(f"s_and_b32 s76, s{sH}, 1\ns_lshr_b32 s77, s{sH}, 1")
    act_consts(a, "s76", 78, 79, 43)
    a(f"""
    s_mul_i32 s49, s{sMT}, {9*2*18*512}
    s_lshl_b32 s48, s48, 9
    s_add_u32 s48, s48, s49
    s_mul_i32 s49, s77, {2*18*512}
    s_add_u32 s48, s48, s49
    v_lshlrev_b32 v44, 3, v0
    v_add_u32 v44, s48, v44
    s_mul_i32 s48, s76, 9216
    s_lshl_b32 s49, s77, 10
    s_add_u32 s48, s48, s49
    s_add_u32 s48, s48, {LDS_Y0}
    v_lshlrev_b32 v45, 4, v0
    v_add_u32 v45, s48, v45
    """)
    a(f"v_and_b32 v24, 7, v0\nv_lshlrev_b32 v24, 2, v24\nv_add_u32 v24, {LDS_CNT}, v24\nv_mov_b32 v25, 0\nds_write_b32 v24, v25\ns_waitcnt lgkmcnt(0)")
    a("s_waitcnt vmcnt(0)\ns_barrier")
    flag_store("B")
    stamp(a, 2)
    a("s_barrier")
    for i in range(5):
        a(f"ds_read_b128 v[{128+4*i}:{131+4*i}], v45 offset:{i*2048}")
        a(f"ds_read_b128 v[{148+4*i}:{151+4*i}], v45 offset:{i*2048 + 2*9216}")
    for i in range(5):
        a(f"s_waitcnt lgkmcnt({8-2*i})")
        for r in range(4): a(f"v_add_f32 v{128+4*i+r}, v{128+4*i+r}, v{148+4*i+r}")
    activation(a, list(range(128, 148)), 78, 79, 43, 20)
    for i in range(5):
        if i == 4: a("s_cmp_eq_u32 s77, 1\ns_cbranch_scc1 L_y0_done")
        a(f"s_mov_b32 s49, {i*2*2*18*512}")
        a(f"buffer_store_dwordx2 v[{20+2*i}:{21+2*i}], v44, s[{sE}:{sE+3}], s49 offen sc1")
    a("L_y0_done:")
    stamp(a, 3)
    if "poisB" in OPT:
        check_flag_b()
        a(f"""
        v_mov_b32 v24, {LDS_CNT + 8}
        v_mov_b32 v25, 1
        s_cmp_lg_u32 s{sH}, 3
        s_cbranch_scc1 L_fbw
        ds_write_b32 v24, v25
        L_fbw:
        s_mov_b32 s{sSpin}, 0
        L_fbr:
        ds_read_b32 v25, v24
        s_add_u32 s{sSpin}, s{sSpin}, 1
        s_waitcnt lgkmcnt(0)
        v_readfirstlane_b32 s48, v25
        s_cmp_ge_u32 s{sSpin}, {SPIN_MAX}
        s_cbranch_scc1 L_fbrd
        s_cmp_eq_u32 s48, 0
        s_cbranch_scc0 L_fbrd
        s_sleep 2
        s_branch L_fbr
        L_fbrd:
        """)
    z_unit_setup(a, 0, LDS_Z)
    a(f"s_add_u32 s60, s{sH}, 4\ns_cmp_eq_u32 s{sH}, 0\ns_cselect_b32 s61, 8, s{sH}" + (f"\ns_sleep {Q0S}" if Q0S else ""))
    z_units(a, [sH, 60, 61], "q0", Q0N)
    if "qfine" in OPT: stamp(a, 9)
    def meet(word, lbl):
        a(f"""
        s_waitcnt lgkmcnt(0)
        v_mov_b32 v24, {LDS_CNT + 4*word}
        v_mov_b32 v25, 1
        s_mov_b64 exec, 1
        ds_add_u32 v24, v25
        s_mov_b64 exec, -1
        s_mov_b32 s{sSpin}, 0
        L_{lbl}c:
        ds_read_b32 v25, v24
        s_add_u32 s{sSpin}, s{sSpin}, 1
        s_waitcnt lgkmcnt(0)
        v_readfirstlane_b32 s48, v25
        s_cmp_ge_u32 s{sSpin}, {SPIN_MAX}
        s_cbranch_scc1 L_{lbl}cd
        s_cmp_lt_u32 s48, 4
        s_cbranch_scc1 L_{lbl}c
        L_{lbl}cd:
        """)
    meet(0, "q0")
    if "qfine" in OPT: stamp(a, 10)
    ZR = 160
    for P in range(4):
        a(f"ds_read_b128 v[{ZR+4*P}:{ZR+4*P+3}], v15 offset:{P*1024}")
    a(f"ds_read_b64 v[{ZR+16}:{ZR+17}], v15 offset:4096")
    a("s_waitcnt lgkmcnt(0)")
    def proj(zr, qoff, lbl):
        a("s_setprio 3")
        for P in range(4):
            for d in range(3):
                base = WO + 18 * d; acc = 20 + 4 * d
                c = "0" if P == 0 else f"v[{acc}:{acc+3}]"
                a(f"v_mfma_f32_16x16x32_bf16 v[{acc}:{acc+3}], v[{base+4*P}:{base+4*P+3}], v[{zr+4*P}:{zr+4*P+3}], {c}")
        a("s_nop 7")
        for d in range(3):
            base = WO + 18 * d; acc = 20 + 4 * d
            a(f"v_mfma_f32_16x16x16_bf16 v[{acc}:{acc+3}], v[{base+16}:{base+17}], v[{zr+16}:{zr+17}], v[{acc}:{acc+3}]")
        a("s_setprio 0\ns_nop 7")
        for d in range(3):
            acc = 20 + 4 * d
            if d == 2: a(f"s_cmp_lg_u32 s{sH}, 0\ns_cbranch_scc1 L_pj_{lbl}")
            a(f"v_cvt_pk_bf16_f32 v{32+2*d}, v{acc}, v{acc+1}\nv_cvt_pk_bf16_f32 v{33+2*d}, v{acc+2}, v{acc+3}")
            fl = " sc1" if ("outsc1" in OPT or ("out0sc1" in OPT and lbl == "q0")) else (" nt" if "outnt" in OPT else "")
            a(f"buffer_store_dwordx2 v[{32+2*d}:{33+2*d}], v41, s[{sO}:{sO+3}], 0 offen offset:{qoff + 128*d}{fl}")
        a(f"L_pj_{lbl}:")
    if "qfine" in OPT: stamp(a, 11)
    proj(ZR, 0, "q0")
    stamp(a, 4)
    z_unit_setup(a, 1, LDS_Y0)
    a(f"s_add_u32 s60, s{sH}, 4\ns_cmp_eq_u32 s{sH}, 0\ns_cselect_b32 s61, 8, s{sH}")
    if Q1W:
        a(f"""
        s_lshl_b32 s48, s{sH}, 2
        s_add_u32 s48, s48, {LDS_CNT + 16}
        v_mov_b32 v24, s48
        s_mov_b32 s{sSpin}, 0
        L_q1w:
        ds_read_b32 v25, v24
        s_add_u32 s{sSpin}, s{sSpin}, 1
        s_waitcnt lgkmcnt(0)
        v_readfirstlane_b32 s48, v25
        s_cmp_ge_u32 s{sSpin}, {SPIN_MAX}
        s_cbranch_scc1 L_q1wd
        s_cmp_eq_u32 s48, 0
        s_cbranch_scc0 L_q1wd
        s_sleep 1
        s_branch L_q1w
        L_q1wd:
        s_sleep {Q1W}
        """)
    z_units(a, [sH, 60, 61], "q1", Q1N)
    meet(1, "q1")
    stamp(a, 5)
    for P in range(4):
        a(f"ds_read_b128 v[{ZR+4*P}:{ZR+4*P+3}], v15 offset:{P*1024}")
    a(f"ds_read_b64 v[{ZR+16}:{ZR+17}], v15 offset:4096")
    a("s_waitcnt lgkmcnt(0)")
    proj(ZR, 576, "q1")
    stamp(a, 6)
    a("s_waitcnt vmcnt(0)")
    if "dur" in OPT:
        a(f"""
        s_memrealtime s[100:101]
        s_waitcnt lgkmcnt(0)
        s_cmp_lg_u32 s{sH}, 0
        s_cbranch_scc1 L_nodur
        s_mov_b32 s48, -1
        s_cmp_eq_u32 s2, 0
        s_cselect_b32 s48, 8, s48
        s_cmp_eq_u32 s2, 100
        s_cselect_b32 s48, 16, s48
        s_cmp_eq_u32 s2, 251
        s_cselect_b32 s48, 24, s48
        v_mov_b32 v4, s98
        v_mov_b32 v5, s100
        v_mov_b32 v6, s48
        s_mov_b64 exec, 1
        buffer_store_dwordx2 v[4:5], v6, s[{sD}:{sD+3}], 0 offen
        s_waitcnt vmcnt(0)
        s_mov_b64 exec, -1
        L_nodur:
        """)
    stamp(a, 7)
    stamp(a, 8)
    HF_OFF[0] = False
    stamp_flush(a)
    a("s_endpgm")
def gf_flag_addr(a):
    a(f"""
    v_min_u32 v63, 27, v0
    s_mul_i32 s48, s{sNG}, 28
    v_add_u32 v63, s48, v63
    v_lshlrev_b32 v63, 7, v63
    v_add_u32 v63, {FL_OFF}, v63
    """)
sys.stdout.write(gen())
```
